```python
import torch

def _softmax(x, axis=-1):
    return torch.softmax(x, dim=axis)
def _gelu(x):
    return torch.nn.functional.gelu(x, approximate="tanh")
def _silu(x):
    return torch.nn.functional.silu(x)
def _sigmoid(x):
    return torch.sigmoid(x)
def _layernorm(x, axis=-1, eps=1e-5):
    m = x.mean(dim=axis, keepdim=True)
    v = x.var(dim=axis, keepdim=True, unbiased=False)
    return (x - m) / torch.sqrt(v + eps)
def _scatter_add(tgt, idx, src, axis=0):
    return tgt.clone().index_add_(axis, idx, src)
def _segment_sum(src, seg, n):
    out = torch.zeros((n,) + src.shape[1:], dtype=src.dtype)
    return out.index_add_(0, seg, src)
def _pad(x, pw):
    flat = tuple(v for pair in reversed(pw) for v in pair)
    return torch.nn.functional.pad(x, flat)

kernel_name = 'sequential_preLN__ssm_conv_s4__geglu_ffn__prompt'

def setup_inputs():

    _w = (lambda a: (lambda t: t.to(torch.bfloat16) if t.is_floating_point() else t)(torch.as_tensor(a)))
    def _A_setup():
        B, L, D, N = 1, 2048, 640, 192
        A_re = -(lambda _x: torch.exp(torch.as_tensor(_x)))((lambda *s: torch.randn(*s, dtype=torch.bfloat16) * 6.4)(D, N))
        A_im = torch.pi * (lambda *s: torch.randn(*s, dtype=torch.bfloat16) * 0.05)(D, N)
        B_re = (lambda *s: torch.randn(*s, dtype=torch.bfloat16) * 0.05)(D, N)
        B_im = (lambda *s: torch.randn(*s, dtype=torch.bfloat16) * 0.05)(D, N)
        C_re = (lambda *s: torch.randn(*s, dtype=torch.bfloat16) * 0.05)(D, N)
        C_im = (lambda *s: torch.randn(*s, dtype=torch.bfloat16) * 0.05)(D, N)
        log_dt = (lambda *s: torch.randn(*s, dtype=torch.bfloat16) * 0.05)(D) * 0.5 - 4.0
        Dskip = (lambda *s: torch.randn(*s, dtype=torch.bfloat16) * 0.05)(D)
        return {
            "u": _w((lambda *s: torch.randn(*s, dtype=torch.bfloat16) * 0.05)(B, L, D)),
            "A_re": _w(A_re),
            "A_im": _w(A_im),
            "B_re": _w(B_re),
            "B_im": _w(B_im),
            "C_re": _w(C_re),
            "C_im": _w(C_im),
            "log_dt": _w(log_dt),
            "Dskip": _w(Dskip),
        }
    _A_in = _A_setup()

    def _B_setup():
        B, S, D, F = 1, 2048, 640, 1536
        return {
            "x": _w((lambda *s: torch.randn(*s, dtype=torch.bfloat16) * 0.05)(B, S, D)),
            "w_gate": _w((lambda *s: torch.randn(*s, dtype=torch.bfloat16) * 0.05)(D, F)),
            "w_up": _w((lambda *s: torch.randn(*s, dtype=torch.bfloat16) * 0.05)(D, F)),
            "w_down": _w((lambda *s: torch.randn(*s, dtype=torch.bfloat16) * 0.05)(F, D)),
        }
    _B_in = _B_setup()

    return {
        "A_u": _A_in["u"],
        "A_A_re": _A_in["A_re"],
        "A_A_im": _A_in["A_im"],
        "A_B_re": _A_in["B_re"],
        "A_B_im": _A_in["B_im"],
        "A_C_re": _A_in["C_re"],
        "A_C_im": _A_in["C_im"],
        "A_log_dt": _A_in["log_dt"],
        "A_Dskip": _A_in["Dskip"],
        "B_x": _B_in["x"],
        "B_w_gate": _B_in["w_gate"],
        "B_w_up": _B_in["w_up"],
        "B_w_down": _B_in["w_down"],
    }

def reference(A_u, A_A_re, A_A_im, A_B_re, A_B_im, A_C_re, A_C_im, A_log_dt, A_Dskip, B_x, B_w_gate, B_w_up, B_w_down):
    def _A_ref(u, A_re, A_im, B_re, B_im, C_re, C_im, log_dt, Dskip):
        Bsz, L, D = u.shape
        dt = torch.exp(log_dt)[:, None]
        A = A_re + 1j * A_im
        Bc = B_re + 1j * B_im
        Cc = C_re + 1j * C_im
        logdA = dt * A
        dB = dt * Bc
        l = (lambda x, dt: x.to(dt))(torch.arange(L), A_re.dtype)
        P = torch.exp(logdA[:, :, None] * l[None, None, :])
        K = torch.einsum("dn,dnl,dn->dl", Cc, P, dB).real
        L2 = 2 * L
        Kp = _pad(K, ((0, 0), (0, L)))
        up = (lambda x, *d: x.permute(*d))(u, 0, 2, 1)
        up = _pad(up, ((0, 0), (0, 0), (0, L)))
        Kf = (lambda x, axes=(-2,-1): torch.fft.rfft2(x.float(), dim=axes))(Kp[:, None, :], axes=(-2, -1))
        Uf = (lambda x, axes=(-2,-1): torch.fft.rfft2(x.float(), dim=axes))(up[:, :, None, :], axes=(-2, -1))
        Yf = Uf * Kf[None, :, :, :]
        y = (lambda x, s, axes=(-2,-1): torch.fft.irfft2(x, s=s, dim=axes).to(torch.bfloat16))(Yf, (1, L2), axes=(-2, -1))[:, :, 0, :L]
        y = (lambda x, *d: x.permute(*d))(y, 0, 2, 1) + u * Dskip[None, None, :]
        return y

    def _B_ref(x, w_gate, w_up, w_down):
        return (_gelu(x @ w_gate) * (x @ w_up)) @ w_down

    x = A_u
    h = x + _A_ref(_layernorm(x, axis=-1), A_A_re, A_A_im, A_B_re, A_B_im, A_C_re, A_C_im, A_log_dt, A_Dskip)
    h2 = h + _B_ref(_layernorm(h, axis=-1), B_w_gate, B_w_up, B_w_down)
    return h2
```

```python
import sys
L, D, N, F = 2048, 640, 192, 1536
WS_U, WS_K, WS_H, WS_HN, WS_ACT = 0, 4 << 20, 12 << 20, 16 << 20, 20 << 20

def kd(name, vgpr=128):
    return f""".section .rodata,"a"
.p2align 6
.amdhsa_kernel {name}
  .amdhsa_next_free_vgpr {vgpr}
  .amdhsa_next_free_sgpr 96
  .amdhsa_accum_offset {vgpr}
  .amdhsa_group_segment_fixed_size 0
  .amdhsa_kernarg_size 128
  .amdhsa_user_sgpr_count 2
  .amdhsa_user_sgpr_kernarg_segment_ptr 1
  .amdhsa_system_sgpr_workgroup_id_x 1
  .amdhsa_float_denorm_mode_32 3
.end_amdhsa_kernel
"""

def kern(name, nwg, body, vgpr=128):
    return f""".text
.globl {name}
.p2align 8
.type {name},@function
{name}:
    s_cmp_ge_u32 s2, {nwg}
    s_cbranch_scc1 {name}_end
{body}
{name}_end:
    s_endpgm
""" + kd(name, vgpr)

def ptr(sreg, slot, off=0):
    t = f"s_load_dwordx2 s[{sreg}:{sreg+1}], s[0:1], {slot*8}\n"
    return t
def addoff(sreg, off):
    return f"s_add_u32 s{sreg}, s{sreg}, {off}\ns_addc_u32 s{sreg+1}, s{sreg+1}, 0\n" if off else ""

def wave_sum(v, t):
    s = ""
    for off in (0x041F, 0x081F, 0x101F, 0x201F, 0x401F):
        s += f"ds_swizzle_b32 v{t}, v{v} offset:{off}\ns_waitcnt lgkmcnt(0)\nv_add_f32 v{v}, v{v}, v{t}\n"
    s += f"s_nop 1\nv_readlane_b32 s20, v{v}, 0\nv_readlane_b32 s21, v{v}, 32\ns_nop 1\nv_mov_b32 v{v}, s20\nv_add_f32 v{v}, s21, v{v}\n"
    return s

def rbf(v):
    return f"v_cvt_pk_bf16_f32 v{v}, v{v}, v{v}\nv_and_b32 v{v}, 0xffff0000, v{v}\n"

def ln_kernel(name, in_slot, in_off, out_off):
    b = ptr(4, in_slot) + ptr(6, 15) + "s_waitcnt lgkmcnt(0)\n" + addoff(4, in_off) + addoff(6, out_off)
    b += """v_lshrrev_b32 v1, 6, v0
    s_lshl_b32 s3, s2, 2
    v_add_u32 v1, s3, v1
    v_mul_u32_u24 v1, 1280, v1
    v_and_b32 v2, 63, v0
    v_lshl_add_u32 v1, v2, 2, v1
"""
    for i in range(5):
        b += f"global_load_dword v{10+i}, v1, s[4:5] offset:{256*i}\n"
    b += "s_waitcnt vmcnt(0)\n"
    for i in range(5):
        b += f"v_lshlrev_b32 v{20+2*i}, 16, v{10+i}\nv_and_b32 v{21+2*i}, 0xffff0000, v{10+i}\n"
    b += "v_mov_b32 v3, 0\n" + "".join(f"v_add_f32 v3, v3, v{20+i}\n" for i in range(10))
    b += wave_sum(3, 4) + "v_mul_f32 v3, 0x3acccccd, v3\n"
    b += "v_mov_b32 v5, 0\n" + "".join(f"v_sub_f32 v6, v{20+i}, v3\nv_fmac_f32 v5, v6, v6\n" for i in range(10))
    b += wave_sum(5, 4) + "v_mul_f32 v5, 0x3acccccd, v5\n"
    b += rbf(3) + rbf(5) + "v_add_f32 v5, 0x3727c5ac, v5\n" + rbf(5) + "v_sqrt_f32 v5, v5\ns_nop 0\n" + rbf(5) + "v_rcp_f32 v5, v5\ns_nop 0\n"
    for i in range(10):
        b += f"v_sub_f32 v{20+i}, v{20+i}, v3\n" + rbf(20 + i) + f"v_mul_f32 v{20+i}, v{20+i}, v5\n"
    for i in range(5):
        b += f"v_cvt_pk_bf16_f32 v{10+i}, v{20+2*i}, v{21+2*i}\nglobal_store_dword v1, v{10+i}, s[6:7] offset:{256*i}\n"
    return kern(name, L // 4, b, 64)

def kgen_kernel(name):
    b = "".join(ptr(4 + 2 * i, 1 + i) for i in range(7)) + ptr(18, 15) + "s_waitcnt lgkmcnt(0)\n" + addoff(18, WS_K)
    b += f"""s_lshr_b32 s22, s2, 3
    s_and_b32 s23, s2, 7
    v_min_u32 v1, 191, v0
    s_mul_i32 s24, s22, 384
    v_lshl_add_u32 v1, v1, 1, s24
    s_lshl_b32 s25, s22, 1
    v_mov_b32 v2, s25
    global_load_ushort v10, v1, s[4:5]
    global_load_ushort v11, v1, s[6:7]
    global_load_ushort v12, v1, s[8:9]
    global_load_ushort v13, v1, s[10:11]
    global_load_ushort v14, v1, s[12:13]
    global_load_ushort v15, v1, s[14:15]
    global_load_ushort v16, v2, s[16:17]
    s_waitcnt vmcnt(0)
"""
    b += "".join(f"v_lshlrev_b32 v{i}, 16, v{i}\n" for i in range(10, 17))
    b += "v_mul_f32 v16, 0x3fb8aa3b, v16\nv_exp_f32 v16, v16\ns_nop 0\n" + rbf(16)
    b += """v_mul_f32 v20, v16, v10
    v_mul_f32 v20, 0x3fb8aa3b, v20
    v_mul_f32 v21, v16, v11
    v_mul_f32 v21, 0.15915494, v21
    v_mul_f32 v12, v16, v12
    v_mul_f32 v13, v16, v13
    v_mul_f32 v22, v14, v12
    v_fma_f32 v22, -v15, v13, v22
    v_mul_f32 v23, v14, v13
    v_fma_f32 v23, v15, v12, v23
    v_lshlrev_b32 v3, 4, v0
    ds_write_b128 v3, v[20:23]
    s_waitcnt lgkmcnt(0)
    s_barrier
    s_lshl_b32 s26, s23, 8
    v_add_u32 v4, s26, v0
    v_cvt_f32_u32 v5, v4
"""
    b += rbf(5) + f"""v_mov_b32 v6, 0
    v_mov_b32 v7, 0
    s_mov_b32 s27, 0
{name}_loop:
    ds_read_b128 v[24:27], v7
    v_add_u32 v7, 16, v7
    s_waitcnt lgkmcnt(0)
    v_mul_f32 v28, v24, v5
    v_mul_f32 v29, v25, v5
    v_exp_f32 v28, v28
    v_fract_f32 v29, v29
    v_cos_f32 v30, v29
    v_sin_f32 v31, v29
    s_nop 0
    v_mul_f32 v30, v26, v30
    v_fma_f32 v30, -v27, v31, v30
    v_fmac_f32 v6, v28, v30
    s_add_u32 s27, s27, 1
    s_cmp_lt_u32 s27, 192
    s_cbranch_scc1 {name}_loop
    v_mul_u32_u24 v4, 2560, v4
    s_lshl_b32 s28, s22, 2
    v_add_u32 v4, s28, v4
    global_store_dword v4, v6, s[18:19]
"""
    return kern(name, D * 8, b, 64)

def conv_kernel(name):
    b = ptr(4, 15) + ptr(6, 0) + ptr(16, 8) + "s_waitcnt lgkmcnt(0)\n"
    b += f"""s_add_u32 s8, s4, {WS_K}
    s_addc_u32 s9, s5, 0
    s_mov_b32 s10, {L*D*4}
    s_mov_b32 s11, 0x20000
    s_add_u32 s12, s4, {WS_H}
    s_addc_u32 s13, s5, 0
    s_mov_b32 s20, 0x1999999a
    s_mul_hi_u32 s21, s2, s20
    s_mul_i32 s22, s21, 10
    s_sub_u32 s22, s2, s22
    s_sub_u32 s21, 255, s21
    s_lshl_b32 s23, s22, 6
    v_add_u32 v1, s23, v0
    v_lshlrev_b32 v2, 1, v1
    v_lshlrev_b32 v3, 2, v1
    s_lshl_b32 s24, s21, 3
    s_mov_b32 s25, 0
"""
    b += "".join(f"v_mov_b32 v{40+i}, 0\n" for i in range(8))
    b += f"{name}_loop:\ns_mul_i32 s26, s25, 1280\nv_add_u32 v4, s26, v2\ns_sub_u32 s27, s24, s25\ns_sub_u32 s27, s27, 7\ns_mul_i32 s27, s27, 2560\nv_add_u32 v5, s27, v3\n"
    for i in range(8):
        b += f"global_load_ushort v{10+i}, v4, s[4:5]\nv_add_u32 v4, 1280, v4\n"
    for i in range(15):
        b += f"buffer_load_dword v{20+i}, v5, s[8:11], 0 offen\nv_add_u32 v5, 2560, v5\n"
    b += "s_waitcnt vmcnt(0)\n" + "".join(f"v_lshlrev_b32 v{10+i}, 16, v{10+i}\n" for i in range(8))
    for o in range(8):
        for j in range(8):
            b += f"v_fmac_f32 v{40+o}, v{10+j}, v{20+7+o-j}\n"
    b += f"s_add_u32 s25, s25, 8\ns_cmp_le_u32 s25, s24\ns_cbranch_scc1 {name}_loop\n"
    b += "global_load_ushort v6, v2, s[16:17]\ns_mul_i32 s26, s24, 1280\nv_add_u32 v4, s26, v2\n"
    for i in range(8):
        b += f"global_load_ushort v{20+i}, v4, s[6:7]\nv_add_u32 v4, 1280, v4\n"
    b += "s_waitcnt vmcnt(0)\nv_lshlrev_b32 v6, 16, v6\nv_add_u32 v4, s26, v2\n"
    for i in range(8):
        b += rbf(40 + i) + f"v_mul_f32 v7, v{10+i}, v6\n" + rbf(7) + f"v_add_f32 v7, v7, v{40+i}\n" + rbf(7)
        b += f"v_lshlrev_b32 v{20+i}, 16, v{20+i}\nv_add_f32 v7, v7, v{20+i}\nv_cvt_pk_bf16_f32 v7, v7, v7\nglobal_store_short v4, v7, s[12:13]\nv_add_u32 v4, 1280, v4\n"
    return kern(name, 2560, b, 64)

def gemm_kernel(name, second):
    Kd = F if second else D
    Nd = D if second else F
    nt = Nd // 32
    b = ptr(4, 15) + ptr(6, 12 if second else 10) + ptr(8, 11) + ptr(14, 13) + "s_waitcnt lgkmcnt(0)\n"
    b += f"""s_add_u32 s10, s4, {WS_ACT if second else WS_HN}
    s_addc_u32 s11, s5, 0
    s_add_u32 s12, s4, {WS_H if second else WS_ACT}
    s_addc_u32 s13, s5, 0
    s_and_b32 s20, s2, 31
    s_lshr_b32 s21, s2, 5
    v_and_b32 v1, 31, v0
    v_lshrrev_b32 v2, 5, v0
    s_lshl_b32 s22, s20, 6
    v_add_u32 v3, s22, v1
    v_mul_u32_u24 v3, {Kd*2}, v3
    v_lshl_add_u32 v3, v2, 4, v3
    v_add_u32 v4, {32*Kd*2}, v3
    s_lshl_b32 s23, s21, 5
    v_add_u32 v5, s23, v1
    v_lshlrev_b32 v5, 1, v5
    v_mul_u32_u24 v6, {8*Nd*2}, v2
    v_add_u32 v6, v6, v5
    s_mov_b32 s24, 0
"""
    b += "".join(f"v_mov_b32 v{64+i}, 0\n" for i in range(64))
    b += f"{name}_loop:\nglobal_load_dwordx4 v[8:11], v3, s[10:11]\nglobal_load_dwordx4 v[12:15], v4, s[10:11]\nv_add_u32 v3, 32, v3\nv_add_u32 v4, 32, v4\n"
    for i in range(8):
        b += f"global_load_ushort v{24+i}, v6, s[6:7]\n"
        if not second:
            b += f"global_load_ushort v{32+i}, v6, s[8:9]\n"
        b += f"v_add_u32 v6, {Nd*2}, v6\n"
    b += f"v_add_u32 v6, {8*Nd*2}, v6\ns_waitcnt vmcnt(0)\n"
    for i in range(4):
        b += f"v_lshl_or_b32 v{16+i}, v{25+2*i}, 16, v{24+2*i}\n"
        if not second:
            b += f"v_lshl_or_b32 v{20+i}, v{33+2*i}, 16, v{32+2*i}\n"
    b += "s_nop 1\nv_mfma_f32_32x32x16_bf16 v[64:79], v[8:11], v[16:19], v[64:79]\nv_mfma_f32_32x32x16_bf16 v[80:95], v[12:15], v[16:19], v[80:95]\n"
    if not second:
        b += "v_mfma_f32_32x32x16_bf16 v[96:111], v[8:11], v[20:23], v[96:111]\nv_mfma_f32_32x32x16_bf16 v[112:127], v[12:15], v[20:23], v[112:127]\n"
    b += f"s_add_u32 s24, s24, 16\ns_cmp_lt_u32 s24, {Kd}\ns_cbranch_scc1 {name}_loop\ns_nop 15\n"
    b += f"v_lshlrev_b32 v7, 2, v2\nv_add_u32 v7, s22, v7\nv_mul_u32_u24 v7, {Nd*2}, v7\nv_add_u32 v7, v7, v5\n"
    for t in range(2):
        for j in range(16):
            row = 32 * t + 8 * (j // 4) + (j % 4)
            a = 64 + 16 * t + j
            b += f"v_add_u32 v8, {row*Nd*2}, v7\n"
            if second:
                b += f"global_load_ushort v9, v8, s[12:13]\n" + rbf(a) + f"s_waitcnt vmcnt(0)\nv_lshlrev_b32 v9, 16, v9\nv_add_f32 v9, v9, v{a}\nv_cvt_pk_bf16_f32 v9, v9, v9\nglobal_store_short v8, v9, s[14:15]\n"
            else:
                u = a + 32
                b += rbf(a) + rbf(u) + f"""v_mul_f32 v9, v{a}, v{a}
    v_mov_b32 v10, 0xc0135761
    v_fmac_f32 v10, 0xbdd2d3e8, v9
    v_mul_f32 v10, v10, v{a}
    v_exp_f32 v10, v10
    s_nop 0
    v_add_f32 v10, 1.0, v10
    v_rcp_f32 v10, v10
    s_nop 0
    v_mul_f32 v10, v10, v{a}
""" + rbf(10) + f"v_mul_f32 v10, v10, v{u}\nv_cvt_pk_bf16_f32 v10, v10, v10\nglobal_store_short v8, v10, s[12:13]\n"
    return kern(name, 32 * nt, b, 128)

def gen(n_front=0, n_back=0):
    launches = [("empty_kernel", 256, 256, 0)] * n_front + [
        ("ln1_kernel", 512, 256, 0), ("kgen_kernel", D * 8, 256, 4096), ("conv_kernel", 2560, 64, 0),
        ("ln2_kernel", 512, 256, 0), ("g1_kernel", 32 * 48, 64, 0), ("g2_kernel", 32 * 20, 64, 0)] + [("empty_kernel", 256, 256, 0)] * n_back
    s = "".join(f"; @launch kernel={k} grid=({g},1,1) block=({b},1,1) lds={l}\n" for k, g, b, l in launches)
    s += '.amdgcn_target "amdgcn-amd-amdhsa--gfx950"\n'
    s += ln_kernel("ln1_kernel", 0, 0, WS_U) + kgen_kernel("kgen_kernel") + conv_kernel("conv_kernel")
    s += ln_kernel("ln2_kernel", 15, WS_H, WS_HN) + gemm_kernel("g1_kernel", False) + gemm_kernel("g2_kernel", True)
    if n_front or n_back:
        s += kern("empty_kernel", 256, "s_nop 0\n", 32)
    return s

if __name__ == "__main__":
    open("naive0.s", "w").write(gen())
    open("naive_f20.s", "w").write(gen(20, 0))
    open("naive_b20.s", "w").write(gen(0, 20))
    open("naive_f1.s", "w").write(gen(1, 0))
```

```python
import naive_gen as g
import struct
def fhex(x): return hex(struct.unpack('<I', struct.pack('<f', x))[0])
base = g.gen()
a = base.replace("    global_store_dword v4, v6, s[18:19]", g.rbf(6) + "    global_store_dword v4, v6, s[18:19]")
open("var_kbf.s", "w").write(a)
orig = g.rbf
def norb(v):
    import inspect
    caller = inspect.stack()[1].function
    return orig(v) if caller == "kgen_kernel" else ""
g.rbf = norb
b = g.gen().replace("    global_store_dword v4, v6, s[18:19]", orig(6) + "    global_store_dword v4, v6, s[18:19]")
open("var_norb.s", "w").write(b)
g.rbf = orig
for sc in (1.01, 1.02, 1.04, 1.08):
    import re
    c = re.sub(r"v_add_f32 v9, v9, v(\d+)\n", lambda m: f"v_fmac_f32 v9, {fhex(sc)}, v{m.group(1)}\n", base)
    open(f"var_sc{int(round((sc-1)*100))}.s", "w").write(c)
```

```python
import naive_gen as g
def chase(slot, n, stride):
    body = f"""s_load_dwordx2 s[4:5], s[0:1], {slot*8}
    v_mov_b32 v1, 0
    s_mov_b32 s10, 0
    s_waitcnt lgkmcnt(0)
chase_loop:
    global_load_dword v2, v1, s[4:5]
    s_waitcnt vmcnt(0)
    v_and_b32 v2, 0, v2
    v_add_u32 v1, {stride}, v1
    v_add_u32 v1, v1, v2
    s_add_u32 s10, s10, 1
    s_cmp_lt_u32 s10, {n}
    s_cbranch_scc1 chase_loop
"""
    return g.kern("chase_kernel", 1, body, 32)
base = g.gen()
for tag, slot, n, stride in (("bx", 9, 256, 10240), ("x", 0, 256, 10240), ("wd", 12, 256, 7680), ("ws", 15, 256, 1 << 20), ("out", 13, 256, 10240)):
    s = "; @launch kernel=chase_kernel grid=(1,1,1) block=(64,1,1) lds=0\n" + base + chase(slot, n, stride)
    open(f"probe_{tag}.s", "w").write(s)
```

```python
import naive_gen as g
def stream(per_wg, threads, store=False):
    nw = threads // 64
    n = per_wg // (threads * 16)
    body = f"""s_load_dwordx2 s[4:5], s[0:1], 120
    s_mul_i32 s6, s2, {per_wg}
    s_add_u32 s6, s6, {64 << 20}
    v_lshlrev_b32 v1, 4, v0
    v_add_u32 v1, s6, v1
    s_waitcnt lgkmcnt(0)
"""
    for i in range(n):
        r = 16 + 4 * (i % 16)
        if store:
            body += f"global_store_dwordx4 v1, v[16:19], s[4:5]\n"
        else:
            body += f"global_load_dwordx4 v[{r}:{r+3}], v1, s[4:5]\n"
        body += f"v_add_u32 v1, {threads*16}, v1\n"
        if i >= 15:
            body += "s_waitcnt vmcnt(15)\n"
    body += "s_waitcnt vmcnt(0)\n"
    return g.kern("stream_kernel", 256, body, 128)
base = g.gen()
for tag, per_wg, thr, st in (("r16", 64 << 10, 512, False), ("r64", 256 << 10, 512, False), ("r128", 512 << 10, 512, False), ("w16", 64 << 10, 512, True), ("w64", 256 << 10, 512, True)):
    s = f"; @launch kernel=stream_kernel grid=(256,1,1) block=({thr},1,1) lds=0\n" + base + stream(per_wg, thr, st)
    open(f"probe_{tag}.s", "w").write(s)
```

```python
import re

REG = re.compile(r"^-?\|?(?:abs\()?([vas])(?:(\d+)|\[(\d+):(\d+)\])\)?\|?$")
TRANS = re.compile(r"^v_(exp|log|rcp|rsq|sqrt|sin|cos)_f32")

def regs_of(tok):
    tok = tok.strip()
    if tok in ("vcc", "exec"):
        return [(tok, 0)]
    if tok == "m0":
        return [("m0", 0)]
    m = REG.match(tok)
    if not m:
        return []
    if m.group(2) is not None:
        return [(m.group(1), int(m.group(2)))]
    return [(m.group(1), i) for i in range(int(m.group(3)), int(m.group(4)) + 1)]

class I:
    def __init__(self, text, tag=None, opt=False, put=None, need=None):
        self.text = text.strip()
        self.tag, self.opt, self.put, self.need = tag, opt, put, need
        self.defs, self.uses = set(), set()
        self.kind = "other"
        t = self.text
        if t.endswith(":") or t.startswith(".") or t.startswith(";") or not t:
            self.kind, self.mn = "meta", ""
            return
        if t.startswith("@"):
            self.kind, self.mn = "pseudo", t.split()[0]
            return
        mn, _, rest = t.partition(" ")
        self.mn = mn
        ops = [o.strip() for o in re.split(r",(?![^\[]*\])", rest)] if rest else []
        mods = ""
        if ops:
            last = ops[-1].split(None, 1)
            if len(last) == 2 and not last[0].endswith(":"):
                ops[-1], mods = last[0], last[1]
        self.ops, self.mods = ops, mods
        R = [regs_of(o) for o in ops]
        allr = lambda k: {r for x in R[k:] for r in x}
        if mn.startswith("v_mfma"):
            self.kind = "mfma"
            self.passes = 8 if "32x32" in mn else 4
            self.defs, self.uses = set(R[0]), allr(1)
            self.A, self.B, self.C = set(R[1]), set(R[2]), set(R[3])
        elif mn.startswith("ds_"):
            self.kind = "ds"
            if mn.startswith("ds_read") or "permute" in mn or "swizzle" in mn:
                self.defs, self.uses = set(R[0]), allr(1)
            else:
                self.uses = allr(0)
                if "addtid" in mn: self.uses.add(("m0", 0))
        elif mn.startswith("buffer_") or mn.startswith("global_"):
            self.kind = "vm"
            self.dma = "_lds_" in mn or re.search(r"\blds\b", mods) is not None
            if self.dma:
                self.uses = allr(0) | {("m0", 0)}
            elif "_load" in mn:
                self.defs, self.uses = set(R[0]), allr(1)
                if "d16" in mn:
                    self.uses |= self.defs
            else:
                self.uses = allr(0)
                self.wide = set()
                if "x3" in mn or "x4" in mn:
                    self.wide = set(R[0] if mn.startswith("buffer_") else R[1])
        elif mn.startswith("s_load") or mn in ("s_memtime", "s_memrealtime"):
            self.kind = "smem"
            self.defs, self.uses = set(R[0]), allr(1)
        elif mn.startswith("s_"):
            self.kind = "salu"
            if mn.startswith(("s_cmp", "s_cbranch", "s_branch", "s_waitcnt", "s_barrier", "s_nop", "s_sleep", "s_setprio", "s_endpgm", "s_bitcmp")):
                self.uses = allr(0)
                if "vcc" in mn: self.uses.add(("vcc", 0))
            else:
                self.defs, self.uses = set(R[0]), allr(1)
                if "saveexec" in mn: self.defs.add(("exec", 0))
        elif mn.startswith("v_"):
            self.kind = "valu"
            self.defs, self.uses = set(R[0]), allr(1)
            if "permlane" in mn and "swap" in mn:
                self.defs |= set(R[1]); self.uses |= set(R[0])
            if re.match(r"v_(fmac|dot2c|mac|pk_fmac|writelane)", mn) or "dpp" in mn or "quad_perm" in mods or "row_" in mods:
                self.uses |= set(R[0])
            if mn.startswith("v_cndmask") and len(ops) == 3:
                self.uses.add(("vcc", 0))
            if re.match(r"v_(add|sub|subrev|addc|subb)_co", mn):
                self.defs |= set(R[1])
        self.trans = bool(TRANS.match(mn))
        self.dpp = self.kind == "valu" and ("dpp" in mn or "quad_perm" in mods or "row_" in mods)
        self.dot = mn.startswith("v_dot")

    def cost(self):
        if self.kind in ("meta", "pseudo"): return 0
        if self.kind == "salu": return 0.25
        if self.kind == "ds" and not self.defs: return len(vg(self.uses))
        if self.kind == "vm" and not self.defs and not self.dma: return len(vg(self.uses))
        if "permlane" in self.mn: return 2
        return 2 if getattr(self, "trans", False) else 1
    def cls(self):
        return 0 if self.kind in ("salu", "pseudo") else 1 if self.kind in ("ds", "vm") else 2

def mk(x, **kw):
    if isinstance(x, I): return [x]
    if isinstance(x, str): return [I(l, **kw) for l in x.strip().split("\n") if l.strip()]
    return [j for i in x for j in mk(i, **kw)]

def vg(s): return {r for r in s if r[0] in "va"}
def sg(s): return {r for r in s if r[0] in ("s", "vcc")}

def need_states(p, c):
    n = 0
    if p.kind == "valu":
        w = vg(p.defs)
        if c.kind == "mfma" and w & c.uses: n = max(n, 3 if p.dot else 2)
        if c.kind == "valu":
            if p.trans and not c.trans and w & c.uses: n = max(n, 1)
            if (c.dpp or "permlane" in c.mn) and w & c.uses: n = max(n, 2)
            if c.mn.startswith(("v_readlane", "v_readfirstlane")) and w & c.uses: n = max(n, 1)
            if sg(p.defs) & c.uses: n = max(n, 4 if "lane" in c.mn else 2)
        if p.dot and w & (c.uses | c.defs):
            same_chain = c.mn == p.mn and not (w & {r for o in c.ops[1:3] for r in regs_of(o)})
            if not same_chain: n = max(n, 3)
        if c.kind == "vm" and sg(p.defs) & c.uses: n = max(n, 5)
        if c.kind == "salu" and sg(p.defs) & c.uses: n = max(n, 2)
    if p.kind == "mfma":
        big = p.passes == 8
        if c.kind == "mfma":
            if p.defs & (c.A | c.B): n = max(n, 12 if big else 8)
            if p.defs & c.C and not (p.defs == c.C and p.passes == c.passes): n = max(n, 10 if big else 6)
            if p.defs & c.defs and not p.defs & c.C: n = max(n, 10 if big else 6)
        elif c.kind in ("valu", "vm", "ds"):
            if p.defs & (c.uses | c.defs): n = max(n, 12 if big else 8)
            if p.C & c.defs and c.kind == "valu": n = max(n, 7 if big else 3)
    if p.kind == "vm" and getattr(p, "wide", None) and p.wide & c.defs: n = max(n, 2)
    if p.kind == "salu" and ("m0", 0) in p.defs and c.kind in ("vm", "ds") and ("m0", 0) in c.uses: n = max(n, 1)
    return n

def finalize(prog):
    out, vmq, lgq, hist, val = [], [], [], [], {}
    stats = {"wait": 0, "nop": 0}
    def newer(q, k): return sum(1 for e in q[k + 1:] if not e.opt)
    def emit(i):
        out.append(i)
        if i.kind in ("meta", "pseudo"): return
        states = int(i.ops[0]) + 1 if i.mn == "s_nop" else 1
        hist.append((i, states))
        if len(hist) > 64: hist.pop(0)
    def do_wait(vn, ln, opt=False):
        parts = []
        if vn is not None: parts.append(f"vmcnt({min(vn, 63)})")
        if ln is not None: parts.append(f"lgkmcnt({min(ln, 15)})")
        if parts:
            w = I("s_waitcnt " + " ".join(parts), opt=opt); emit(w); apply_wait(w); stats["wait"] += 1
    def drop(q, n):
        while len(q) > n: q.pop(0)
    def apply_wait(i):
        m = re.search(r"vmcnt\((\d+)\)", i.text)
        if m: trim(vmq, int(m.group(1)), i.opt)
        m = re.search(r"lgkmcnt\((\d+)\)", i.text)
        if m:
            n = int(m.group(1))
            if n == 0 or not any(e.kind == "smem" for e in lgq): trim(lgq, n, i.opt)
    def trim(q, n, opt):
        done = [k for k in range(len(q)) if newer(q, k) >= n and (q[k].opt or not opt)]
        for k in reversed(done): q.pop(k)
    for i in prog:
        if i.kind == "pseudo":
            a = i.text.split()
            if a[0] == "@reset":
                vmq.clear(); lgq.clear(); hist.clear()
            elif a[0] in ("@vm", "@lgkm"):
                q = vmq if a[0] == "@vm" else lgq
                ks = [k for k, e in enumerate(q) if e.tag == a[1]]
                if ks:
                    n = newer(q, ks[-1])
                    if a[0] == "@lgkm" and any(e.kind == "smem" for e in q): n = 0
                    do_wait(n if a[0] == "@vm" else None, n if a[0] == "@lgkm" else None)
            continue
        if i.kind == "meta":
            emit(i); continue
        touch = i.uses | i.defs
        vn = ln = None
        ks = [k for k, e in enumerate(vmq) if e.defs & touch]
        if ks and not (i.kind == "vm" and not any(vmq[k].defs & i.uses for k in ks)): vn = newer(vmq, ks[-1])
        ks = [k for k, e in enumerate(lgq) if e.defs & touch]
        if ks and not (i.kind == "ds" and not any(lgq[k].defs & i.uses or lgq[k].kind == "smem" for k in ks)):
            ln = 0 if any(e.kind == "smem" for e in lgq) else newer(lgq, ks[-1])
        do_wait(vn, ln, i.opt)
        dist, pad = 0, 0
        for p, st in reversed(hist):
            pad = max(pad, need_states(p, i) - dist)
            if i.opt or not p.opt: dist += st
        if pad > 0:
            emit(I(f"s_nop {pad - 1}", opt=i.opt)); stats["nop"] += pad
        if i.need:
            for r, t in i.need.items():
                assert val.get(r) == t, f"{i.text}: register {r} holds {val.get(r)}, expected {t}"
        for r in i.defs: val.pop(r, None)
        if i.put: val.update(i.put)
        emit(i)
        if i.mn == "s_waitcnt": apply_wait(i)
        if i.kind == "vm": vmq.append(i)
        if i.kind in ("ds", "smem"): lgq.append(i)
    return out, stats

def indep(a, b):
    scc = lambda i: i.kind == "salu"
    return not (a.defs & (b.uses | b.defs) or b.defs & a.uses)

class Gaps:
    def __init__(self, main, cap=2):
        self.main, self.cap = main, cap
        self.pre = []
        self.g = [[] for _ in main]
        self.blk = [[] for _ in main]
    def load(self, k): return sum(i.cost() for i in self.g[k]) + min(2, len(self.blk[k]))
    def block(self, k, x):
        (self.pre if k < 0 else self.blk[k]).extend(mk(x))
    def put(self, k, i):
        while True:
            g = self.g[k]
            pos = len(g)
            while pos > 0 and g[pos - 1].cls() > i.cls(): pos -= 1
            if all(indep(i, j) for j in g[pos:]):
                g.insert(pos, i); return k
            if k == len(self.main) - 1:
                g.append(i); return k
            k += 1
    def at(self, k, x):
        if k < 0:
            self.pre.extend(mk(x)); return
        for i in mk(x): k = self.put(k, i)
        return k
    def spread(self, x, lo, hi):
        x = mk(x)
        lo = max(lo, 0); hi = min(hi, len(self.main))
        assert hi > lo, (lo, hi)
        total = sum(i.cost() for i in x)
        level = 0
        while sum(max(0, level - self.load(k)) for k in range(lo, hi)) < total: level += 1
        room = [max(0, level - self.load(k)) for k in range(lo, hi)]
        scale = total / sum(room) if total else 0
        k, acc, used, last = 0, room[0] * scale, 0, lo
        for i in x:
            while k < hi - lo - 1 and used + i.cost() * 0.5 > acc + 1e-9:
                k += 1; acc += room[k] * scale
            last = self.put(max(lo + k, last), i); used += i.cost()
        return last
    def early(self, x, lo, cap=None):
        k = max(lo, 0); cap = cap or self.cap
        for i in mk(x):
            while k < len(self.main) - 1 and self.load(k) > 0.9 and self.load(k) + i.cost() > cap + 0.5: k += 1
            k = self.put(k, i)
        return k
    def flat(self):
        out = list(self.pre)
        for m, g, b in zip(self.main, self.g, self.blk):
            out.append(m); out += g + b
        return out
```

```python
import math
from asmlib import I, mk, Gaps
import gen as G
from gen import fx, SRD, SRD2, sW, sCLS, sIDX, SLOT, STP, RST, RES, PART, HT, ACT, W2P, F2, F3

C0 = -2 * 0.7978845608028654 * math.log2(math.e)
vL16 = 252
TA = 2
FRG = 10
ACC = 50
S1, S2 = 74, 78
CS, ONES = 82, 94
CN = 98
T = 106
OUT = 120
vAST, vSW, vSR, vPF = 124, 125, 126, 127
W2E = 128
PD = 254
MF = "v_mfma_f32_16x16x32_bf16"

def r4(kind, n): return f"{kind}[{n}:{n+3}]"

def ffn(e):
    o = e.o
    e(f"""s_and_b32 s68, s{sIDX}, 7
        s_bfe_u32 s69, s{sIDX}, 0x10003
        s_lshr_b32 s70, s{sIDX}, 4
        s_and_b32 s48, s{sCLS}, 6
        s_add_u32 s70, s70, s48
        s_and_b32 s48, s62, 8
        s_add_u32 s70, s70, s48
        v_and_b32 v{T}, 15, v1
        v_lshrrev_b32 v{T+1}, 4, v1
        v_bfe_u32 v{T+2}, v1, 2, 2
        v_and_b32 v{T+3}, 3, v1
        v_lshlrev_b32 v{T+4}, 9, v{T+1}
        v_lshl_add_u32 v{T+4}, v{T+2}, 6, v{T+4}
        v_lshl_add_u32 v{T+4}, v{T+3}, 3, v{T+4}
        v_and_b32 v{T+5}, 1, v{T+1}
        v_lshl_add_u32 v{T+4}, v{T+5}, 5, v{T+4}""")
    for gq in range(4):
        e(f"""s_add_u32 s48, s{sW}, {gq}
            s_and_b32 s48, s48, 3
            s_mul_i32 s48, s48, 10240
            v_add_u32 v{TA+gq}, s48, v{T+4}
            v_xor_b32 v{TA+4+gq}, 32, v{TA+gq}""")
    e(f"""v_mov_b32 v{ONES}, 0x3f803f80
        v_mov_b32 v{ONES+1}, 0x3f803f80
        v_mov_b32 v{ONES+2}, 0x3f803f80
        v_mov_b32 v{ONES+3}, 0x3f803f80
        v_mov_b32 v{OUT+3}, 0
        v_cmp_eq_u32 s[50:51], 1, v{T+3}
        v_cmp_eq_u32 s[52:53], 2, v{T+3}
        v_cmp_eq_u32 s[54:55], 3, v{T+3}
        v_cmp_eq_u32 vcc, v{T+1}, v{T+2}
        s_lshl_b32 s48, s{sW}, 3
        s_add_u32 s48, s48, {STP}
        v_lshl_add_u32 v{vSW}, v{T}, 5, s48
        v_mov_b32 v{T+5}, {RES + 4 * 2816}
        v_lshl_add_u32 v{T+5}, v1, 3, v{T+5}
        v_cndmask_b32 v{vSW}, v{T+5}, v{vSW}, vcc
        v_lshlrev_b32 v{vSR}, 5, v{T}
        v_add_u32 v{vSR}, {STP}, v{vSR}
        v_cmp_gt_u32 vcc, 48, v1
        v_mov_b32 v{T+5}, 0x40000000
        s_mul_i32 s56, s62, {8 * 192 * 256}
        s_lshl2_add_u32 s48, s63, s{sW}
        v_cndmask_b32 v{vAST}, v{T+5}, v{vL16}, vcc
        s_mul_i32 s48, s48, 768
        s_add_u32 s56, s56, s48
        s_add_u32 s56, s56, {ACT}
        s_mul_i32 s57, s62, {4 * SLOT}
        s_mul_i32 s58, s{sW}, 10240
        s_add_u32 s57, s57, s58
        s_add_u32 s57, s57, {HT}
        s_lshl_b32 s48, s{sCLS}, 12
        s_add_u32 s48, s48, {F2}
        v_lshl_add_u32 v{vPF}, v0, 4, s48
        s_lshl2_add_u32 s59, s68, s{sW}
        s_mul_i32 s59, s59, {12 * 5120}
        s_add_u32 s59, s59, {W2P}
        s_lshl_b32 s60, s70, 3
        s_add_u32 s60, s60, s69
        s_mul_i32 s60, s60, {192 * 256}
        s_mul_i32 s48, s{sW}, {48 * 256}
        s_add_u32 s60, s60, s48
        s_add_u32 s60, s60, {ACT}
        s_lshl_b32 s61, s62, 4
        s_add_u32 s61, s61, s63
        s_lshl_b32 s61, s61, 4
        s_add_u32 s61, s61, {F3}""")
    e("s_waitcnt vmcnt(0)")
    e(e.stamp(9 if o.get("fst") else 13))
    cs = [I(f"{MF} {r4('v', CS + 4 * t)}, {r4('a', 12 * p + 4 * t)}, {r4('v', ONES)}, " + ("0" if p == 0 else r4('v', CS + 4 * t))) for p in range(20) for t in range(3)]
    g = Gaps(cs); g.at(o.get("f2i", 20), e.poll_issue(vPF, PD)); e(g.flat())
    e(e.poll_check(vPF, PD))
    e("s_barrier")
    if o.get("fst"): e(e.stamp(1))

    def dma_chunk(c):
        out = []
        for k in range(10):
            if k % 4 == 0:
                out += mk(f"s_add_u32 m0, s58, {(c % 3) * SLOT + 1024 * k}\ns_add_u32 s39, s57, {c * SLOT + 1024 * k}")
            out += mk(f"buffer_load_dwordx4 v{vL16}, {SRD}, s39 offen offset:{1024 * (k % 4)} sc1 lds", tag=f"h{c}")
        return out
    for c in range(3): e(dma_chunk(c))
    e(f"""s_lshl_b32 s48, s70, 4
        s_lshl2_add_u32 s48, s{sW}, s48
        s_lshl_b32 s49, s69, 8
        s_add_u32 s48, s48, s49
        s_lshl_b32 s48, s48, 4
        s_add_u32 s48, s48, {F3}
        v_lshl_add_u32 v{vPF}, v{T+3}, 4, s48""")

    w2reg = {}
    for n in range(35):
        w2reg[n] = ("v", W2E + 4 * n) if n < 31 else ("a", 240 + 4 * (n - 31))
    late = [("x", 0, k) for k in range(7)]
    for k in range(7, 12): late += [("w", 5 * k + t, 0) for t in range(5)] + [("x", 0, k)]
    late += [("x", 1, k) for k in range(12)] + [("x", 2, k) for k in range(11)]
    actreg = {}
    for n, (kind, a, b) in enumerate(late):
        if kind == "w": w2reg[a] = ("a", 4 * n)
        else: actreg[a, b] = ("a", 4 * n)
    actreg[2, 11] = actreg[0, 0]
    for k in range(11): actreg[3, k] = actreg[0, k + 1]
    actreg[3, 11] = actreg[1, 0]
    def tagput(reg, tag): return {(reg[0], reg[1] + i): tag for i in range(4)}
    def w2_load(n):
        return mk(f"s_add_u32 s71, s59, {4096 * (n // 4)}") + [I(f"buffer_load_dwordx4 {r4(*w2reg[n])}, v{vL16}, {SRD}, s71 offen offset:{1024 * (n % 4)} sc1", tag="w2", put=tagput(w2reg[n], ("W2", n)))]
    def act_load(c, k):
        return mk(f"s_add_u32 s72, s60, {2 * c * 192 * 256 + 4096 * (k // 4)}") + [I(f"buffer_load_dwordx4 {r4(*actreg[c, k])}, v{vL16}, {SRD}, s72 offen offset:{1024 * (k % 4)} sc1", tag=f"x{c}", put=tagput(actreg[c, k], ("X", c, k)))]
    def late_load(n):
        kind, a, b = late[n]
        return w2_load(a) if kind == "w" else act_load(a, b)
    def f3_issue(c): return mk(f"s_mov_b32 s73, {2 * c * 4096}\nbuffer_load_dwordx2 v[{PD}:{PD+1}], v{vPF}, {SRD}, s73 offen sc1")
    def f3_check(c):
        return [I(i.text.replace(f"{SRD}, 0 offen", f"{SRD}, s73 offen"), opt=i.opt) for i in e.poll_check(vPF, PD)]
    def f3_signal(i):
        return e.signal(f"s_add_u32 s48, s61, {4096 * i}\nv_mov_b32 v{T+10}, s48", 1, T + 10)

    main, start, bstart = [], [], []
    def frag(i, p): return FRG + 20 * ((p // 5) & 1) + 4 * (p % 5)
    def ftag(i, p): return {("v", frag(i, p) + k): ("H", i, p) for k in range(4)}
    for i in range(8):
        start.append(len(main))
        for p in range(20):
            if p % 5 == 0: bstart.append(len(main))
            f = r4("v", frag(i, p))
            for t in range(3):
                a = ACC + 12 * (i & 1) + 4 * t
                main.append(I(f"{MF} {r4('v', a)}, {r4('a', 12 * p + 4 * t)}, {f}, " + ("0" if p == 0 else r4('v', a)), need=ftag(i, p)))
                if p == 19: main[-1].put = tagput(("v", a), ("G", i))
            if p < 5:
                main.append(I(f"{MF} {r4('v', S1)}, {r4('v', ONES)}, {f}, " + ("0" if p == 0 else r4('v', S1)), need=ftag(i, p)))
                main.append(I(f"{MF} {r4('v', S2)}, {f}, {f}, " + ("0" if p == 0 else r4('v', S2)), need=ftag(i, p)))
    start.append(len(main)); bstart.append(len(main))
    def reads(b):
        i, gq = b // 4, b % 4
        slot = (i // 2) % 3
        base = TA + 4 * (i & 1) + gq
        out = []
        for p in range(5 * gq, 5 * gq + 5):
            f = frag(i, p); off = (SLOT if slot == 1 else 0) + 2048 * (p % 5)
            out.append(I(f"ds_read_b64_tr_b16 v[{f}:{f+1}], v{base} offset:{off}", tag=f"b{b}", put={("v", f): ("H", i, p), ("v", f + 1): ("H", i, p)}))
            out.append(I(f"ds_read_b64_tr_b16 v[{f+2}:{f+3}], v{base} offset:{off + 256}", tag=f"b{b}", put={("v", f + 2): ("H", i, p), ("v", f + 3): ("H", i, p)}))
        if i in (2, 3): out.append(I(f"v_add_u32 v{base}, {2 * SLOT}, v{base}"))
        if i in (4, 5): out.append(I(f"v_subrev_u32 v{base}, {2 * SLOT}, v{base}"))
        return out
    def stats_out(i):
        return mk(f"""v_cndmask_b32 v{S1+1}, v{S2}, v{S2+1}, s[50:51]
            v_cndmask_b32 v{S1+1}, v{S1+1}, v{S2+2}, s[52:53]
            v_cndmask_b32 v{S1+1}, v{S1+1}, v{S2+3}, s[54:55]""") + mk(f"ds_write_b64 v{vSW}, v[{S1}:{S1+1}] offset:{512 * (i & 1)}", tag=f"sp{i}")
    def stats_in(i):
        c = CN + 4 * (i & 1); a = S1
        rd = mk(f"ds_read_b128 v[{a}:{a+3}], v{vSR} offset:{512 * (i & 1)}\nds_read_b128 v[{a+4}:{a+7}], v{vSR} offset:{512 * (i & 1) + 16}", tag=f"sr{i}")
        m = mk(f"""v_add_f32 v{a}, v{a}, v{a+2}
            v_add_f32 v{a+1}, v{a+1}, v{a+3}
            v_add_f32 v{a+4}, v{a+4}, v{a+6}
            v_add_f32 v{a+5}, v{a+5}, v{a+7}
            v_add_f32 v{a}, v{a}, v{a+4}
            v_add_f32 v{a+1}, v{a+1}, v{a+5}
            v_mul_f32 v{a}, {fx(1/640)}, v{a}
            v_mul_f32 v{a+1}, {fx(1/640)}, v{a+1}
            v_fma_f32 v{a+1}, -v{a}, v{a}, v{a+1}
            v_max_f32 v{a+1}, 0, v{a+1}
            v_cvt_pk_bf16_f32 v{a}, v{a}, v{a+1}
            v_and_b32 v{a+1}, 0xffff0000, v{a}
            v_add_f32 v{a+1}, {fx(1e-5)}, v{a+1}
            v_cvt_pk_bf16_f32 v{a+1}, v{a+1}, v{a+1}
            v_lshlrev_b32 v{a+1}, 16, v{a+1}
            v_sqrt_f32 v{a+1}, v{a+1}
            v_lshlrev_b32 v{c}, 16, v{a}
            v_cvt_pk_bf16_f32 v{a+1}, v{a+1}, v{a+1}
            v_lshlrev_b32 v{a+1}, 16, v{a+1}
            v_rcp_f32 v{a+2}, v{a+1}
            v_mul_f32 v{c+3}, v{a+1}, v{a+1}
            v_mul_f32 v{c+1}, {fx(C0)}, v{a+2}
            v_mul_f32 v{a+2}, v{a+2}, v{a+2}
            v_mul_f32 v{a+2}, {fx(0.044715)}, v{a+2}
            v_mul_f32 v{c+2}, v{c+1}, v{a+2}""")
        return rd, m
    def epilogue(i):
        c = CN + 4 * (i & 1)
        out = []
        for t in range(3):
            a = ACC + 12 * (i & 1) + 4 * t; s = CS + 4 * t; x = T + 2 * (t & 1)
            first = [I(f"v_fma_f32 v{a+k}, -v{c}, v{s+k}, v{a+k}", need={("v", a + k): ("G", i)}) for k in range(4)]
            out += first[:2] + mk(f"v_mul_f32 v{x}, v{a}, v{a}\nv_mul_f32 v{x+1}, v{a+1}, v{a+1}") + first[2:]
            out += mk(f"""v_fma_f32 v{x}, v{x}, v{c+2}, v{c+1}
                v_fma_f32 v{x+1}, v{x+1}, v{c+2}, v{c+1}
                v_mul_f32 v{x}, v{x}, v{a}
                v_mul_f32 v{x+1}, v{x+1}, v{a+1}
                v_exp_f32 v{x}, v{x}
                v_exp_f32 v{x+1}, v{x+1}
                v_mul_f32 v{a}, v{a}, v{a+2}
                v_mul_f32 v{a+1}, v{a+1}, v{a+3}
                v_fma_f32 v{x}, v{x}, v{c+3}, v{c+3}
                v_fma_f32 v{x+1}, v{x+1}, v{c+3}, v{c+3}
                v_rcp_f32 v{x}, v{x}
                v_rcp_f32 v{x+1}, v{x+1}
                v_mul_f32 v{a}, v{a}, v{x}
                v_mul_f32 v{a+1}, v{a+1}, v{x+1}
                v_cvt_pk_bf16_f32 v{OUT+t}, v{a}, v{a+1}""")
            if t == 1: hold = mk(f"v_permlane32_swap_b32 v{OUT+1}, v{OUT+3}")
            if t == 2: out[-8:-8] = hold
        out += mk(f"""s_add_u32 s3, s56, {i * 192 * 256}
            v_permlane32_swap_b32 v{OUT}, v{OUT+2}
            v_permlane16_swap_b32 v{OUT}, v{OUT+1}
            v_permlane16_swap_b32 v{OUT+2}, v{OUT+3}""")
        out += mk(f"buffer_store_dwordx4 v[{OUT}:{OUT+3}], v{vAST}, {SRD}, s3 offen sc1", tag=f"st{i}")
        return out

    g = Gaps(main)
    for b in range(31):
        n = bstart[b + 1] - bstart[b]
        g.spread(reads(b + 1), bstart[b], bstart[b] + (20 if n == 25 else 11))
        g.at(bstart[b + 1] - 1, f"@lgkm b{b+1}")
    BAR = o.get("bar", 38)
    res_dma, res_mov = [], []
    e(f"""s_lshl2_add_u32 s46, s70, s{sW}
        s_mul_i32 s46, s46, {SLOT}
        s_mul_i32 s48, s68, 5120
        s_add_u32 s46, s46, s48
        s_add_u32 s46, s46, {HT}
        s_mul_i32 s47, s{sW}, 5120
        s_add_u32 s47, s47, {RST}
        v_lshl_add_u32 v{T+6}, v{T+1}, 2, v{T+2}
        v_lshlrev_b32 v{T+6}, 6, v{T+6}
        v_lshl_add_u32 v{T+6}, v{T+3}, 3, v{T+6}
        v_lshrrev_b32 v{T+7}, 1, v{T+1}
        v_xor_b32 v{T+7}, s69, v{T+7}
        v_lshl_add_u32 v{T+6}, v{T+7}, 5, v{T+6}
        v_add_u32 v{T+6}, s47, v{T+6}
        v_mul_u32_u24 v{T+7}, 176, v{T}
        v_lshl_add_u32 v{T+7}, v{T+1}, 3, v{T+7}
        s_mul_i32 s48, s{sW}, 2816
        s_add_u32 s48, s48, {RES}
        v_add_u32 v{T+7}, s48, v{T+7}""")
    for k in range(5):
        if k % 4 == 0: res_dma += mk(f"s_add_u32 m0, s47, {1024 * k}\ns_add_u32 s39, s46, {1024 * k}")
        res_dma += mk(f"buffer_load_dwordx4 v{vL16}, {SRD}, s39 offen offset:{1024 * (k % 4)} sc1 lds", tag="res")
    nw2 = 0
    for i in range(8):
        s0 = start[i]
        g.early(stats_out(i), s0 + 27, 3)
        waits = [f"@lgkm sp{i}"]
        if i >= 2: waits.append(f"@vm st{i-2}")
        if i & 1 and i < 7: waits.append(f"@vm h{i // 2 + 1}")
        for k, w in enumerate(waits): g.at(s0 + BAR - len(waits) + k, w)
        g.at(s0 + BAR, "s_barrier")
        if i >= 2: g.block(s0 + BAR, f3_signal(i - 2))
        rd, m = stats_in(i)
        g.at(s0 + BAR + 1, rd[0]); g.at(s0 + BAR + 2, rd[1])
        g.at(s0 + BAR + 8, f"@lgkm sr{i}")
        if i > 0: g.spread(epilogue(i - 1), s0 + 3, s0 + o.get("epe", 46))
        g.spread(m, s0 + BAR + 8, s0 + 69)
        if i == 2: g.spread(dma_chunk(3), s0 + BAR + 3, s0 + 69)
        if i == 0: g.spread(res_dma, s0 + 5, s0 + 24)
        if i == 3:
            g.at(s0 + 1, "@vm res")
            for t in range(5):
                x = T + 4 + 4 * (t & 1)
                g.at(s0 + 4 + 12 * t, f"ds_read_b64_tr_b16 v[{x}:{x+1}], v{T+6} offset:{1024 * t}")
                g.at(s0 + 14 + 12 * t, f"ds_write_b64 v{T+7}, v[{x}:{x+1}] offset:{32 * t}")
        cnt = {0: 6, 1: 7, 3: 7, 4: 7, 5: 8}.get(i, 0)
        for k in range(cnt):
            g.at(s0 + o.get("w2s", 46) + (23 * k) // cnt, w2_load(nw2)); nw2 += 1
    assert nw2 == 35
    s7 = start[7]
    g.at(start[6] + 10, f3_issue(0)); g.block(start[6] + 50, f3_check(0))
    nl7 = o.get("nl7", 16)
    for n in range(nl7):
        p = n // 3
        dead = s7 + (5 * p + 2 if p < 5 else 25 + 3 * (p - 5) + 2)
        g.at(max(dead, s7 + 2 + (40 * n) // nl7), late_load(n))
    e("@vm h0\ns_barrier")
    if o.get("fst"): e(e.stamp(2))
    e(reads(0)); e("@lgkm b0")
    e(g.flat())
    if o.get("fst"): e(e.stamp(3))
    ep = epilogue(7)
    e("@vm st6\ns_barrier"); e(f3_signal(6))
    e(ep)
    A2, RD, RR, RU, O2 = 10, 50, 82, 86, 94
    vPW, vPR, vRR, vOS = T, T + 1, T + 2, T + 3
    nxt = nl7
    for _ in range(o.get("nlt", 8)):
        e(late_load(nxt)); nxt += 1
    e(f"""v_and_b32 v{T+4}, 15, v1
        v_lshrrev_b32 v{T+5}, 4, v1
        v_mul_u32_u24 v{vPW}, 336, v{T+4}
        v_lshl_add_u32 v{vPW}, v{T+5}, 4, v{vPW}
        s_mul_i32 s48, s{sW}, 5376
        s_add_u32 s48, s48, {PART}
        v_add_u32 v{vPW}, s48, v{vPW}
        v_min_u32 v{T+4}, 39, v1
        v_mul_u32_u24 v{T+5}, 6554, v{T+4}
        v_lshrrev_b32 v{T+5}, 16, v{T+5}
        v_mul_u32_u24 v{T+6}, 10, v{T+5}
        v_sub_u32 v{T+4}, v{T+4}, v{T+6}
        s_lshl_b32 s48, s{sW}, 2
        v_add_u32 v{T+5}, s48, v{T+5}
        v_mul_u32_u24 v{vPR}, 336, v{T+5}
        v_lshl_add_u32 v{vPR}, v{T+4}, 5, v{vPR}
        v_add_u32 v{vPR}, {PART}, v{vPR}
        v_mul_u32_u24 v{vRR}, 176, v{T+5}
        v_lshl_add_u32 v{vRR}, v{T+4}, 4, v{vRR}
        v_add_u32 v{vRR}, {RES}, v{vRR}
        v_mul_u32_u24 v{vOS}, 1280, v{T+5}
        v_lshl_add_u32 v{vOS}, v{T+4}, 4, v{vOS}
        v_cmp_gt_u32 vcc, 40, v1
        v_mov_b32 v{T+5}, 0x40000000
        s_mov_b32 s64, s30
        s_mov_b32 s65, s31
        s_mov_b32 s66, {2048 * 1280}
        s_mov_b32 s67, 0x20000
        v_cndmask_b32 v{vOS}, v{T+5}, v{vOS}, vcc
        s_lshl_b32 s46, s70, 3
        s_add_u32 s46, s46, s69
        s_mul_i32 s46, s46, {16 * 1280}
        s_mul_i32 s48, s68, 160
        s_add_u32 s46, s46, s48""")
    main, st2 = [], []
    for c in range(4):
        st2.append(len(main))
        for k in range(12):
            for t in range(5):
                a = A2 + 20 * (c & 1) + 4 * t
                need = dict(tagput(w2reg[5 * k + t], ("W2", 5 * k + t))); need.update(tagput(actreg[c, k], ("X", c, k)))
                main.append(I(f"{MF} {r4('v', a)}, {r4(*w2reg[5 * k + t])}, {r4(*actreg[c, k])}, " + ("0" if k == 0 else r4('v', a)), need=need))
    def part_write(c):
        return mk([f"ds_write_b128 v{vPW}, {r4('v', A2 + 20 * (c & 1) + 4 * t)} offset:{(c & 1) * 21504 + 64 * t}" for t in range(5)], tag=f"pw{c}")
    def res_read(c):
        rd = mk(f"ds_read_b128 {r4('v', RR)}, v{vRR} offset:{2816 * c}", tag=f"rr{c}")
        un = mk([f"v_lshlrev_b32 v{RU+2*k}, 16, v{RR+k}\nv_and_b32 v{RU+2*k+1}, 0xffff0000, v{RR+k}" for k in range(4)])
        return rd, un
    def part_read(c):
        return mk([f"ds_read_b128 {r4('v', RD + 8 * w + 4 * hf)}, v{vPR} offset:{(c & 1) * 21504 + 5376 * w + 16 * hf}" for w in range(4) for hf in range(2)], tag=f"pr{c}")
    def finish(c, packed):
        out = []
        for w in range(4):
            if packed: out += [f"v_pk_add_f32 v[{RU+2*k}:{RU+2*k+1}], v[{RU+2*k}:{RU+2*k+1}], v[{RD+8*w+2*k}:{RD+8*w+2*k+1}]" for k in range(4)]
            else: out += [f"v_add_f32 v{RU+k}, v{RU+k}, v{RD+8*w+k}" for k in range(8)]
        out += [f"v_cvt_pk_bf16_f32 v{O2+k}, v{RU+2*k}, v{RU+2*k+1}" for k in range(4)]
        out += [f"s_add_u32 s47, s46, {2 * c * 16 * 1280}", f"buffer_store_dwordx4 {r4('v', O2)}, v{vOS}, {SRD2}, s47 offen"]
        return mk(out)
    g = Gaps(main)
    def first_use(n):
        kind, a, b = late[n]
        return a if kind == "w" else 60 * a + 5 * b
    sig7 = o.get("sig7", 20)
    g.at(sig7 - 1, "@vm st7"); g.at(sig7, "s_barrier"); g.block(sig7, f3_signal(7))
    pos = 0
    e(f3_issue(1))
    for n in range(nxt, 37):
        g.at(pos, late_load(n)); pos += 1
    g.block(pos, f3_check(1)); pos += 1
    for n in range(37, 49):
        g.at(pos, late_load(n)); pos += 2
    g.at(pos, f3_issue(2)); pos = max(pos + 2, o.get("c2", 62))
    g.block(pos, f3_check(2)); pos += 1
    for k in range(12):
        g.at(pos, act_load(2, k)); pos += 2
    g.at(o.get("i3", 100), f3_issue(3)); pos = o.get("c3", 122)
    g.block(pos, f3_check(3) + (e.stamp(5) if o.get("fst") else [])); pos += 1
    for k in range(12):
        g.at(pos, act_load(3, k)); pos += 1
    for c in range(4):
        rd, un = res_read(c)
        b = st2[c] + (30 if c == 0 else 50)
        g.at(b, rd); g.spread(un, b + 5, b + 10)
        if c < 3:
            b = st2[c + 1]
            for t, w in enumerate(part_write(c)): g.at(b + 3 + 2 * t, w)
            g.at(b + 16, f"@lgkm pw{c}"); g.at(b + 17, "s_barrier")
            g.spread(part_read(c), b + 18, b + 24)
            g.at(b + 29, f"@lgkm pr{c}")
            g.spread(finish(c, False), b + 29, b + 49)
    if o.get("fst"): e(e.stamp(4))
    e(g.flat())
    if o.get("fst"): e(e.stamp(10))
    e(part_write(3)); e("s_waitcnt lgkmcnt(0)\ns_barrier")
    e(part_read(3)); e(finish(3, True))
    if o.get("fst"): e(e.stamp(11)); e("s_waitcnt vmcnt(0)"); e(e.stamp(12))
```

```python
import struct, math, sys
from asmlib import I, mk, finalize, Gaps

NAME = "sequential_preLN__ssm_conv_s4__geglu_ffn__prompt"
def fx(x): return hex(struct.unpack("<I", struct.pack("<f", x))[0])
LOG2E = math.log2(math.e)

EPOCH, F1, FW, F2, F3, DBG = 0, 0x1000, 0x9000, 0x11000, 0x19000, 0x30000
UT, XT, HT, W1P, W2P, ACT, WS_SIZE = 1 << 20, 4 << 20, 7 << 20, 10 << 20, 14 << 20, 16 << 20, 23 << 20
U0, X0, CH0, CHS = 0, 20480, 36864, 21504
PS, A5, A3, A9, A7 = 832, 0, 3328, 6656, 9984 + 64
KTS = 272
KN = 13376; W4 = KN + 1088; W4P = 2832; K2 = W4 + 2 * W4P; K3 = K2 + 768
LNX = CH0 + 4 * CHS; LNU = LNX + 10752; LNS = 1344
SLOT = 40960
STP = 3 * SLOT
RST = STP + 1024
RES = RST + 4 * 5120
PART = SLOT
LDS_BYTES = 160 * 1024
assert LNU + 10752 <= LDS_BYTES and RES + 4 * 2816 + 1024 <= LDS_BYTES

sW, sCLS, sIDX = 36, 37, 38
SRD = "s[40:43]"; TAG = "s[44:45]"; SRD2 = "s[64:67]"
SPIN = 20000

class K:
    def __init__(self, stop=None, stamps=False, opt=None):
        self.p = []; self.stop = stop; self.stamps = stamps; self.nlab = 0
        self.o = dict(opt or {}); self.in_ffn = False
    def __call__(self, x, **kw): self.p += mk(x, **kw)
    def lab(self, s):
        self.nlab += 1; return f"L_{s}_{self.nlab}"
    def stamp(self, k):
        if self.o.get("fst") and not self.in_ffn and k not in (0, 6, 7, 8): return []
        return mk(f"s_memrealtime s[{74 + 2 * k}:{75 + 2 * k}]") if self.stamps else []

    def signal(self, base_sreg_code, lanes, vt):
        L = self.lab("sig")
        out = mk(f"s_cmp_lg_u32 s{sW}, 0\ns_cbranch_scc1 {L}")
        out += mk(base_sreg_code + f"""
            v_mov_b32 v{vt+2}, s44
            v_mov_b32 v{vt+3}, s45
            s_mov_b64 exec, {lanes}
            buffer_store_dwordx2 v[{vt+2}:{vt+3}], v{vt}, {SRD}, 0 offen sc1
            s_mov_b64 exec, -1""", opt=True)
        return out + mk(f"{L}:")
    def signal_all(self, region, vt):
        return self.signal(f"""s_lshl_b32 s48, s2, 4
            s_add_u32 s48, s48, {region}
            v_lshlrev_b32 v{vt}, 12, v1
            v_add_u32 v{vt}, s48, v{vt}""", 0xff, vt)
    def poll_issue(self, va, vd):
        return mk(f"buffer_load_dwordx2 v[{vd}:{vd+1}], v{va}, {SRD}, 0 offen sc1")
    def poll_check(self, va, vd):
        A, B = self.lab("retry"), self.lab("seen")
        out = mk(f"v_cmp_ne_u64 vcc, {TAG}, v[{vd}:{vd+1}]\ns_cbranch_vccz {B}")
        out += mk(f"s_mov_b32 s49, 0") + mk(f"{A}:")
        out += mk(f"""s_sleep 2
            buffer_load_dwordx2 v[{vd}:{vd+1}], v{va}, {SRD}, 0 offen sc1
            s_add_u32 s49, s49, 1
            s_waitcnt vmcnt(0)
            v_cmp_ne_u64 vcc, {TAG}, v[{vd}:{vd+1}]
            s_cmp_ge_u32 s49, {SPIN}
            s_cbranch_scc1 {B}
            s_nop 1
            s_cbranch_vccnz {A}""", opt=True)
        return out + mk(f"{B}:")

    def prologue(self):
        e = self
        e(f"s_cmp_ge_u32 s2, 256\ns_cbranch_scc1 L_end")
        e(self.stamp(0))
        e(f"""s_load_dwordx16 s[4:19], s[0:1], 0
            s_load_dwordx16 s[20:35], s[0:1], 64
            s_getpc_b64 s[46:47]
            v_and_b32 v1, 63, v0
            v_lshrrev_b32 v2, 6, v0
            s_lshr_b32 s{sIDX}, s2, 3
            v_readfirstlane_b32 s{sW}, v2
            s_mul_i32 s48, s{sIDX}, 12
            v_min_u32 v3, 11, v0
            v_add_u32 v3, s48, v3
            v_lshlrev_b32 v3, 7, v3
            v_min_u32 v3, L_code_end-{NAME}_kernel-64, v3
            global_load_dword v4, v3, s[46:47]
            s_and_b32 s{sCLS}, s2, 7
            v_lshrrev_b32 v5, 5, v0
            v_and_b32 v6, 31, v0
            s_lshl_b32 s48, s2, 3
            v_add_u32 v7, s48, v5
            v_mul_u32_u24 v7, 1280, v7
            v_lshl_add_u32 v7, v6, 3, v7""")
        for i in range(5):
            e(f"global_load_dwordx2 v[{10+2*i}:{11+2*i}], v7, s[4:5] offset:{256*i}")
        e(f"""s_mov_b32 s40, s34
            s_mov_b32 s41, s35
            s_mov_b32 s42, {WS_SIZE}
            s_mov_b32 s43, 0x20000
            v_mov_b32 v8, {EPOCH}
            buffer_load_dword v9, v8, {SRD}, 0 offen sc1""")

    def conv_param_loads(self):
        e = self
        e(f"""s_mul_i32 s50, s{sCLS}, 80
            s_lshl2_add_u32 s50, s{sIDX}, s50
            s_add_u32 s50, s50, s{sW}
            s_mul_i32 s48, s50, 384
            v_lshl_add_u32 v34, v1, 2, s48
            v_lshl_add_u32 v35, v1, 1, s48
            s_lshl_b32 s48, s50, 1
            v_mov_b32 v36, s48
            global_load_ushort v32, v36, s[18:19]""")
        for a in range(6):
            e(f"global_load_dword v{20+a}, v34, s[{6+2*a}:{7+2*a}]")
        for a in range(6):
            e(f"global_load_ushort v{26+a}, v35, s[{6+2*a}:{7+2*a}] offset:256")
        e("global_load_ushort v33, v36, s[20:21]")

    def ln_consts(self):
        self(f"""v_mul_u32_u24 v40, {LNS}, v5
            v_lshl_add_u32 v40, v6, 3, v40
            v_add_u32 v40, {LNX}, v40
            v_bfe_u32 v41, v1, 2, 2
            v_mul_u32_u24 v41, {LNS}, v41
            v_lshrrev_b32 v43, 4, v1
            v_lshl_add_u32 v41, v43, 5, v41
            v_and_b32 v43, 3, v1
            v_lshl_add_u32 v41, v43, 3, v41
            s_lshl_b32 s48, s{sW}, 7
            s_add_u32 s48, s48, {LNX}
            v_add_u32 v41, s48, v41
            s_lshr_b32 s51, s2, 2
            s_and_b32 s48, s51, 7
            s_lshl_b32 s49, s2, 1
            s_and_b32 s49, s49, 4
            s_xor_b32 s48, s48, s49
            v_xor_b32 v43, s48, v43
            v_lshrrev_b32 v42, 2, v1
            v_lshlrev_b32 v42, 8, v42
            v_lshl_add_u32 v8, v43, 4, v42
            s_lshr_b32 s48, s{sW}, 1
            s_lshl_b32 s48, s48, 30
            v_add_u32 v37, s48, v8
            s_mul_i32 s51, s51, 40960
            s_and_b32 s48, s2, 1
            s_lshl_b32 s48, s48, 7
            s_add_u32 s51, s51, s48
            s_lshl_b32 s48, s{sW}, 12
            s_add_u32 s51, s51, s48
            s_add_u32 s52, s51, {XT}
            s_add_u32 s53, s51, {UT}
            s_mov_b32 s54, 0x3f803f80""")

    def ln_items(self, lds_off, sbase, r0, tag):
        rd, st = [], []
        for k in range(3):
            rd += mk(f"""ds_read_b64_tr_b16 v[{r0+4*k}:{r0+4*k+1}], v41 offset:{lds_off + 512*k}
                ds_read_b64_tr_b16 v[{r0+4*k+2}:{r0+4*k+3}], v41 offset:{lds_off + 512*k + 4*LNS}""")
        for k in range(3):
            st += mk(f"buffer_store_dwordx4 v[{r0+4*k}:{r0+4*k+3}], v{8 if k < 2 else 37}, {SRD}, s{sbase} offen sc1", tag=tag)
            if k < 2: st += mk(f"s_add_u32 s{sbase}, s{sbase}, 16384")
        return rd, st

    def ln1(self):
        e = self
        e("v_mov_b32 v44, 0\nv_mov_b32 v45, 0")
        for i in range(10):
            e(f"v_dot2c_f32_bf16 v44, s54, v{10+i}\nv_dot2c_f32_bf16 v45, v{10+i}, v{10+i}")
        e(self.stamp(1))
        un = [f"v_lshlrev_b32 v{80+2*i}, 16, v{10+i}" for i in range(10)] + [f"v_and_b32 v{81+2*i}, 0xffff0000, v{10+i}" for i in range(10)]
        e(un.pop()); e(un.pop()); e(un.pop())
        for m in ("quad_perm:[1,0,3,2]", "quad_perm:[2,3,0,1]", "row_half_mirror", "row_mirror"):
            e(f"v_add_f32_dpp v44, v44, v44 {m} row_mask:0xf bank_mask:0xf\nv_add_f32_dpp v45, v45, v45 {m} row_mask:0xf bank_mask:0xf")
            e(un.pop())
        e("v_mov_b32 v46, v44\nv_mov_b32 v47, v45"); e(un.pop()); e(un.pop())
        e("v_permlane16_swap_b32 v46, v44\nv_permlane16_swap_b32 v47, v45")
        e(f"""v_add_f32 v44, v44, v46
            v_add_f32 v45, v45, v47
            v_mul_f32 v44, {fx(1/640)}, v44
            v_mul_f32 v45, {fx(1/640)}, v45
            v_fma_f32 v45, -v44, v44, v45
            v_max_f32 v45, 0, v45
            v_cvt_pk_bf16_f32 v44, v44, v45
            v_and_b32 v45, 0xffff0000, v44
            v_add_f32 v45, {fx(1e-5)}, v45
            v_cvt_pk_bf16_f32 v45, v45, v45
            v_lshlrev_b32 v45, 16, v45
            v_sqrt_f32 v45, v45
            v_lshlrev_b32 v44, 16, v44""")
        for _ in range(4): e(un.pop())
        e("v_cvt_pk_bf16_f32 v45, v45, v45\nv_lshlrev_b32 v45, 16, v45\nv_rcp_f32 v46, v45")
        e(un)
        e("v_mul_f32_e64 v48, -v44, v46")
        for i in range(10):
            e(f"v_pk_fma_f32 v[{80+2*i}:{81+2*i}], v[{80+2*i}:{81+2*i}], v[46:47], v[48:49] op_sel_hi:[1,0,0]")
        for i in range(10):
            e(f"v_cvt_pk_bf16_f32 v{50+i}, v{80+2*i}, v{81+2*i}")
        for i in range(5):
            e(f"ds_write_b64 v40, v[{50+2*i}:{51+2*i}] offset:{10752 + 256*i}")
        e("s_waitcnt lgkmcnt(0)\ns_barrier")
        rd, st = self.ln_items(10752, 53, 100, "ln")
        e(rd)
        for i in range(5):
            e(f"ds_write_b64 v40, v[{10+2*i}:{11+2*i}] offset:{256*i}")
        e(st)
        e(self.stamp(2))
        e("""v_readfirstlane_b32 s44, v9
            v_mov_b32 v9, v41
            s_add_u32 s44, s44, 1
            s_xor_b32 s45, s44, 0x5bd1e995""")

    def x_stores(self):
        rd, st = self.ln_items(0, 52, 100, "w1p")
        rd = mk([i.text.replace("v41", "v9") for i in rd])
        if self.o.get("nox"): return rd
        return rd + st

    def ln_publish(self, with_x=True):
        return mk("@vm ln\ns_waitcnt lgkmcnt(0)\ns_barrier") + self.signal_all(F1, 4) + self.stamp(3) + (self.x_stores() if with_x else [])

    vUB, vAB, vBB, vBW, vR2, vR3, vK2A, vK3A, vHST, vDMA, vPOLL = 200, 208, 209, 210, 211, 213, 215, 216, 217, 218, 219
    vBAND, vID = 220, 236
    vKTW, vKTX, vKTY, vKNW, vK2W, vK3W, vW4S, vW4D, vW4S3, vW4D3, vL16, vZB = 242, 243, 244, 245, 246, 247, 248, 249, 250, 251, 252, 253

    def conv_consts_a(self):
        e = self
        col, h, q, r, c, h2, t = 180, 181, 182, 183, 184, 185, 186
        e(f"""s_mul_i32 s55, s{sW}, {CHS}
            s_add_u32 s55, s55, {CH0}
            v_and_b32 v{col}, 15, v1
            v_lshrrev_b32 v{h}, 4, v1
            v_bfe_u32 v{q}, v1, 2, 2
            v_and_b32 v{r}, 3, v1
            v_and_b32 v{c}, 31, v1
            v_lshrrev_b32 v{h2}, 5, v1
            v_lshlrev_b32 v{e.vL16}, 4, v1
            v_mov_b32 v190, 0
            v_mov_b32 v191, 0
            v_mov_b32 v192, 0
            v_mov_b32 v193, 0
            v_lshlrev_b32 v{t}, 4, v0
            ds_write_b128 v{t}, v[190:193] offset:{U0}
            v_add_u32 v{t}, s55, v{e.vL16}
            ds_write_b128 v{t}, v[190:193] offset:{K2}
            ds_write_b128 v{t}, v[190:193] offset:{K2 + 128}
            v_lshl_add_u32 v{e.vKTW}, v1, 2, s55
            v_lshl_add_u32 v{t}, v{h2}, 4, s55
            s_mov_b32 s48, {KTS}
            v_mad_u32_u24 v{e.vKTY}, v{c}, s48, v{t}
            v_min_u32 v{t+1}, 23, v{c}
            v_cmp_lt_u32 vcc, 11, v{t+1}
            v_subrev_u32 v{t+2}, 2, v{t+1}
            v_mov_b32 v{t+3}, 0x3f80
            v_cndmask_b32 v{t+1}, v{t+1}, v{t+2}, vcc
            v_cmp_lt_u32 vcc, 15, v{c}
            v_subrev_u32 v{t+2}, 1, v{t+1}
            ds_write_b32 v{e.vKTW}, v{t+3}
            v_cndmask_b32 v{t+1}, v{t+1}, v{t+2}, vcc
            v_mad_u32_u24 v{e.vKTX}, v{t+1}, s48, v{t}
            v_mul_u32_u24 v{t}, 40960, v{h}
            v_lshl_add_u32 v{t}, v{col}, 4, v{t}
            s_lshr_b32 s48, s50, 2
            s_lshl_b32 s48, s48, 8
            s_mul_i32 s49, s{sW}, {16 * 40960}
            s_add_u32 s48, s48, s49
            v_add_u32 v{e.vDMA}, s48, v{t}
            s_lshl_b32 s48, s{sCLS}, 12
            s_add_u32 s48, s48, {F1}
            v_lshl_add_u32 v{e.vPOLL}, v0, 4, s48""")

    def conv_consts_b(self):
        e = self
        col, h, q, r, c, h2, t = 180, 181, 182, 183, 184, 185, 186
        o = []
        a = lambda x: o.extend(mk(x))
        a(f"""v_lshl_add_u32 v{t}, v{c}, 1, v{h2}
            v_lshl_add_u32 v{e.vKNW}, v{t}, 3, s55
            v_lshlrev_b32 v{t}, 7, v{h2}
            v_lshl_add_u32 v{t+1}, v{c}, 2, v{t}
            v_sub_u32 v{e.vK2W}, s55, v{t+1}
            v_lshl_add_u32 v{t+1}, v{c}, 1, v{t}
            v_sub_u32 v{e.vK3W}, s55, v{t+1}
            v_lshl_add_u32 v{e.vW4S}, v1, 3, s55
            v_and_b32 v{t}, 1, v1
            v_mul_u32_u24 v{t}, {W4P}, v{t}
            v_lshrrev_b32 v{t+1}, 1, v1
            v_lshl_add_u32 v{t}, v{t+1}, 5, v{t}
            v_cmp_lt_u32 vcc, 7, v1
            v_add_u32 v{e.vW4D}, s55, v{t}
            v_add_u32 v{t}, 2048, v{e.vW4D}
            v_cndmask_b32 v{e.vW4D3}, v{e.vW4D}, v{t}, vcc
            v_mov_b32 v{e.vW4S3}, s55""")
        for ln, off in ((8, 1032), (9, 1040), (32, 1048), (33, 1056)):
            a(f"s_add_u32 s68, s55, {off}\nv_writelane_b32 v{e.vW4S3}, s68, {ln}")
        a(f"""v_mul_u32_u24 v{t}, 3328, v{q}
            v_cmp_eq_u32 vcc, 3, v{q}
            v_add_u32 v{t+1}, 64, v{t}
            v_mul_u32_u24 v{t+2}, {PS}, v{r}
            v_cndmask_b32 v{t}, v{t}, v{t+1}, vcc
            v_add3_u32 v{e.vZB}, v{t}, v{t+2}, s55""")
        for ln, off in ((16, KN), (17, KN + 1040), (18, KN + 1056)):
            a(f"s_add_u32 s68, s55, {off}\nv_writelane_b32 v{e.vZB}, s68, {ln}")
        def ubase(hh, const):
            return f"""v_lshrrev_b32 v{t}, 1, v{hh}
                v_lshl_add_u32 v{t}, v{t}, 2, s{sW}
                v_and_b32 v{t+1}, 1, v{hh}
                v_lshlrev_b32 v{t+1}, 7, v{t+1}
                v_add_u32 v{t+1}, {const}, v{t+1}"""
        def uaddr(dst, ap):
            return f"""v_bitop3_b32 v{t+3}, v{ap}, 7, v{t} bitop3:0x6a
                v_lshl_add_u32 v{dst}, v{ap}, 8, v{t+1}
                v_lshl_add_u32 v{dst}, v{t+3}, 4, v{dst}"""
        a(ubase(h, U0 + 2048)); a(uaddr(e.vUB, col))
        for j in range(1, 8):
            a(f"v_subrev_u32 v{t+2}, {j}, v{col}"); a(uaddr(e.vUB + j, t + 2))
        a(f"""v_lshl_add_u32 v{t+2}, v{col}, 1, v{h}
            v_subrev_u32 v{t+2}, 1, v{t+2}
            v_and_b32 v{t+3}, 3, v{t+2}
            v_ashrrev_i32 v{t+2}, 2, v{t+2}""")
        a(ubase(t + 3, U0 + 4096)); a(uaddr(e.vBB, t + 2))
        a(f"""v_sub_u32 v{t}, v{q}, v{h}
            v_lshl_add_u32 v{t}, v{t}, 2, v{r}
            v_lshl_add_u32 v{e.vAB}, v{t}, 3, s55
            v_add_u32 v{t}, 3, v{h}
            v_and_b32 v{t+1}, 3, v{t}
            v_mul_u32_u24 v{t+1}, {PS}, v{t+1}
            v_lshrrev_b32 v{t}, 2, v{t}
            v_add3_u32 v{t}, v{t}, v{col}, 1
            v_lshl_add_u32 v{t}, v{t}, 3, v{t+1}
            v_add_u32 v{e.vBW}, s55, v{t}
            v_sub_u32 v{t}, v{h}, v{col}
            v_lshl_add_u32 v{e.vK2A}, v{t}, 4, s55
            v_add_u32 v{t}, v{t}, v{h}
            v_lshl_add_u32 v{e.vK3A}, v{t}, 3, s55
            s_mov_b32 s68, {PS}""")
        for dst, kmul, hsh, odd, even in ((e.vR2, 0, 4, A3, A5), (e.vR3, 1, 5, A7, A9)):
            a(f"""v_and_b32 v{t+2}, 1, v{q}
                v_mul_u32_u24 v{t+2}, {odd - even}, v{t+2}
                v_lshl_add_u32 v{t+2}, v{h}, {hsh}, v{t+2}
                s_add_u32 s69, s55, {even}
                v_add_u32 v{t+2}, s69, v{t+2}
                v_lshlrev_b32 v{t}, {kmul}, v{q}
                v_lshl_add_u32 v{t}, v{r}, 1, v{t}""")
            for mt in range(2):
                if mt: a(f"v_add_u32 v{t}, 1, v{t}")
                a(f"""v_and_b32 v{t+1}, 3, v{t}
                    v_mad_u32_u24 v{t+1}, v{t+1}, s68, v{t+2}
                    v_lshrrev_b32 v{t+3}, 2, v{t}
                    v_lshl_add_u32 v{dst+mt}, v{t+3}, 3, v{t+1}""")
        a(f"v_lshlrev_b32 v{t+3}, 3, v{h}\ns_mov_b32 s68, 0x3f80\ns_mov_b32 s69, 0x10001")
        for b, w in enumerate((2, 1, 4, 3)):
            a(f"""v_mov_b32 v{t}, {((1 << (2 * w + 1)) - 1) << (4 - w)}
                v_lshlrev_b32 v{t}, v{col}, v{t}
                v_bfe_u32 v{t}, v{t}, v{t+3}, 8
                v_lshl_or_b32 v{t}, v{t}, 15, v{t}""")
            for m in range(4):
                if m: a(f"v_lshrrev_b32 v{t}, 2, v{t}")
                a(f"v_and_b32 v{t+1}, s69, v{t}\nv_mul_u32_u24 v{e.vBAND+4*b+m}, s68, v{t+1}")
        a(f"""v_and_b32 v{t}, 1, v{r}
            v_lshlrev_b32 v{t}, 4, v{t}
            v_lshlrev_b32 v{t}, v{t}, s68
            v_cmp_eq_u32 vcc, v{h}, v{q}
            v_mov_b32 v{e.vID}, 0
            v_mov_b32 v{e.vID+1}, 0
            v_cndmask_b32 v{t}, 0, v{t}, vcc
            v_cmp_gt_u32 vcc, 2, v{r}
            v_mov_b32 v{e.vID+4}, 0
            v_mov_b32 v{e.vID+5}, 0
            v_cndmask_b32 v{e.vID+2}, 0, v{t}, vcc
            v_sub_u32 v{e.vID+3}, v{t}, v{e.vID+2}
            v_mul_u32_u24 v{t}, 40960, v{col}
            s_lshr_b32 s68, s50, 2
            s_and_b32 s68, s68, 2
            v_xor_b32 v{t+1}, s68, v{h}
            v_lshl_add_u32 v{t}, v{t+1}, 4, v{t}
            s_lshl_b32 s68, s50, 6
            v_add_u32 v{e.vHST}, s68, v{t}""")
        return o

    @staticmethod
    def cmul(d, z, w, t):
        return [f"v_pk_mul_f32 v[{t}:{t+1}], v[{z}:{z+1}], v[{w}:{w+1}] op_sel:[1,1] op_sel_hi:[1,0] neg_lo:[1,0]",
                f"v_pk_fma_f32 v[{d}:{d+1}], v[{z}:{z+1}], v[{w}:{w+1}], v[{t}:{t+1}] op_sel_hi:[0,1,1]"]

    def kgen_setup(self, j):
        out = []
        for a in range(6):
            src = 20 + a if j < 2 else 26 + a
            out.append(f"v_and_b32 v{146+a}, 0xffff0000, v{src}" if j == 1 else f"v_lshlrev_b32 v{146+a}, 16, v{src}")
        out += f"""v_mul_f32 v146, s56, v146
            v_mul_f32 v147, s57, v147
            v_mul_f32 v148, s58, v148
            v_mul_f32 v149, s58, v149
            v_mul_f32 v152, 0x41000000, v146
            v_mul_f32 v153, 0xc1000000, v147
            v_mul_f32 v154, 0x43800000, v146
            v_mul_f32 v155, 0x43800000, v147
            v_fract_f32 v147, v147
            v_fract_f32 v153, v153
            v_fract_f32 v155, v155
            v_exp_f32 v146, v146
            v_mul_f32 v44, v150, v148
            v_cos_f32 v38, v147
            v_mul_f32 v45, v150, v149
            v_sin_f32 v39, v147
            v_fma_f32 v44, -v151, v149, v44
            v_exp_f32 v152, v152
            v_fmac_f32 v45, v151, v148
            v_cos_f32 v40, v153
            v_mul_f32 v38, v146, v38
            v_sin_f32 v41, v153
            v_mul_f32 v39, v146, v39
            v_exp_f32 v154, v154
            v_mul_f32 v40, v152, v40
            v_cos_f32 v42, v155
            v_mul_f32 v41, v152, v41
            v_sin_f32 v43, v155
            v_mul_f32 v42, v154, v42
            v_mul_f32 v43, v154, v43""".split("\n")
        return mk(out)

    def kgen_tables(self):
        e = self
        W1, W8, W256, W16 = 38, 40, 42, 62
        TB = CH0
        xr = {0: 44, 2: 46, 4: 48, 6: 50}
        xrow = {x: 32 + k for k, x in enumerate([0, 1, 2, 3, 4, 5, 6, 7, 256, 258, 260, 262, 264, 516, 520, 1032, 1288, 772, 776, 1544, 1800])}
        xs = [(0, None, None, 44)]
        for x in range(1, 8):
            xs.append((x, xr.get(x - 1, 52), W1, xr.get(x, 52)))
        xs += [(256, 44, W256, 44), (258, 46, W256, 46), (260, 48, W256, 48), (262, 50, W256, 50), (264, 52, W256, 52),
               (516, 48, W256, 48), (520, 52, W256, 52), (772, 48, W256, 48), (776, 52, W256, 52),
               (1032, 52, W256, 52), (1288, 52, W256, 52), (1544, 52, W256, 52), (1800, 52, W256, 52)]
        pairs = []
        for k in range(21):
            c = k + 1
            x, xsrc, xw, xd = xs[k]
            a, b = [], []
            if c > 1:
                ysrc = W8 if c == 2 else (W16 if c == 3 else 54)
                yd = W16 if c == 2 else 54
                a = e.cmul(yd, ysrc, W8, 58)
            else:
                yd = W8
            if xsrc is not None:
                b = e.cmul(xd, xsrc, xw, 60)
            seq = [s for ab in zip(a, b) for s in ab] if a and b else a + b
            o = 156 + 2 * (k & 1)
            seq += [f"v_cvt_pk_bf16_f32 v{o}, v{yd}, v{yd+1}", f"v_cvt_pk_bf16_f32 v{o+1}, v{xd}, v{xd+1}"]
            if x == 7:
                seq += e.cmul(52, 52, W1, 60)
            pairs.append((mk(seq), mk(f"ds_write_addtid_b32 v{o} offset:{TB + KTS*c}\nds_write_addtid_b32 v{o+1} offset:{TB + KTS*xrow[x]}")))
        for c in range(22, 32, 2):
            a, b = e.cmul(56, 54, W8, 58), e.cmul(54, 54, W16, 60)
            o = 156 + (c & 2)
            pairs.append((mk([a[0], b[0], a[1], b[1], f"v_cvt_pk_bf16_f32 v{o}, v56, v57", f"v_cvt_pk_bf16_f32 v{o+1}, v54, v55"]),
                          mk(f"ds_write_addtid_b32 v{o} offset:{TB + KTS*c}\nds_write_addtid_b32 v{o+1} offset:{TB + KTS*(c+1)}")))
        return [pairs[k][0] + pairs[k + 1][0] + pairs[k][1] + pairs[k + 1][1] for k in range(0, 26, 2)]

    def kgen(self):
        e = self
        e(f"""v_lshlrev_b32 v32, 16, v32
            v_mul_f32 v32, {fx(LOG2E)}, v32
            v_exp_f32 v32, v32
            v_lshlrev_b32 v33, 16, v33
            v_cvt_pk_bf16_f32 v32, v32, v32
            v_lshlrev_b32 v32, 16, v32
            v_mul_f32 v34, {fx(LOG2E)}, v32
            v_mul_f32 v35, 0.15915494, v32
            v_readfirstlane_b32 s58, v32
            v_readfirstlane_b32 s56, v34
            v_readfirstlane_b32 s57, v35""")
        e(f"s_sub_u32 s70, s55, {CH0}\ns_mov_b32 m0, s70")
        e(e.kgen_setup(0))
        hooks = {e.o.get("pub", 8): e.ln_publish,
                 e.o.get("px", 36): e.w1_publish,
                 e.o.get("p1i", 30): lambda: e.poll_issue(e.vPOLL, 2),
                 e.o.get("p1c", 44): e.gather}
        n = 0
        for j in range(3):
            for pr in e.kgen_tables():
                if n in hooks:
                    e(hooks[n]()); e("s_mov_b32 m0, s70")
                e(pr); n += 2
            for ks in range(8):
                e(f"ds_read_b128 v[{64+8*ks}:{67+8*ks}], v{e.vKTX} offset:{32*ks + 32*KTS}")
                e(f"ds_read_b128 v[{68+8*ks}:{71+8*ks}], v{e.vKTY} offset:{32*ks}")
            mf = [I(f"v_mfma_f32_32x32x16_bf16 v[128:143], v[{64+8*ks}:{67+8*ks}], v[{68+8*ks}:{71+8*ks}], " + ("0" if j == 0 and ks == 0 else "v[128:143]")) for ks in range(8)]
            if j < 2:
                if j == 0: e(e.stamp(9))
                s = e.kgen_setup(j + 1)
                e(s[:6])
                g = Gaps(mf, 6); g.spread(s[6:], 0, 7); e(g.flat())
            else:
                e(f"ds_write_b128 v{e.vZB}, v[190:193]")
                e(e.stamp(11))
                g = Gaps(mf, 6); g.spread(e.late[:56], 0, 8); e.late = e.late[56:]; e(g.flat())
        R = 128
        e(f"""v_cmp_eq_u32 vcc, 0, v1
            s_mov_b32 s48, 0xffff
            v_cndmask_b32 v33, 0, v33, vcc
            v_add_f32 v{R}, v{R}, v33
            v_cvt_pk_bf16_f32 v20, v{R}, v{R+1}
            v_cvt_pk_bf16_f32 v21, v{R+2}, v{R+3}
            v_cvt_pk_bf16_f32 v22, v{R+4}, v{R+4}
            v_cvt_pk_bf16_f32 v23, v{R+5}, v{R+6}
            ds_write_b64 v{e.vKNW}, v[20:21] offset:{KN + 16}
            ds_write_b64 v{e.vKNW}, v[22:23] offset:{KN + 16 + 512}
            v_cvt_pk_bf16_f32 v24, v{R+6}, v{R+6}
            v_cvt_pk_bf16_f32 v25, v{R+6}, 0
            v_cvt_pk_bf16_f32 v26, 0, v{R+9}
            v_cvt_pk_bf16_f32 v27, v{R+9}, 0
            s_mov_b32 exec_lo, 0
            s_mov_b32 exec_hi, 0x80000000
            ds_write_b64 v{e.vKNW}, v[24:25] offset:{KN + 16 + 1024 - 504}
            ds_write_b32 v{e.vKNW}, v26 offset:{KN + 16 + 1044 - 504}
            ds_write_b32 v{e.vKNW}, v27 offset:{KN + 16 + 1048 - 504}
            s_mov_b64 exec, -1""")
        for rnd in range(3):
            a, off = (e.vW4S, KN + 8 + 512 * rnd) if rnd < 2 else (e.vW4S3, KN)
            e(f"ds_read_b64 v[{40+4*rnd}:{41+4*rnd}], v{a} offset:{off}\nds_read_b64 v[{42+4*rnd}:{43+4*rnd}], v{a} offset:{off + 8}")
        e(f"""v_cvt_pk_bf16_f32 v28, v{R+9}, v{R+8}
            v_cvt_pk_bf16_f32 v29, v{R+10}, v{R+11}
            ds_write_b32 v{e.vK2W}, v28 offset:{K2 + 508}
            ds_write_b16 v{e.vK3W}, v29 offset:{K3 + 254}
            ds_write_b16_d16_hi v{e.vK3W}, v29 offset:{K3 + 190}""")
        for rnd in range(3):
            p0, p1, o0, o1 = (40 + 4 * rnd + i for i in range(4))
            d = 64 + 8 * rnd
            a, off = (e.vW4D, W4 + 128 + 1024 * rnd) if rnd < 2 else (e.vW4D3, W4)
            e(f"""v_bfi_b32 v{d}, s48, v{o0}, v{p1}
                v_bfi_b32 v{d+1}, s48, v{p1}, v{p0}
                v_alignbit_b32 v{d+2}, v{o0}, v{o0}, 16
                v_alignbit_b32 v{d+3}, v{p1}, v{p1}, 16
                v_bfi_b32 v{d+4}, s48, v{o1}, v{o0}
                v_mov_b32 v{d+5}, v{d}
                v_alignbit_b32 v{d+6}, v{o1}, v{o1}, 16
                v_mov_b32 v{d+7}, v{d+2}""")
            if rnd == 2: e("s_mov_b32 exec_hi, 0xffff")
            e(f"ds_write_b128 v{a}, v[{d}:{d+3}] offset:{off}\nds_write_b128 v{a}, v[{d+4}:{d+7}] offset:{off + 16}")
        e("s_mov_b32 exec_hi, -1")
        e(self.stamp(5))

    def dma4(self, reg, lds, tag):
        out = []
        for k in range(4):
            out += mk(f"s_add_u32 m0, s59, {lds + 1024 * k}\ns_mov_b32 s48, {reg + 4 * 40960 * k}")
            out += mk(f"buffer_load_dwordx4 v{self.vDMA}, {SRD}, s48 offen sc1 lds", tag=tag)
        return out
    def gather(self):
        e = self
        return e.stamp(10) + e.poll_check(e.vPOLL, 2) + e.stamp(4) + mk(f"s_lshl_b32 s59, s{sW}, 12") + e.dma4(UT, U0 + 4096, "u")

    def w1_loads(self):
        out = []
        for gq in range(4):
            out.append(mk(f"""s_add_u32 s61, s{sW}, {gq}
                s_and_b32 s61, s61, 3
                s_mul_i32 s61, s61, 15360
                s_add_u32 s61, s61, s60"""))
            for k in range(15):
                a = 4 * (15 * gq + k)
                ins = mk(f"buffer_load_dwordx4 a[{a}:{a+3}], v{self.vL16}, {SRD}, s61 offen offset:{1024 * (k & 3)} sc1", tag="w1")
                if (k & 3) == 3: ins += mk("s_add_u32 s61, s61, 4096")
                if k == 0: ins = out.pop() + ins
                out.append(ins)
        return out

    def ffn_ids(self):
        return mk(f"""s_and_b32 s62, s{sCLS}, 1
            s_lshl_b32 s62, s62, 3
            s_lshr_b32 s48, s{sIDX}, 2
            s_add_u32 s62, s62, s48
            s_lshr_b32 s63, s{sCLS}, 1
            s_and_b32 s48, s{sIDX}, 3
            s_lshl2_add_u32 s63, s63, s48
            s_lshl2_add_u32 s60, s63, s{sW}
            s_mul_i32 s60, s60, 61440
            s_add_u32 s60, s60, {W1P}""")

    def fw_poll_addr(self, va):
        return mk(f"""s_lshl_b32 s48, s{sCLS}, 12
            s_add_u32 s48, s48, {FW + 160 * 16}
            v_lshl_add_u32 v{va}, v1, 4, s48
            v_add_u32 v{va+1}, 512, v{va}""")

    def conv(self):
        e = self
        ACC = lambda t, mt: 144 + 8 * t + 4 * mt
        BR, AR, XB, XD, XC, K2F, K3F = 2, 50, 100, 108, 124, 68, 128
        started = set()
        main, reads, post = [], [], []
        def mf(acc, A, B, need):
            c = f"v[{acc}:{acc+3}]" if acc in started else "0"
            started.add(acc)
            main.append(I(f"v_mfma_f32_16x16x32_bf16 v[{acc}:{acc+3}], v[{A}:{A+3}], v[{B}:{B+3}], {c}", need=need))
        def rd(txt, reg, n, tag, grp):
            return I(txt, tag=grp, put={("v", reg + i): tag for i in range(n)})
        def nd(*items): return {("v", reg + i): tag for reg, n, tag in items for i in range(n)}
        step_start, step_reads = [], []
        boxes = [(T, b) for T in range(6) for b in range(4) if not (b >= 2 and T >= 4)]
        arr = (A5, A3, A9, A7)
        nbox = 0
        box_at = []
        for j in range(16):
            grp = f"n{j}"
            step_start.append(len(main)); R = []
            b0 = BR + 16 * (j % 3)
            steps = [(0, 4 * j, (0, 1))]
            if j == 0: steps += [(1, 64, (0, 1)), (2, 76, (0, 1))]
            if j == 1: steps += [(1, 68, (0,)), (2, 80, (0,))]
            for i in range(4):
                R.append(rd(f"ds_read_b128 v[{b0+4*i}:{b0+4*i+3}], v{e.vUB + (j & 7)} offset:{4096 * i + 2048 - 2048 * (j >> 3)}", b0 + 4 * i, 4, ("B", j, i), grp))
            for iF, o0, mts in steps:
                a0 = AR + 6 * (j % 3) if iF == 0 else AR + 12 + 6 * iF + 12 * j
                base = W4 + 128 + 32 * o0
                parts = [(0, base + W4P), (2, base), (4, base + W4P - 32)]
                for k, off in parts:
                    if k == 0 and mts == (0,): continue
                    R.insert(0 if iF == 0 else len(R), rd(f"ds_read_b64 v[{a0+k}:{a0+k+1}], v{e.vAB} offset:{off}", a0 + k, 2, ("A", j, iF, k), grp))
                for t in range(iF, 4):
                    for mt in mts:
                        A = a0 + 2 - 2 * mt
                        mf(ACC(t, mt), A, b0 + 4 * (t - iF), nd((A, 2, ("A", j, iF, 2 - 2 * mt)), (A + 2, 2, ("A", j, iF, 4 - 2 * mt)), (b0 + 4 * (t - iF), 4, ("B", j, t - iF))))
            nb = {0: 0, 1: 2}.get(j, 2) if nbox < 20 else 0
            if j == 0: nb = 4
            for _ in range(min(nb, 20 - nbox)):
                T, b = boxes[nbox]
                xb = XB + 4 * (T & 1); xd = XD + 4 * (nbox & 3)
                if b == 0:
                    R.append(rd(f"ds_read_b128 v[{xb}:{xb+3}], v{e.vBB} offset:{2048 * T}", xb, 4, ("XB", T), grp))
                started.discard(xd)
                mf(xd, e.vBAND + 4 * b, xb, nd((xb, 4, ("XB", T))))
                xc = XC + 2 * (nbox & 1)
                main[-1].put = nd((xd, 4, ("XD", nbox)))
                box_at.append((len(main) - 1, [
                    I(f"v_cvt_pk_bf16_f32 v{xc}, v{xd}, v{xd+1}", need=nd((xd, 2, ("XD", nbox))), put=nd((xc, 1, ("XC", nbox)))),
                    I(f"v_cvt_pk_bf16_f32 v{xc+1}, v{xd+2}, v{xd+3}", need=nd((xd + 2, 2, ("XD", nbox))), put=nd((xc + 1, 1, ("XC", nbox)))),
                    I(f"ds_write_b64 v{e.vBW}, v[{xc}:{xc+1}] offset:{arr[b] + 128 * T}", need=nd((xc, 2, ("XC", nbox))))]))
                nbox += 1
            step_reads.append(R)
        far = [("2", ks) for ks in range(12)] + [("3", ks) for ks in range(4)]
        kreads = []
        for phi in range(1, 9):
            kreads.append(rd(f"ds_read_b128 v[{K2F+4*(phi-1)}:{K2F+4*(phi-1)+3}], v{e.vK2A} offset:{K2 + 752 - 64 * phi}", K2F + 4 * (phi - 1), 4, ("K2", phi), "kf"))
        for phi in range(3, 7):
            for k in range(2):
                r_ = K3F + 4 * (phi - 3) + 2 * k
                kreads.append(rd(f"ds_read_b64 v[{r_}:{r_+1}], v{e.vK3A} offset:{K3 + 504 - 64 * phi + 8 * k}", r_, 2, ("K3", phi), "kf"))
        for s in range(8):
            grp = f"f{s}"
            step_start.append(len(main)); R = []
            b0 = BR + 16 * ((16 + s) % 3)
            for kk in range(2):
                reg, ks = far[2 * s + kk]
                for mt in range(2):
                    a0 = b0 + 8 * kk + 4 * mt
                    va, st, hf = (e.vR2 + mt, 64, 8) if reg == "2" else (e.vR3 + mt, 128, 16)
                    for k in range(2):
                        R.append(rd(f"ds_read_b64_tr_b16 v[{a0+2*k}:{a0+2*k+1}], v{va} offset:{st * ks + hf * k}", a0 + 2 * k, 2, ("F", reg, ks, mt), grp))
                    for t in range(1, 4):
                        phi = 4 * t - ks if reg == "2" else 2 * t - ks
                        ok = 1 <= phi <= 8 if reg == "2" else 3 <= phi <= 6
                        if ok:
                            kf = K2F + 4 * (phi - 1) if reg == "2" else K3F + 4 * (phi - 3)
                            mf(ACC(t, mt), a0, kf, nd((a0, 4, ("F", reg, ks, mt)), (kf, 4, ("K" + reg, phi))))
            step_reads.append(R)
        step_start.append(len(main)); R = []
        b0 = BR + 16 * (24 % 3)
        for t in range(4):
            R.append(rd(f"ds_read_b128 v[{b0+4*t}:{b0+4*t+3}], v{e.vUB} offset:{X0 - U0 - 4096 + 2048 + 4096 * t}", b0 + 4 * t, 4, ("X", t), "r"))
            for mt in range(2):
                mf(ACC(t, mt), e.vID + 2 - 2 * mt, b0 + 4 * t, nd((b0 + 4 * t, 4, ("X", t))))
        step_reads.append(R)
        ns = len(step_reads); step_start.append(len(main))
        names = [f"n{j}" for j in range(16)] + [f"f{s}" for s in range(8)] + ["r"]
        g = Gaps(main)
        g.at(-1, step_reads[0] + step_reads[1])
        g.at(-1, "@lgkm n0")
        xbar = step_start[21]
        g.at(xbar, "@vm x"); g.at(xbar + 1, "s_barrier")
        for k, ins in box_at:
            g.early(ins, k + 3)
        for s in range(ns - 2):
            g.spread(step_reads[s + 2], step_start[s], step_start[s + 1])
        g.spread(kreads, step_start[11], step_start[14])
        w1 = e.w1_loads()
        n1 = e.o.get("w1n", 20)
        ci, c0 = step_start[e.o.get("fwi", 4)], step_start[e.o.get("fwc", 8)]
        g.at(ci, e.poll_issue(196, 192) + e.poll_issue(197, 190) + e.poll_issue(e.vPOLL, 194))
        g.block(c0, e.poll_check(196, 192) + e.poll_check(197, 190) + e.poll_check(e.vPOLL, 194) + e.stamp(12) + e.dma4(XT, X0, "x"))
        lo, hi = c0 + 1, step_start[e.o.get("w1e", 20)]
        for k in range(n1):
            g.at(lo + (hi - lo) * k // n1, w1[k])
        for s in range(1, ns):
            g.at(step_start[s] - 1, f"@lgkm {names[s]}")
        e(e.late)
        e(e.ffn_ids()); e(e.fw_poll_addr(196))
        e(f"v_add_u32 v{e.vPOLL}, {FW - F1}, v{e.vPOLL}")
        e("s_waitcnt vmcnt(0) lgkmcnt(0)\ns_barrier")
        e(e.stamp(6))
        L = e.lab("ep")
        e(f"s_or_b32 s48, s2, s{sW}\ns_cmp_lg_u32 s48, 0\ns_cbranch_scc1 {L}")
        e(f"v_mov_b32 v198, {EPOCH}\nv_mov_b32 v199, s44\ns_mov_b64 exec, 1\nbuffer_store_dword v199, v198, {SRD}, 0 offen sc1\ns_mov_b64 exec, -1", opt=True)
        e(f"{L}:")
        e.conv_stream = g.flat(); e.conv_steps = (main, step_start)
        e(e.conv_stream)
        e(e.stamp(7))
        for t in range(4):
            o = 64 + 4 * t
            e(f"s_mov_b32 s48, {HT + 16 * 40960 * t}")
            for k in range(4):
                a = ACC(t, k >> 1) + 2 * (k & 1)
                e(f"v_cvt_pk_bf16_f32 v{o+k}, v{a}, v{a+1}")
            e(f"buffer_store_dwordx4 v[{o}:{o+3}], v{e.vHST}, {SRD}, s48 offen sc1", tag="h")
        for x in w1[n1:]: e(x)
        e("@vm h"); e("s_barrier")
        e(e.signal_all(F2, 4))
        e(e.stamp(8))

    def helper_consts(self):
        e = self
        e(f"""s_sub_u32 s50, s{sIDX}, 20
            s_lshl_b32 s50, s50, 3
            s_add_u32 s50, s50, s{sCLS}
            s_mul_i32 s68, s50, 5
            s_add_u32 s70, s68, 4
            s_add_u32 s68, s68, s{sW}
            v_lshrrev_b32 v180, 4, v1
            v_and_b32 v194, 7, v1
            v_lshlrev_b32 v194, 4, v194
            v_lshl_add_u32 v194, v180, 7, v194
            v_bfe_u32 v196, v1, 3, 1
            v_cmp_eq_u32 vcc, 0, v196
            v_mov_b32 v198, s26
            v_mov_b32 v199, s27
            v_mov_b32 v254, s24
            v_mov_b32 v255, s25
            v_cndmask_b32 v198, v198, v254, vcc
            v_cndmask_b32 v199, v199, v255, vcc
            v_add_co_u32 v198, vcc, v198, v194
            v_addc_co_u32 v199, vcc, 0, v199, vcc
            v_and_b32 v254, 1, v1
            v_lshl_add_u32 v254, v196, 1, v254""")
    def helper_consts2(self):
        e = self
        e(f"""v_bfe_u32 v196, v1, 1, 2
            v_lshl_add_u32 v254, v196, 2, v254
            v_lshlrev_b32 v254, 4, v254
            v_lshlrev_b32 v{e.vL16}, 4, v1
            s_lshl_b32 s48, s{sW}, 4
            s_lshl_b64 s[72:73], 0xffff, s48""")
    def w1_pack_loads(self, k):
        su = 68 + 2 * k
        out = mk(f"""s_mul_i32 s48, s{su}, 10923
            s_lshr_b32 s{su+1}, s48, 16
            s_mul_i32 s48, s{su+1}, 6
            s_sub_u32 s{su}, s{su}, s48
            s_mul_i32 s48, s{su+1}, {8 * 3072}
            s_lshl_b32 s49, s{su}, 9
            s_add_u32 s48, s48, s49
            s_add_u32 s48, s48, 3072
            s_mov_b32 s49, 0
            v_lshl_add_u64 v[194:195], s[48:49], 0, v[198:199]
            s_add_u32 s48, s48, 9216
            v_lshl_add_u64 v[192:193], s[48:49], 0, v[198:199]
            s_add_u32 s48, s48, 9216
            v_lshl_add_u64 v[190:191], s[48:49], 0, v[198:199]""")
        if k: out += mk("s_mov_b64 exec, s[72:73]")
        for j in range(8):
            a = (194, 192, 190)[j // 3]; r = 112 + 32 * k + 4 * j
            out += mk(f"global_load_dwordx4 v[{r}:{r+3}], v[{a}:{a+1}], off offset:{3072 * (j % 3 - 1)}")
        if k: out += mk("s_mov_b64 exec, -1")
        return out
    def w1_pack_stores(self, k):
        su = 68 + 2 * k
        out = mk(f"""s_lshl_b32 s48, s{su}, 5
            v_lshl_add_u32 v255, v180, 3, s48
            s_lshr_b32 s48, s{su+1}, 2
            s_mul_i32 s48, s48, 3072
            s_and_b32 s49, s{su+1}, 3
            s_lshl_b32 s49, s49, 8
            s_add_u32 s48, s48, s49
            s_add_u32 s48, s48, {W1P}
            s_mov_b32 s49, 57
            s_mov_b32 s58, 0x05040100
            s_mov_b32 s59, 0x07060302""")
        for t in range(8):
            out += mk(f"""v_mul_u32_u24 v194, 21846, v255
                v_lshrrev_b32 v194, 16, v194
                v_mad_u32_u24 v194, v194, s49, v255
                v_lshl_add_u32 v{232+t}, v194, 10, v254
                v_add_u32 v255, 1, v255""")
        if k: out += mk("s_mov_b64 exec, s[72:73]")
        for t in range(8):
            o = 200 + 4 * t; r = 112 + 32 * k
            for jj in range(4):
                out += mk(f"v_perm_b32 v{o+jj}, v{r+4*(2*jj+1)+(t>>1)}, v{r+4*(2*jj)+(t>>1)}, s{58+(t&1)}")
            out += mk(f"buffer_store_dwordx4 v[{o}:{o+3}], v{232+t}, {SRD}, s48 offen sc1", tag="w1p")
        if k: out += mk("s_mov_b64 exec, -1")
        return out
    def w1_publish(self):
        return mk("@vm w1p\ns_barrier") + self.signal_all(FW, 4)

    def helper_main(self):
        e = self
        for k in range(e.o.get("hne", 1), 2): e(e.w1_pack_loads(k))
        e(f"""s_lshl2_add_u32 s55, s50, s{sW}
            s_mul_i32 s48, s55, 1366
            s_lshr_b32 s56, s48, 16
            s_mul_i32 s48, s56, 48
            s_sub_u32 s57, s55, s48
            s_mov_b32 s64, s28
            s_mov_b32 s65, s29
            s_mov_b32 s66, {1536 * 1280}
            s_mov_b32 s67, 0x20000
            s_lshr_b32 s48, s57, 1
            s_lshl_b32 s48, s48, 6
            s_and_b32 s49, s57, 1
            s_lshl2_add_u32 s48, s49, s48
            s_mul_i32 s48, s48, 1280
            s_mul_i32 s49, s56, 160
            s_add_u32 s61, s48, s49
            s_mul_i32 s60, s{sW}, 5120""")
        for n in range(5):
            e(f"""v_add_u32 v20, {64 * n}, v1
                v_mul_u32_u24 v21, 6554, v20
                v_lshrrev_b32 v21, 16, v21
                v_mul_u32_u24 v22, 10, v21
                v_sub_u32 v20, v20, v22
                v_and_b32 v22, 7, v21
                v_lshrrev_b32 v21, 3, v21
                v_lshl_add_u32 v21, v22, 3, v21
                v_mul_u32_u24 v21, 1280, v21
                v_lshl_add_u32 v{24+n}, v20, 4, v21""")
        e(e.ln_publish(False))
        e(e.w1_pack_stores(0)); e(e.stamp(9)); e(e.w1_pack_stores(1)); e(e.stamp(8))
        e(e.x_stores())
        e(e.stamp(7))
        e(e.w1_publish())
        for n in range(5):
            e(f"s_add_u32 m0, s60, {1024 * n}\ns_nop 0")
            e(f"buffer_load_dwordx4 v{24+n}, {SRD2}, s61 offen lds")
        e(e.stamp(4))
        e(f"""v_bfe_u32 v20, v1, 2, 2
            v_lshl_add_u32 v20, v180, 3, v20
            v_mul_u32_u24 v20, 160, v20
            v_and_b32 v21, 3, v1
            v_lshl_add_u32 v20, v21, 3, v20
            v_add_u32 v20, s60, v20
            s_mul_i32 s48, s55, 5120
            s_add_u32 s48, s48, {W2P}
            s_add_u32 s49, s48, 4096
            s_waitcnt vmcnt(0)""")
        for t in range(5):
            e(f"ds_read_b64_tr_b16 v[{32+4*t}:{33+4*t}], v20 offset:{32*t}\nds_read_b64_tr_b16 v[{34+4*t}:{35+4*t}], v20 offset:{32*t + 640}")
        for t in range(5):
            e(f"buffer_store_dwordx4 v[{32+4*t}:{35+4*t}], v{e.vL16}, {SRD}, s{48 + t // 4} offen offset:{1024 * (t & 3)} sc1")
        e(e.ffn_ids()); e(e.fw_poll_addr(196))
        e("s_waitcnt vmcnt(0)\ns_barrier")
        e(e.signal_all(F2, 4))
        e(e.stamp(5))
        e(e.poll_issue(196, 192)); e(e.poll_issue(197, 190))
        e(e.poll_check(196, 192)); e(e.poll_check(197, 190))
        e(e.stamp(6))
        for x in e.w1_loads(): e(x)

    def finish_stamps(self):
        e = self
        if not e.stamps: return
        e(f"""s_waitcnt lgkmcnt(0)
            s_lshl2_add_u32 s48, s2, s{sW}
            s_lshl_b32 s48, s48, 6
            s_add_u32 s48, s48, {DBG}
            v_mov_b32 v2, s48""")
        for k in range(14):
            e(f"v_mov_b32 v3, s{74 + 2 * k}\nbuffer_store_dword v3, v2, {SRD}, 0 offen offset:{4 * k}")

    def build(self):
        e = self
        e.prologue()
        e(f"s_cmp_ge_u32 s{sIDX}, 20\ns_cbranch_scc1 L_helper")
        head = list(e.p)
        e.conv_param_loads(); e.ln_consts(); e.conv_consts_a()
        cb = e.conv_consts_b(); n0 = e.o.get("cb0", 100)
        while cb[n0].mn.startswith("v_cndmask") or cb[n0 + 1].mn.startswith("v_cndmask") or cb[n0 + 2].mn.startswith("v_cndmask"): n0 += 1
        e(cb[:n0]); e.late = cb[n0:]
        e.ln1()
        if e.o.get("xc"):
            e(e.ln_publish()); e(e.w1_publish())
        else:
            e.kgen(); e.conv()
        e("s_branch L_join")
        a, sa = finalize(e.p)
        e.p = list(head); e("L_helper:")
        e.helper_consts()
        if e.o.get("hne", 1) > 0: e(e.w1_pack_loads(0))
        e.helper_consts2()
        if e.o.get("hne", 1) > 1: e(e.w1_pack_loads(1))
        e.ln_consts(); e.ln1(); e.helper_main()
        b, sb = finalize(e.p)
        k = next(n for n, i in enumerate(b) if i.text == "L_helper:")
        e.p = []
        e("L_join:")
        if e.stop != "conv":
            import gen_ffn
            e.in_ffn = True
            gen_ffn.ffn(e)
        e.finish_stamps()
        c, sc = finalize(e.p)
        self.stats = (sa, sb, sc)
        body = "\n".join(("" if i.kind == "meta" else "    ") + i.text for i in a + b[k:] + c if i.kind != "pseudo")
        return f"""; @launch grid=(256,1,1) block=(256,1,1) lds={LDS_BYTES}
.amdgcn_target "amdgcn-amd-amdhsa--gfx950"
.text
.globl {NAME}_kernel
.p2align 8
.type {NAME}_kernel,@function
{NAME}_kernel:
{body}
L_end:
    s_endpgm
L_code_end:
.section .rodata,"a"
.p2align 6
.amdhsa_kernel {NAME}_kernel
  .amdhsa_next_free_vgpr 512
  .amdhsa_next_free_sgpr 102
  .amdhsa_accum_offset 256
  .amdhsa_group_segment_fixed_size 0
  .amdhsa_kernarg_size 128
  .amdhsa_user_sgpr_count 2
  .amdhsa_user_sgpr_kernarg_segment_ptr 1
  .amdhsa_system_sgpr_workgroup_id_x 1
.end_amdhsa_kernel
"""

if __name__ == "__main__":
    opt = {a.split("=")[0]: int(a.split("=")[1]) for a in sys.argv[4:]}
    k = K(stop=sys.argv[2] if len(sys.argv) > 2 and sys.argv[2] != "-" else None, stamps=len(sys.argv) > 3 and sys.argv[3] == "stamps", opt=opt)
    open(sys.argv[1], "w").write(k.build())
    print(k.stats)
```

```python
import re

REG = re.compile(r"^-?\|?(?:abs\()?([vas])(?:(\d+)|\[(\d+):(\d+)\])\)?\|?$")
TRANS = re.compile(r"^v_(exp|log|rcp|rsq|sqrt|sin|cos)_f32")

def regs_of(tok):
    tok = tok.strip()
    if tok in ("vcc", "exec"):
        return [(tok, 0)]
    if tok == "m0":
        return [("m0", 0)]
    m = REG.match(tok)
    if not m:
        return []
    if m.group(2) is not None:
        return [(m.group(1), int(m.group(2)))]
    return [(m.group(1), i) for i in range(int(m.group(3)), int(m.group(4)) + 1)]

class I:
    def __init__(self, text, tag=None, opt=False, put=None, need=None):
        self.text = text.strip()
        self.tag, self.opt, self.put, self.need = tag, opt, put, need
        self.defs, self.uses = set(), set()
        self.kind = "other"
        t = self.text
        if t.endswith(":") or t.startswith(".") or t.startswith(";") or not t:
            self.kind, self.mn = "meta", ""
            return
        if t.startswith("@"):
            self.kind, self.mn = "pseudo", t.split()[0]
            return
        mn, _, rest = t.partition(" ")
        self.mn = mn
        ops = [o.strip() for o in re.split(r",(?![^\[]*\])", rest)] if rest else []
        mods = ""
        if ops:
            last = ops[-1].split(None, 1)
            if len(last) == 2 and not last[0].endswith(":"):
                ops[-1], mods = last[0], last[1]
        self.ops, self.mods = ops, mods
        R = [regs_of(o) for o in ops]
        allr = lambda k: {r for x in R[k:] for r in x}
        if mn.startswith("v_mfma"):
            self.kind = "mfma"
            self.passes = 8 if "32x32" in mn else 4
            self.defs, self.uses = set(R[0]), allr(1)
            self.A, self.B, self.C = set(R[1]), set(R[2]), set(R[3])
        elif mn.startswith("ds_"):
            self.kind = "ds"
            if mn.startswith("ds_read") or "permute" in mn or "swizzle" in mn:
                self.defs, self.uses = set(R[0]), allr(1)
            else:
                self.uses = allr(0)
                if "addtid" in mn: self.uses.add(("m0", 0))
        elif mn.startswith("buffer_") or mn.startswith("global_"):
            self.kind = "vm"
            self.dma = "_lds_" in mn or re.search(r"\blds\b", mods) is not None
            if self.dma:
                self.uses = allr(0) | {("m0", 0)}
            elif "_load" in mn:
                self.defs, self.uses = set(R[0]), allr(1)
                if "d16" in mn:
                    self.uses |= self.defs
            else:
                self.uses = allr(0)
                self.wide = set()
                if "x3" in mn or "x4" in mn:
                    self.wide = set(R[0] if mn.startswith("buffer_") else R[1])
        elif mn.startswith("s_load") or mn in ("s_memtime", "s_memrealtime"):
            self.kind = "smem"
            self.defs, self.uses = set(R[0]), allr(1)
        elif mn.startswith("s_"):
            self.kind = "salu"
            if mn.startswith(("s_cmp", "s_cbranch", "s_branch", "s_waitcnt", "s_barrier", "s_nop", "s_sleep", "s_setprio", "s_endpgm", "s_bitcmp")):
                self.uses = allr(0)
                if "vcc" in mn: self.uses.add(("vcc", 0))
            else:
                self.defs, self.uses = set(R[0]), allr(1)
                if "saveexec" in mn: self.defs.add(("exec", 0))
        elif mn.startswith("v_"):
            self.kind = "valu"
            self.defs, self.uses = set(R[0]), allr(1)
            if "permlane" in mn and "swap" in mn:
                self.defs |= set(R[1]); self.uses |= set(R[0])
            if re.match(r"v_(fmac|dot2c|mac|pk_fmac|writelane)", mn) or "dpp" in mn or "quad_perm" in mods or "row_" in mods:
                self.uses |= set(R[0])
            if mn.startswith("v_cndmask") and len(ops) == 3:
                self.uses.add(("vcc", 0))
            if re.match(r"v_(add|sub|subrev|addc|subb)_co", mn):
                self.defs |= set(R[1])
        self.trans = bool(TRANS.match(mn))
        self.dpp = self.kind == "valu" and ("dpp" in mn or "quad_perm" in mods or "row_" in mods)
        self.dot = mn.startswith("v_dot")

    def cost(self):
        if self.kind in ("meta", "pseudo"): return 0
        if self.kind == "salu": return 0.25
        if self.kind == "ds" and not self.defs: return len(vg(self.uses))
        if self.kind == "vm":
            return (1 if self.defs or self.dma else len(vg(self.uses))) + self.mn.startswith("buffer_")
        if "permlane" in self.mn: return 2
        return 2 if getattr(self, "trans", False) else 1
    def cls(self):
        return 0 if self.kind in ("salu", "pseudo", "meta", "smem") else 1 if self.kind in ("ds", "vm") else 2

def mk(x, **kw):
    if isinstance(x, I): return [x]
    if isinstance(x, str): return [I(l, **kw) for l in x.strip().split("\n") if l.strip()]
    return [j for i in x for j in mk(i, **kw)]

def vg(s): return {r for r in s if r[0] in "va"}
def sg(s): return {r for r in s if r[0] in ("s", "vcc")}

def need_states(p, c):
    n = 0
    if p.kind == "valu":
        w = vg(p.defs)
        if c.kind == "mfma" and w & c.uses: n = max(n, 3 if p.dot else 2)
        if c.kind == "valu":
            if p.trans and not c.trans and w & c.uses: n = max(n, 1)
            if (c.dpp or "permlane" in c.mn) and w & c.uses: n = max(n, 2)
            if c.mn.startswith(("v_readlane", "v_readfirstlane")) and w & c.uses: n = max(n, 1)
            if sg(p.defs) & c.uses: n = max(n, 4 if "lane" in c.mn else 2)
        if p.dot and w & (c.uses | c.defs):
            same_chain = c.mn == p.mn and not (w & {r for o in c.ops[1:3] for r in regs_of(o)})
            if not same_chain: n = max(n, 3)
        if c.kind == "vm" and sg(p.defs) & c.uses: n = max(n, 5)
        if c.kind == "salu" and sg(p.defs) & c.uses: n = max(n, 2)
    if p.kind == "mfma":
        big = p.passes == 8
        if c.kind == "mfma":
            if p.defs & (c.A | c.B): n = max(n, 12 if big else 8)
            if p.defs & c.C and not (p.defs == c.C and p.passes == c.passes): n = max(n, 10 if big else 6)
            if p.defs & c.defs and not p.defs & c.C: n = max(n, 10 if big else 6)
        elif c.kind in ("valu", "vm", "ds"):
            if p.defs & (c.uses | c.defs): n = max(n, 12 if big else 8)
            if p.C & c.defs and c.kind == "valu": n = max(n, 7 if big else 3)
    if p.kind == "vm" and getattr(p, "wide", None) and p.wide & c.defs: n = max(n, 2)
    if p.kind == "salu" and ("m0", 0) in p.defs and c.kind in ("vm", "ds") and ("m0", 0) in c.uses: n = max(n, 1)
    return n

def finalize(prog):
    out, vmq, lgq, hist, val = [], [], [], [], {}
    stats = {"wait": 0, "nop": 0}
    waited = set()
    def newer(q, k): return sum(1 for e in q[k + 1:] if not e.opt)
    def emit(i):
        out.append(i)
        if i.kind in ("meta", "pseudo"): return
        states = int(i.ops[0]) + 1 if i.mn == "s_nop" else 1
        hist.append((i, states))
        if len(hist) > 64: hist.pop(0)
    def do_wait(vn, ln, opt=False):
        parts = []
        if vn is not None: parts.append(f"vmcnt({min(vn, 63)})")
        if ln is not None: parts.append(f"lgkmcnt({min(ln, 15)})")
        if parts:
            w = I("s_waitcnt " + " ".join(parts), opt=opt); emit(w); apply_wait(w); stats["wait"] += 1
    def drop(q, n):
        while len(q) > n: q.pop(0)
    def apply_wait(i):
        m = re.search(r"vmcnt\((\d+)\)", i.text)
        if m: trim(vmq, int(m.group(1)), i.opt)
        m = re.search(r"lgkmcnt\((\d+)\)", i.text)
        if m:
            n = int(m.group(1))
            if n == 0 or not any(e.kind == "smem" for e in lgq): trim(lgq, n, i.opt)
    def trim(q, n, opt):
        done = [k for k in range(len(q)) if newer(q, k) >= n and (q[k].opt or not opt)]
        for k in reversed(done): q.pop(k)
    for i in prog:
        if i.kind == "pseudo":
            a = i.text.split()
            if a[0] == "@reset":
                vmq.clear(); lgq.clear(); hist.clear()
            elif a[0] in ("@vm", "@lgkm"):
                q = vmq if a[0] == "@vm" else lgq
                waited.add(a[1])
                ks = [k for k, e in enumerate(q) if e.tag == a[1]]
                if ks:
                    n = newer(q, ks[-1])
                    if a[0] == "@lgkm" and any(e.kind == "smem" for e in q): n = 0
                    do_wait(n if a[0] == "@vm" else None, n if a[0] == "@lgkm" else None)
            continue
        if i.kind == "meta":
            emit(i); continue
        touch = i.uses | i.defs
        vn = ln = None
        ks = [k for k, e in enumerate(vmq) if e.defs & touch]
        if ks and not (i.kind == "vm" and not any(vmq[k].defs & i.uses for k in ks)): vn = newer(vmq, ks[-1])
        ks = [k for k, e in enumerate(lgq) if e.defs & touch]
        if ks and not (i.kind == "ds" and not any(lgq[k].defs & i.uses or lgq[k].kind == "smem" for k in ks)):
            ln = 0 if any(e.kind == "smem" for e in lgq) else newer(lgq, ks[-1])
        do_wait(vn, ln, i.opt)
        dist, pad = 0, 0
        for p, st in reversed(hist):
            pad = max(pad, need_states(p, i) - dist)
            if i.opt or not p.opt: dist += st
        if pad > 0:
            emit(I(f"s_nop {pad - 1}", opt=i.opt)); stats["nop"] += pad
        if i.need:
            for r, t in i.need.items():
                assert val.get(r) == t, f"{i.text}: register {r} holds {val.get(r)}, expected {t}"
        for r in i.defs: val.pop(r, None)
        if i.put: val.update(i.put)
        emit(i)
        if i.mn == "s_waitcnt": apply_wait(i)
        assert not (i.kind in ("vm", "ds") and i.tag in waited), f"{i.text}: issued after the wait for its tag {i.tag}"
        if i.kind == "vm": vmq.append(i)
        if i.kind in ("ds", "smem"): lgq.append(i)
    return out, stats

def indep(a, b):
    scc = lambda i: i.kind == "salu"
    return not (a.defs & (b.uses | b.defs) or b.defs & a.uses)

class Gaps:
    def __init__(self, main, cap=2):
        self.main, self.cap = main, cap
        self.pre = []
        self.g = [[] for _ in main]
        self.blk = [[] for _ in main]
    def load(self, k): return sum(i.cost() for i in self.g[k]) + min(2, len(self.blk[k]))
    def block(self, k, x):
        (self.pre if k < 0 else self.blk[k]).extend(mk(x))
    def put(self, k, i):
        while True:
            g = self.g[k]
            pos = len(g)
            while pos > 0 and g[pos - 1].cls() > i.cls(): pos -= 1
            if all(indep(i, j) for j in g[pos:]):
                g.insert(pos, i); return k
            if k == len(self.main) - 1:
                g.append(i); return k
            k += 1
    def at(self, k, x):
        if k < 0:
            self.pre.extend(mk(x)); return
        for i in mk(x): k = self.put(k, i)
        return k
    def spread(self, x, lo, hi):
        x = mk(x)
        lo = max(lo, 0); hi = min(hi, len(self.main))
        assert hi > lo, (lo, hi)
        total = sum(i.cost() for i in x)
        level = 0
        while sum(max(0, level - self.load(k)) for k in range(lo, hi)) < total: level += 1
        room = [max(0, level - self.load(k)) for k in range(lo, hi)]
        scale = total / sum(room) if total else 0
        k, acc, used, last = 0, room[0] * scale, 0, lo
        for i in x:
            while k < hi - lo - 1 and used + i.cost() * 0.5 > acc + 1e-9:
                k += 1; acc += room[k] * scale
            last = self.put(max(lo + k, last), i); used += i.cost()
        return last
    def early(self, x, lo, cap=None):
        k = max(lo, 0); cap = cap or self.cap
        for i in mk(x):
            while k < len(self.main) - 1 and self.load(k) > 0.9 and self.load(k) + i.cost() > cap + 0.5: k += 1
            k = self.put(k, i)
        return k
    def flat(self):
        out = list(self.pre)
        for m, g, b in zip(self.main, self.g, self.blk):
            out.append(m); out += g + b
        return out


class Sched:
    def __init__(self, main, cap=2, dense=False):
        self.main, self.cap = main, cap
        self.streams, self.pre, self.dense = [], [], dense
    def add(self, x, lo, hi, pace=False, after=None, prio=0, win=None):
        items = []
        for y in (x if isinstance(x, list) else mk(x)):
            items.append({"ins": mk(y), "blk": isinstance(y, list) and len(mk(y)) > 1})
        n = len(items)
        hi = min(hi, len(self.main) - 1)
        for k, it in enumerate(items):
            it["lo"] = lo + ((hi - lo + 1) * k) // n if pace else lo
            it["hi"] = min(hi, it["lo"] + win) if win is not None else hi
            it["gap"] = None; it["prio"] = prio
            it["cost"] = sum(i.cost() for i in it["ins"] if not i.opt)
            it["after"] = list(after or []) if k == 0 else []
        self.streams.append(items)
        return items
    def run(self):
        n = len(self.main)
        g = [[] for _ in range(n)]
        heads = [0] * len(self.streams)
        credit, quiet = 0.0, 0
        for k in range(n):
            rem = sorted((it["hi"], it["cost"]) for s, h in zip(self.streams, heads) for it in s[h:])
            rate, acc = self.cap, 0.0
            for hi, c in rem:
                acc += c
                if hi >= k: rate = max(rate, acc / (hi - k + 1))
            budget = rate + max(-1.0, min(credit, 1.0)) if rate > self.cap else self.cap
            used, salu = 0.0, 0
            while True:
                cand = []
                for si, s in enumerate(self.streams):
                    if heads[si] == len(s): continue
                    it = s[heads[si]]
                    if it["lo"] > k or any(a["gap"] is None or a["gap"] + d > k for a, d in it["after"]): continue
                    c0 = it["ins"][-1].cls() if not it["blk"] else max(i.cls() for i in it["ins"])
                    pos = len(g[k])
                    while pos > 0 and g[k][pos - 1][0] > c0: pos -= 1
                    ok = all(indep(a, b) for a in it["ins"] for _, o in g[k][pos:] for b in o["ins"]) and not any(o in s for _, o in g[k][pos:] if c0 == 0 and it["ins"][0].kind == "pseudo")
                    must = it["hi"] <= k
                    if not ok and not must: continue
                    if not ok: pos = len(g[k])
                    hasvm = any(b.kind == "vm" for _, o in g[k] for b in o["ins"])
                    if it["ins"][0].kind == "vm" and salu and not must: continue
                    free = c0 == 0 and salu == 0 and not hasvm
                    if c0 == 0 and not free and not must and used + 1 > budget: continue
                    extra = 1 if c0 == 1 and any(c == 1 for c, _ in g[k]) else 0
                    if c0 == 1 and not must:
                        tight = sum(1 for x in s[heads[si]:] if x["hi"] <= it["hi"] and x["ins"][-1].cls() == 1) > it["hi"] - k
                        if (k < quiet or (extra and not self.dense)) and not tight: continue
                    if not (must or free or used == 0 or used + it["cost"] + extra * (not self.dense) <= budget + 0.26): continue
                    left = sum(x["cost"] for x in s[heads[si]:] if x["hi"] <= it["hi"])
                    slack = it["hi"] - k - left / self.cap
                    cand.append(((0 if free else 1, -it["prio"], 0 if c0 == 1 else 1, slack), si, pos, c0, free))
                if not cand: break
                cand.sort(key=lambda c: (c[0][0], c[0][2], c[0][1], c[0][3]))
                _, si, pos, c0, free = cand[0]
                it = self.streams[si][heads[si]]; heads[si] += 1
                it["gap"] = k
                g[k].insert(pos, (c0, it))
                if c0 == 0:
                    ns = max(1, sum(1 for b in it["ins"] if b.kind != "meta"))
                    salu += ns; used += ns - 1 if free else ns
                else:
                    used += it["cost"] + (1 if c0 == 1 and sum(c == 1 for c, _ in g[k]) > 1 else 0)
                    if it["ins"][0].mn.startswith("ds_write"): quiet = k + (3 if "128" in it["ins"][0].mn else 2)
            credit = budget - used if rate > self.cap else 0.0
        for s, h in zip(self.streams, heads):
            assert h == len(s), f"unscheduled: {s[h]['ins'][0].text}"
        self.refill(g)
        out = list(self.pre)
        for m, gg in zip(self.main, g):
            out.append(m)
            for _, it in gg: out += it["ins"]
        return out
    def refill(self, g):
        n = len(g)
        if any(a[0] > b[0] for gg in g for a, b in zip(gg, gg[1:])):
            pinned = {id(it) for gg in g if any(a[0] > b[0] for a, b in zip(gg, gg[1:])) for _, it in gg}
        else:
            pinned = set()
        seq = [it for gg in g for c, it in gg if c == 2]
        isv = {id(it) for it in seq}
        lo = {id(it): it["lo"] for it in seq}; hi = {id(it): max(it["hi"], it["gap"]) for it in seq}
        for s in self.streams:
            for a, b in zip(s, s[1:]):
                if id(a) in isv and id(b) not in isv: hi[id(a)] = min(hi[id(a)], max(a["gap"], b["gap"] - 1))
                if id(b) in isv and id(a) not in isv: lo[id(b)] = max(lo[id(b)], min(b["gap"], a["gap"]))
            for b in s:
                for a, d in b["after"]:
                    if id(b) in isv and id(a) not in isv: lo[id(b)] = max(lo[id(b)], a["gap"] + d)
                    if id(a) in isv and id(b) not in isv: hi[id(a)] = min(hi[id(a)], max(a["gap"], b["gap"] - max(d, 1)))
                    if id(a) in isv and id(b) in isv and d: lo[id(b)] = max(lo[id(b)], a["gap"] + d); hi[id(a)] = a["gap"]
        fixed = [it for gg in g for c, it in gg if c != 2]
        for a in seq:
            for b in fixed:
                if abs(a["gap"] - b["gap"]) > 80 or all(indep(x, y) for x in a["ins"] for y in b["ins"]): continue
                if b["gap"] > a["gap"]: hi[id(a)] = min(hi[id(a)], b["gap"] - 1)
                else: lo[id(a)] = max(lo[id(a)], b["gap"])
        for it in seq:
            if id(it) in pinned: lo[id(it)] = hi[id(it)] = it["gap"]
        for a, b in reversed(list(zip(seq, seq[1:]))): hi[id(a)] = min(hi[id(a)], hi[id(b)])
        base = []
        for gg in g:
            ns = sum(1 for c, it in gg if c == 0 for b in it["ins"] if b.kind != "meta")
            mem = [it for c, it in gg if c == 1]
            base.append(max(0, ns - 1) + sum(it["cost"] for it in mem) + max(0, len(mem) - 1) + (1 if ns and mem and mem[0]["ins"][0].kind == "vm" else 0))
        m = len(seq)
        INF = 1e9
        best = {0: (0.0, None)}
        hist = []
        for k in range(n):
            nxt = {}
            for j, (c, _) in best.items():
                load, jj = base[k], j
                while True:
                    if jj == m or hi[id(seq[jj])] > k:
                        cost = c + max(0, self.cap - load) + 1e-3 * max(0, load - self.cap) ** 2
                        if cost < nxt.get(jj, (INF,))[0]: nxt[jj] = (cost, j)
                    if jj == m or lo[id(seq[jj])] > k or jj - j > 48: break
                    load += seq[jj]["cost"]; jj += 1
            assert nxt, k
            hist.append(nxt); best = nxt
        j = m
        for k in range(n - 1, -1, -1):
            p = hist[k][j][1]
            if not any(id(it) in pinned for _, it in g[k]):
                g[k] = [x for x in g[k] if x[0] != 2] + [(2, it) for it in seq[p:j]]
            else:
                have = {id(it) for _, it in g[k]}
                first = next(q for q, x in enumerate(g[k]) if x[0] == 2)
                own = [q for q in range(p, j) if id(seq[q]) in have]
                g[k] = g[k][:first] + [(2, seq[q]) for q in range(p, own[0])] + g[k][first:] + [(2, seq[q]) for q in range(own[-1] + 1, j)]
            j = p

def model_cycles(prog):
    t, vfree, mfree, lastv, prev = 0, 0, 0, False, None
    for i in prog:
        if i.kind in ("meta", "pseudo") or i.opt: continue
        if i.kind == "mfma":
            t = max(t, vfree, mfree); mfree = t + 4 * i.passes; vfree = t + 8; t += 4; lastv = False
        elif i.kind in ("salu", "smem"):
            t += 4 * (int(i.ops[0]) + 1) if i.mn == "s_nop" else 4
        else:
            t = max(t, vfree)
            if i.kind == "valu":
                if i.mn.startswith(("v_pk_", "v_dot")): t = max(t, mfree + 12)
                t += 4 * i.cost(); lastv = True
            else:
                t += (8 if lastv else 0) + (4 if (i.kind == "vm" and prev == "salu") or prev in ("ds", "vm") else 0) + 4 * i.cost(); lastv = False
            vfree = t
        prev = i.kind
    return max(t, mfree)

def gap_map(prog):
    out = ""
    for i in prog:
        if i.kind in ("meta", "pseudo"): continue
        if i.kind == "mfma": out += " "
        else:
            out += {"salu": "w" if i.mn == "s_waitcnt" else "n" if i.mn == "s_nop" else "B" if i.mn == "s_barrier" else "s", "smem": "s", "vm": "g" if (i.defs or getattr(i, "dma", 0)) else "G",
                    "ds": "r" if i.defs else "W", "valu": "t" if i.cost() == 2 else "f"}[i.kind]
    return out


def sizes(prog):
    import subprocess
    lines = []
    for i in prog:
        if i.kind in ("meta", "pseudo"): continue
        t = i.text
        if i.mn.startswith(("s_cbranch", "s_branch")): t = "s_nop 0"
        t = re.sub(r"L_(code_end|table)[^,]*", "0x12345", t)
        lines.append(t)
    r = subprocess.run(["llvm-mc", "-triple", "amdgcn-amd-amdhsa", "-mcpu=gfx950", "-show-encoding"], input="\n".join(lines) + "\n", capture_output=True, text=True)
    assert r.returncode == 0, r.stderr[:2000]
    enc = [m.count("0x") for m in re.findall(r"encoding: \[(.*?)\]", r.stdout)]
    assert len(enc) == len(lines)
    it = iter(enc)
    return [0 if i.kind in ("meta", "pseudo") else next(it) for i in prog]

def align8(prog, start=0):
    sz = sizes(prog)
    off, cand, left = start, None, 0
    for k, i in enumerate(prog):
        if sz[k] == 0: continue
        if sz[k] >= 8:
            if off % 8:
                if cand is not None:
                    j = prog[cand]
                    j.text = j.text.replace(j.mn, j.mn + "_e64", 1); off += 4
                else:
                    left += 1
            if off % 8 == 0 or cand is not None: cand = None
        elif i.kind == "valu" and not i.mn.endswith(("_e64", "_dpp")) and not i.mn.startswith(("v_readfirstlane", "v_dot2c", "v_addc", "v_add_co")):
            cand = k
        off += sz[k]
    return left
```

```python
import math
from asmlib import I, mk, Gaps, Sched, model_cycles
import gen as G
from gen import fx, SRD, SRD2, sW, sCLS, sIDX, SLOT, STP, RST, RES, PART, HT, ACT, W2P, F2, F2B, F3

C0 = -2 * 0.7978845608028654 * math.log2(math.e)
vL16 = 252
TA = 2
FRG = 10
ACC = 50
S1, S2 = 74, 78
CS, ONES = 82, 94
CN = 98
T = 106
OUT = 120
vAST, vSW, vSR, vPF = 124, 125, 126, 127
W2E = 128
vSG, vTG = 116, 118
vPK = 117
PD = 254
MF = "v_mfma_f32_16x16x32_bf16"

def r4(kind, n): return f"{kind}[{n}:{n+3}]"

vW2, vX = 253, 115
NPK = 6

def setup(e):
    a = mk(f"""s_mul_i32 s57, s62, {SLOT}
        s_mul_i32 s58, s39, 10240
        s_add_u32 s57, s57, s58
        s_add_u32 s57, s57, {HT}
        s_mul_i32 s58, s58, 3
        v_add_u32 v{vPK}, s57, v{vL16}
        s_lshl_b32 s46, s{sCLS}, 12
        s_mul_i32 s47, s39, 640
        s_add_u32 s47, s47, s46
        s_add_u32 s47, s47, {F2}
        v_min_u32 v{vPF}, 39, v1
        v_lshl_add_u32 v{vPF}, v{vPF}, 4, s47
        v_mov_b32 v{ONES}, 0x3f803f80
        v_mov_b32 v{ONES+1}, 0x3f803f80
        v_mov_b32 v{ONES+2}, 0x3f803f80
        v_mov_b32 v{ONES+3}, 0x3f803f80""")
    b = []
    for k in range(1, 4): b.append(mk(f"s_add_u32 s{20+2*k}, s34, {4096 * k}\ns_addc_u32 s{21+2*k}, s35, 0"))
    b += mk(f"""s_mov_b64 s[20:21], s[34:35]
        s_and_b32 s68, s63, 7
        s_lshr_b32 s72, s63, 3
        v_mov_b32 v{vTG}, s44
        v_mov_b32 v{vTG+1}, s45
        v_and_b32 v{T}, 15, v1
        v_lshrrev_b32 v{T+1}, 4, v1
        v_bfe_u32 v{T+2}, v1, 2, 2
        v_and_b32 v{T+3}, 3, v1
        v_lshlrev_b32 v{T+4}, 9, v{T+1}
        v_lshl_add_u32 v{T+4}, v{T+2}, 6, v{T+4}
        v_lshl_add_u32 v{T+4}, v{T+3}, 3, v{T+4}
        v_and_b32 v{T+5}, 1, v{T+1}
        v_lshl_add_u32 v{T+4}, v{T+5}, 5, v{T+4}""")
    for gq in range(4):
        b += mk(f"""s_add_u32 s47, s39, {gq}
            s_and_b32 s47, s47, 3
            s_mul_i32 s47, s47, 30720
            v_add_u32 v{TA+gq}, s47, v{T+4}
            v_xor_b32 v{TA+4+gq}, 32, v{TA+gq}""")
    b += mk(f"""v_mov_b32 v{OUT+3}, 0
        v_cmp_eq_u32 s[50:51], v{T+1}, v{T+2}
        v_cmp_gt_u32 s[52:53], 48, v1
        v_cmp_lt_u32 s[54:55], 39, v1
        s_lshl_b32 s47, s{sW}, 3
        s_add_u32 s47, s47, {STP}
        v_lshl_add_u32 v{vSW}, v{T}, 5, s47
        v_mov_b32 v{T+5}, {STP + 1024}
        v_lshl_add_u32 v{T+5}, v1, 3, v{T+5}
        v_cndmask_b32 v{vSW}, v{T+5}, v{vSW}, s[50:51]
        v_lshlrev_b32 v{vSR}, 5, v{T}
        v_add_u32 v{vSR}, {STP}, v{vSR}
        v_mov_b32 v{T+5}, 0x40000000
        v_cndmask_b32 v{vAST}, v{T+5}, v{vL16}, s[52:53]
        v_cmp_eq_u32 s[50:51], 0, v1
        s_mul_i32 s56, s62, {8 * 192 * 256}
        s_add_u32 s60, s56, {ACT}
        s_lshl2_add_u32 s47, s63, s{sW}
        s_mul_i32 s56, s47, 768
        s_add_u32 s56, s56, s60
        s_lshl_b32 s61, s62, 6
        s_add_u32 s47, s47, s61
        s_lshl_b32 s47, s47, 4
        s_add_u32 s47, s47, {F3}
        v_mov_b32 v{vSG}, s47
        v_cndmask_b32 v{vSG}, v{T+5}, v{vSG}, s[50:51]
        s_mul_i32 s47, s{sW}, {24 * 16}
        s_add_u32 s47, s47, s46
        s_lshr_b32 s46, s68, 2
        s_lshl4_add_u32 s47, s46, s47
        s_add_u32 s47, s47, {F2 + 16 * 160 - 32 * 40}
        v_min_u32 v0, 51, v1
        v_lshl_add_u32 v0, v0, 5, s47
        v_cndmask_b32 v0, v{vPF}, v0, s[54:55]
        v_cmp_eq_u32 s[50:51], 1, v{T+3}
        v_cmp_eq_u32 s[52:53], 2, v{T+3}
        v_cmp_eq_u32 s[54:55], 3, v{T+3}
        s_lshl2_add_u32 s59, s68, s{sW}
        s_mul_i32 s59, s59, {12 * 5120}
        s_add_u32 s59, s59, {W2P}
        s_mul_i32 s47, s72, {192 * 256}
        s_add_u32 s60, s60, s47
        s_mul_i32 s47, s{sW}, {48 * 256}
        s_add_u32 s60, s60, s47
        s_lshr_b32 s47, s68, 1
        s_mul_i32 s47, s47, 30720
        s_and_b32 s46, s68, 1
        s_mul_i32 s46, s46, 5120
        s_add_u32 s47, s47, s46
        v_lshl_add_u32 v{T+6}, v{T+1}, 2, v{T+2}
        v_lshlrev_b32 v{T+6}, 6, v{T+6}
        v_lshl_add_u32 v{T+6}, v{T+3}, 3, v{T+6}
        v_lshrrev_b32 v{T+7}, 1, v{T+1}
        v_xor_b32 v{T+7}, s72, v{T+7}
        v_lshl_add_u32 v{T+6}, v{T+7}, 5, v{T+6}
        v_add_u32 v{T+6}, s47, v{T+6}
        v_mul_u32_u24 v{T+7}, 176, v{T}
        v_lshl_add_u32 v{T+7}, v{T+1}, 3, v{T+7}
        v_add_u32 v{T+7}, {RES}, v{T+7}
        s_mul_i32 s33, s{sW}, {1024 * NPK}
        s_add_u32 s33, s33, {RST}
        s_mov_b32 s32, {fx(1/640)}
        v_mov_b32 v{T+8}, {fx(1e-5)}""")
    return a, b

def colsums():
    return [I(f"{MF} {r4('v', CS + 4 * t)}, {r4('a', 12 * p + 4 * t)}, {r4('v', ONES)}, " + ("0" if p == 0 else r4('v', CS + 4 * t))) for p in range(20) for t in range(3)]

def dma(va, k0, m0base, m0off, n, tag):
    out = []
    for k in range(k0, k0 + n):
        if k % 4 == 0 or k == k0: out += mk(f"s_add_u32 m0, s{m0base}, {m0off + 1024 * (k - k % 4 - k0)}")
        b = 20 + 2 * (k // 4)
        out += mk(f"global_load_lds_dwordx4 v{va}, s[{b}:{b+1}] offset:{1024 * (k % 4)} sc1", tag=tag)
    return out

def chunk(c):
    return dma(vPK, 0, 58, (c % 3) * 10240, 10, f"h{c}") + (mk(f"v_add_u32 v{vPK}, {16 * SLOT}, v{vPK}") if c < 3 else [])

def ffn(e):
    o = e.o
    e(f"""s_lshl_b32 s48, s62, 4
        s_lshl2_add_u32 s48, s{sW}, s48
        s_lshl_b32 s49, s72, 8
        s_add_u32 s48, s48, s49
        s_lshl_b32 s48, s48, 6
        s_add_u32 s48, s48, {F3}
        v_lshl_add_u32 v{vPF}, v{T}, 4, s48
        s_add_u32 s46, s62, s63""")
    for gq in range(4):
        e(f"""s_add_u32 s48, s46, {gq}
            s_and_b32 s48, s48, {3 if o.get("rot2", 1) else 0}
            {"" if o.get("rot2", 1) else f"s_mov_b32 s48, {gq}"}
            s_mul_i32 s49, s48, 15360
            s_add_u32 s{4+gq}, s59, s49
            s_mul_i32 s49, s48, 3072
            s_add_u32 s49, s49, s60
            s_add_u32 s{8+2*gq}, s34, s49
            s_addc_u32 s{9+2*gq}, s35, 0""")

    order = [(c, k) for c in range(2) for k in range(7)] + [(c, k) for k in range(7, 12) for c in range(2)] + [(c, k) for c in (2, 3) for k in range(12)]
    late = [("x", c, k) for c in range(2) for k in range(7)]
    for k in range(7, 12): late += [("x", 0, k), ("x", 1, k)]
    late += [("w", n, 0) for n in range(35, 60)]
    w2reg = {n: ("v", W2E + 4 * n) if n < 31 else ("a", 240 + 4 * (n - 31)) for n in range(35)}
    actreg = {}
    for n, (kind, a, b) in enumerate(late):
        if kind == "w": w2reg[a] = ("a", 4 * n)
        else: actreg[a, b] = ("a", 4 * n)
    for k in range(11): actreg[2, k] = ("a", 4 * (49 + k))
    actreg[2, 11] = ("a", 0)
    for k in range(12): actreg[3, k] = ("a", 4 * (k + 1))
    def tagput(reg, tag): return {(reg[0], reg[1] + i): tag for i in range(4)}
    grp = lambda n: mk(f"v_add_u32 v{vW2}, s{4 + n // 15}, v{vL16}")
    def w2_load(n):
        k = n % 15; b = 20 + 2 * (k // 4)
        return (grp(n) if k == 0 else []) + [I(f"global_load_dwordx4 {r4(*w2reg[n])}, v{vW2}, s[{b}:{b+1}] offset:{1024 * (k % 4)} sc1", put=tagput(w2reg[n], ("W2", n)))]
    def act_load(c, k):
        b = 8 + 2 * (k // 3); va = (vL16, vX, vW2, vX)[c]
        pre = mk(f"v_add_u32 v{va}, {2 * c * 192 * 256}, v{vL16}") if c and k == 0 else []
        return pre + [I(f"global_load_dwordx4 {r4(*actreg[c, k])}, v{va}, s[{b}:{b+1}] offset:{1024 * (k % 3)} sc1", tag=f"x{c}_{k}", put=tagput(actreg[c, k], ("X", c, k)))]
    def unpark(n):
        a, off = (vPK, 10240 + 1024 * (n - 35)) if n < 45 else (T + 6, 1024 * (n - 45)) if n < 45 + NPK else (vPK, 20480 + 1024 * (n - 45 - NPK))
        return I(f"ds_read_b128 {r4(*w2reg[n])}, v{a} offset:{off}", tag="up", put=tagput(w2reg[n], ("W2", n)))
    w2_loads = lambda a, b: [x for n in range(a, b) for x in w2_load(n)]
    act_loads = lambda c: [x for k in range(12) for x in act_load(c, k)]
    late_loads = lambda a, b: [x for kind, p, q in late[a:b] for x in (w2_load(p) if kind == "w" else act_load(p, q))]
    def f3_issue(c): return mk(f"s_mov_b32 s73, {2 * c * 16384}") + e.poll_issue(vPF, PD, "s73")
    def f3_check(c):
        a = e.poll_check(vPF, PD, "s73")
        return [a[0], a[1:]]
    def f3_signal(i):
        return mk(f"@vm st{i}\ns_mov_b32 s61, {16384 * i}\nbuffer_store_dwordx2 v[{vTG}:{vTG+1}], v{vSG}, {SRD}, s61 offen sc1")

    main, start, bstart = [], [], []
    def frag(i, p): return FRG + 20 * ((p // 5) & 1) + 4 * (p % 5)
    def ftag(i, p): return {("v", frag(i, p) + k): ("H", i, p) for k in range(4)}
    for i in range(8):
        start.append(len(main))
        for p in range(20):
            if p % 5 == 0: bstart.append(len(main))
            f = r4("v", frag(i, p))
            if p < 5:
                main.append(I(f"{MF} {r4('v', S1)}, {r4('v', ONES)}, {f}, " + ("0" if p == 0 else r4('v', S1)), need=ftag(i, p), put=tagput(("v", S1), ("S", i, p))))
                main.append(I(f"{MF} {r4('v', S2)}, {f}, {f}, " + ("0" if p == 0 else r4('v', S2)), need=ftag(i, p), put=tagput(("v", S2), ("S", i, p))))
            for t in range(3):
                a = ACC + 12 * (i & 1) + 4 * t
                main.append(I(f"{MF} {r4('v', a)}, {r4('a', 12 * p + 4 * t)}, {f}, " + ("0" if p == 0 else r4('v', a)), need=ftag(i, p)))
                if p == 19: main[-1].put = tagput(("v", a), ("G", i))
    start.append(len(main)); bstart.append(len(main))
    def reads(b):
        i, gq = b // 4, b % 4
        slot = (i // 2) % 3
        base = TA + 4 * (i & 1) + gq
        out = []
        for p in range(5 * gq, 5 * gq + 5):
            f = frag(i, p); off = 10240 * slot + 2048 * (p % 5)
            out.append(I(f"ds_read_b64_tr_b16 v[{f}:{f+1}], v{base} offset:{off}", tag=f"b{b}_{p % 5 // 2}", put={("v", f): ("H", i, p), ("v", f + 1): ("H", i, p)}))
            out.append(I(f"ds_read_b64_tr_b16 v[{f+2}:{f+3}], v{base} offset:{off + 256}", tag=f"b{b}_{p % 5 // 2}", put={("v", f + 2): ("H", i, p), ("v", f + 3): ("H", i, p)}))
        return out
    def stats_out(i):
        out = mk(f"""v_cndmask_b32 v{S1+1}, v{S2}, v{S2+1}, s[50:51]
            v_cndmask_b32 v{S1+1}, v{S1+1}, v{S2+2}, s[52:53]
            v_cndmask_b32 v{S1+1}, v{S1+1}, v{S2+3}, s[54:55]""") + mk(f"ds_write_b64 v{vSW}, v[{S1}:{S1+1}] offset:{512 * (i & 1)}", tag=f"sp{i}")
        out[0].need = {("v", S2): ("S", i, 4)}; out[3].need = {("v", S1): ("S", i, 4)}
        return out
    def stats_in(i):
        c = CN + 4 * (i & 1); a = S1
        rd = mk(f"ds_read_b128 v[{a}:{a+3}], v{vSR} offset:{512 * (i & 1)}\nds_read_b128 v[{a+4}:{a+7}], v{vSR} offset:{512 * (i & 1) + 16}", tag=f"sr{i}")
        m = mk(f"""v_add_f32 v{a}, v{a}, v{a+2}
            v_add_f32 v{a+1}, v{a+1}, v{a+3}
            v_add_f32 v{a+4}, v{a+4}, v{a+6}
            v_add_f32 v{a+5}, v{a+5}, v{a+7}
            v_add_f32 v{a}, v{a}, v{a+4}
            v_add_f32 v{a+1}, v{a+1}, v{a+5}""")
        if o.get("mim", 0):
            m += mk(f"""v_mul_f32 v{a}, {fx(1/640)}, v{a}
                v_mul_f32 v{a+1}, {fx(1/640)}, v{a+1}
                v_fma_f32 v{a+1}, -v{a}, v{a}, v{a+1}
                v_max_f32 v{a+1}, 0, v{a+1}
                v_cvt_pk_bf16_f32 v{a}, v{a}, v{a+1}
                v_and_b32 v{a+1}, 0xffff0000, v{a}
                v_add_f32 v{a+1}, {fx(1e-5)}, v{a+1}
                v_cvt_pk_bf16_f32 v{a+1}, v{a+1}, v{a+1}
                v_lshlrev_b32 v{a+1}, 16, v{a+1}
                v_sqrt_f32 v{a+1}, v{a+1}
                v_lshlrev_b32 v{c}, 16, v{a}
                v_cvt_pk_bf16_f32 v{a+1}, v{a+1}, v{a+1}
                v_lshlrev_b32 v{a+1}, 16, v{a+1}
                v_rcp_f32 v{a+2}, v{a+1}
                v_mul_f32 v{c+3}, v{a+1}, v{a+1}""")
        else:
            m += mk(f"""v_mul_f32 v{c}, {fx(1/640)}, v{a}
                v_fmaak_f32 v{a+1}, s33, v{a+1}, {fx(1e-5)}
                v_fma_f32 v{a+1}, -v{c}, v{c}, v{a+1}
                v_max_f32 v{c+3}, {fx(1e-5)}, v{a+1}
                v_rsq_f32 v{a+2}, v{c+3}""".replace("v_fmaak_f32 v%d, s33, v%d, %s" % (a + 1, a + 1, fx(1e-5)), f"v_fma_f32 v{a+1}, v{a+1}, s32, v{T+8}"))
        m += mk(f"""v_mul_f32 v{c+1}, {fx(C0)}, v{a+2}
            v_mul_f32 v{a+2}, v{a+2}, v{a+2}
            v_mul_f32 v{a+2}, {fx(0.044715)}, v{a+2}
            v_mul_f32 v{c+2}, v{c+1}, v{a+2}""")
        m[-1].put = {("v", c + 2): ("C", i)}
        m[-2].put = {("v", a + 2): ("M", i)}; m[-1].need = {("v", a + 2): ("M", i)}
        return rd, m
    def epilogue(i, packed=False):
        c = CN + 4 * (i & 1)
        out = []
        for t in range(3):
            a = ACC + 12 * (i & 1) + 4 * t; s = CS + 4 * t; x = T
            p2 = lambda r: f"v[{r}:{r+1}]"
            if packed:
                out += mk(f"""v_pk_fma_f32 {p2(a)}, {p2(c)}, {p2(s)}, {p2(a)} op_sel_hi:[0,1,1] neg_lo:[1,0,0] neg_hi:[1,0,0]
                    v_pk_fma_f32 {p2(a+2)}, {p2(c)}, {p2(s+2)}, {p2(a+2)} op_sel_hi:[0,1,1] neg_lo:[1,0,0] neg_hi:[1,0,0]
                    v_pk_mul_f32 {p2(x)}, {p2(a)}, {p2(a)}
                    v_pk_fma_f32 {p2(x)}, {p2(x)}, {p2(c+2)}, {p2(c)} op_sel:[0,0,1] op_sel_hi:[1,0,1]
                    v_pk_mul_f32 {p2(x)}, {p2(x)}, {p2(a)}
                    v_exp_f32 v{x}, v{x}
                    v_exp_f32 v{x+1}, v{x+1}
                    v_pk_mul_f32 {p2(a)}, {p2(a)}, {p2(a+2)}
                    v_pk_fma_f32 {p2(x)}, {p2(x)}, {p2(c+2)}, {p2(c+2)} op_sel:[0,1,1] op_sel_hi:[1,1,1]
                    v_rcp_f32 v{x}, v{x}
                    v_rcp_f32 v{x+1}, v{x+1}""")
                if t == 2: out += mk(f"v_permlane32_swap_b32 v{OUT+1}, v{OUT+3}")
                out += mk(f"v_pk_mul_f32 {p2(a)}, {p2(a)}, {p2(x)}\nv_cvt_pk_bf16_f32 v{OUT+t}, v{a}, v{a+1}")
                continue
            first = [I(f"v_fma_f32 v{a+k}, -v{c}, v{s+k}, v{a+k}", need={("v", a + k): ("G", i), ("v", c + 2): ("C", i)}) for k in range(4)]
            out += first[:2] + mk(f"v_mul_f32 v{x}, v{a}, v{a}\nv_mul_f32 v{x+1}, v{a+1}, v{a+1}")
            out += mk(f"""v_fma_f32 v{x}, v{x}, v{c+2}, v{c+1}
                v_fma_f32 v{x+1}, v{x+1}, v{c+2}, v{c+1}
                v_mul_f32 v{x}, v{x}, v{a}
                v_mul_f32 v{x+1}, v{x+1}, v{a+1}
                v_exp_f32 v{x}, v{x}
                v_exp_f32 v{x+1}, v{x+1}""") + first[2:] + mk(f"""v_fma_f32 v{x}, v{x}, v{c+3}, v{c+3}
                v_fma_f32 v{x+1}, v{x+1}, v{c+3}, v{c+3}
                v_rcp_f32 v{x}, v{x}
                v_rcp_f32 v{x+1}, v{x+1}
                v_mul_f32 v{a}, v{a}, v{a+2}
                v_mul_f32 v{a+1}, v{a+1}, v{a+3}
                v_mul_f32 v{a}, v{a}, v{x}
                v_mul_f32 v{a+1}, v{a+1}, v{x+1}
                v_cvt_pk_bf16_f32 v{OUT+t}, v{a}, v{a+1}""")
            if t == 2: out[-9:-9] = mk(f"v_permlane32_swap_b32 v{OUT+1}, v{OUT+3}")
        out += mk(f"""s_add_u32 s3, s56, {i * 192 * 256}
            v_permlane32_swap_b32 v{OUT}, v{OUT+2}
            v_permlane16_swap_b32 v{OUT}, v{OUT+1}
            v_permlane16_swap_b32 v{OUT+2}, v{OUT+3}""")
        out[-1].put = {("v", OUT + 3): ("O", i)}
        out.append(I(f"buffer_store_dwordx4 v[{OUT}:{OUT+3}], v{vAST}, {SRD}, s3 offen sc1", tag=f"st{i}", need={("v", OUT + 3): ("O", i)}))
        return out

    g = Sched(main)
    LEAD = o.get("lead", 1)
    bar = {}
    for i in range(8):
        s0 = start[i]
        so = g.add(stats_out(i), s0 + 24, s0 + 30, prio=2)
        w = ([f"@vm h{i // 2 + 1}"] if i & 1 and i < 7 else []) + [f"@lgkm sp{i}", "s_barrier"]
        bar[i] = g.add(mk(w), s0 + o.get("bar", 35), s0 + 42, after=[(so[-1], 4)], prio=2)[-1]
        rd, m = stats_in(i)
        r = g.add(rd, s0, s0 + 46, after=[(bar[i], 0)], prio=2)
        g.add(mk(f"@lgkm sr{i}") + m, s0, s0 + 69, after=[(r[-1], 6)])
        if i > 0:
            ep = g.add(epilogue(i - 1), s0 + 1, s0 + (o.get("epe", 70) if i < 7 else o.get("epe7", 50)))
            if i < 7: g.add(f3_signal(i - 1), s0, start[i + 1] + 69, after=[(ep[-1], o.get("drain", 45))], prio=2)
    for b in range(31):
        r = g.add(reads(b + 1), bstart[b], bstart[b + 1] - 1 - LEAD, pace=True, prio=1, after=[(bar[b // 4], 0)] if b % 8 == 7 else None)
    for b in range(32):
        per = 5 if b % 4 == 0 else 3
        for q in range(3):
            k = bstart[b] + 2 * q * per - 1
            if k >= 0: g.add(mk(f"@lgkm b{b}_{q}"), k, k, prio=3)
    pb = g.add(mk(f"s_mov_b32 s73, {F2B - F2}") + e.poll_issue(0, PD, "s73"), o.get("pbi", 14), o.get("pbi", 14) + 3)
    a = e.poll_check(0, PD, "s73")
    cb = g.add([a[0], a[1:]], 0, 69, after=[(pb[-1], 36)], prio=2)
    e(f"""v_lshl_add_u32 v{T+2}, s{sW}, 10, v{T+6}
        v_lshl_add_u32 v{T+3}, s{sW}, 5, v{T+7}""")
    mv = []
    for c in range(4):
        lo = start[2 * c] + (4 if c == 0 else 0); hi = start[2 * c + 1] + 60
        for ra, ro, wa, wo in ((T + 2, 0, T + 3, 0), (T + 6, 4096, T + 7, 128)):
            mv.append(g.add(mk(f"ds_read_b64_tr_b16 v[{T+4}:{T+5}], v{ra} offset:{10240 * (c % 3) + ro}"), lo, hi, after=[(mv[-1][-1], 2)] if mv else None, prio=1))
            mv.append(g.add(mk(f"ds_write_b64 v{wa}, v[{T+4}:{T+5}] offset:{2816 * c + wo}"), lo, hi + 4, after=[(mv[-1][-1], 12)], prio=1))
    parts = [chunk(1), chunk(2), grp(45) + dma(vW2, 0, 33, 0, NPK, "pk"), w2_loads(0, 7), chunk(3), w2_loads(7, 35),
             dma(vW2, 5, 58, 10240, 10, "pk"), grp(45) + dma(vW2, NPK, 58, 20480, 15 - NPK, "pk")]
    ld = g.add([x for p in parts for x in p], 0, start[7] + 30)
    first = [sum(len(p) for p in parts[:k]) for k in range(len(parts))]
    for k, a in ((1, cb[-1]), (4, bar[2]), (6, bar[4]), (7, bar[6])): ld[first[k]]["after"] = [(a, 0)]
    t, per = 0.0, (start[6] + 42) / (75 + NPK)
    for k, x in enumerate(ld):
        vm = x["ins"][0].kind == "vm"
        x["lo"] = int(t) - (0 if vm else 3); x["hi"] = int(t) + (4 if vm else 1)
        if vm: t += per if k < first[7] else o.get("pk2", 4)
    s7 = start[7]
    dead = lambda n: s7 + (5 * (n // 3) + 4 if n < 15 else 25 + 3 * (n // 3 - 5) + 2)
    p0 = g.add(f3_issue(0), start[5] + 10, start[5] + 20)
    c0 = g.add(f3_check(0), 0, start[6], after=[(p0[-1], 40)])
    p1 = g.add(f3_issue(1), start[6] + 20, start[6] + 30, after=[(c0[-1], 1)])
    c1 = g.add(f3_check(1), 0, s7 + 3, after=[(p1[-1], 40)])
    nl7 = o.get("nl7", 12)
    it = g.add(late_loads(0, nl7), s7 + 14, s7 + o.get("x7e", 68), pace=True, win=3, after=[(c1[-1], 0), (ld[-1], 0)])
    n = 0
    for x in it:
        if x["ins"][0].kind == "vm":
            x["lo"] = max(x["lo"], dead(n)); x["hi"] = max(x["hi"], x["lo"]); n += 1
    if o.get("gst"):
        for i in range(1, 8): g.add(e.stamp(3 + i if i < 7 else 13), start[i], start[i], prio=3)
    e("s_waitcnt vmcnt(0)\ns_barrier")
    if o.get("fst"): e(e.stamp(2))
    e.pre_g1 = list(e.p)
    e.g1 = reads(0) + mk("@lgkm b0_0") + g.run(); e.g1m = (main, start)
    e(e.g1)
    if o.get("fst"): e(e.stamp(3))
    if o.get("gst"): o["fst"] = 0
    RD, RR, RU, O2 = 50, 82, 86, 120
    A2 = lambda c: (10, 30, 94, 10)[c]
    vPW, vPR, vRR, vOS = TA, TA + 1, TA + 2, TA + 3
    e(epilogue(7, True))
    e(f3_signal(6))
    nlt = nl7 + o.get("nlt", 2)
    e(late_loads(nl7, nlt))
    e(f"""v_and_b32 v{T+4}, 15, v1
        v_lshrrev_b32 v{T+5}, 4, v1
        v_mul_u32_u24 v{vPW}, 336, v{T+4}
        v_lshl_add_u32 v{vPW}, v{T+5}, 4, v{vPW}
        s_mul_i32 s48, s{sW}, 5376
        s_add_u32 s48, s48, {PART}
        v_add_u32 v{vPW}, s48, v{vPW}""")
    setup2 = mk(f"""v_min_u32 v{T+4}, 39, v1
        v_mul_u32_u24 v{T+5}, 6554, v{T+4}
        v_lshrrev_b32 v{T+5}, 16, v{T+5}
        v_mul_u32_u24 v{T+7}, 10, v{T+5}
        v_sub_u32 v{T+4}, v{T+4}, v{T+7}
        s_lshl_b32 s48, s{sW}, 2
        v_add_u32 v{T+5}, s48, v{T+5}
        v_mul_u32_u24 v{vPR}, 336, v{T+5}
        v_lshl_add_u32 v{vPR}, v{T+4}, 5, v{vPR}
        v_mul_u32_u24 v{vRR}, 176, v{T+5}
        v_lshl_add_u32 v{vRR}, v{T+4}, 4, v{vRR}
        v_add_u32 v{vRR}, {RES}, v{vRR}
        v_mul_u32_u24 v{vOS}, 1280, v{T+5}
        v_lshl_add_u32 v{vOS}, v{T+4}, 4, v{vOS}
        v_cmp_gt_u32 s[50:51], 40, v1
        v_mov_b32 v{T+5}, 0x40000000
        s_mov_b32 s64, s30
        s_mov_b32 s65, s31
        s_mov_b32 s66, {2048 * 1280}
        s_mov_b32 s67, 0x20000
        v_cndmask_b32 v{vOS}, v{T+5}, v{vOS}, s[50:51]
        s_lshl1_add_u32 s46, s62, s72
        s_mul_i32 s46, s46, {16 * 1280}
        s_mul_i32 s48, s68, 160
        s_add_u32 s46, s46, s48""")
    assert PART == 0
    main = []
    for c, k in order:
        if True:
            for t in range(5):
                a = A2(c) + 4 * t
                need = dict(tagput(w2reg[5 * k + t], ("W2", 5 * k + t))); need.update(tagput(actreg[c, k], ("X", c, k)))
                main.append(I(f"{MF} {r4('v', a)}, {r4(*w2reg[5 * k + t])}, {r4(*actreg[c, k])}, " + ("0" if k == 0 else r4('v', a)), need=need))
                if k == 11: main[-1].put = tagput(("v", a), ("P", c))
    def part_write(c):
        return [I(f"ds_write_b128 v{vPW}, {r4('v', A2(c) + 4 * t)} offset:{(c % 3) * 21504 + 64 * t}", tag=f"pw{c}", need=tagput(("v", A2(c) + 4 * t), ("P", c))) for t in range(5)]
    def res_read(c):
        rd = mk(f"ds_read_b128 {r4('v', RR)}, v{vRR} offset:{2816 * c}", tag=f"rr{c}")
        un = mk([f"v_lshlrev_b32 v{RU+2*k}, 16, v{RR+k}\nv_and_b32 v{RU+2*k+1}, 0xffff0000, v{RR+k}" for k in range(4)])
        return rd, un
    def part_read(c):
        return mk([f"ds_read_b128 {r4('v', RD + 8 * w + 4 * hf)}, v{vPR} offset:{(c % 3) * 21504 + 5376 * w + 16 * hf}" for w in range(4) for hf in range(2)], tag=f"pr{c}")
    def finish(c, packed):
        out = [f"s_add_u32 s47, s46, {c * 512 * 1280}"]
        for w in range(4):
            if packed: out += [f"v_pk_add_f32 v[{RU+2*k}:{RU+2*k+1}], v[{RU+2*k}:{RU+2*k+1}], v[{RD+8*w+2*k}:{RD+8*w+2*k+1}]" for k in range(4)]
            else: out += [f"v_add_f32 v{RU+k}, v{RU+k}, v{RD+8*w+k}" for k in range(8)]
        out += [f"v_cvt_pk_bf16_f32 v{O2+k}, v{RU+2*k}, v{RU+2*k+1}" for k in range(4)]
        out += [f"buffer_store_dwordx4 {r4('v', O2)}, v{vOS}, {SRD2}, s47 offen" + (" sc1" if o.get("osc") else "")]
        return mk(out)
    g = Sched(main, dense=True)
    su = g.add(setup2, 0, 40)
    sg = g.add(f3_signal(7), o.get("sig7", 30), o.get("sig7", 30) + 3, prio=3)
    up = g.add(mk(f"v_add_u32 v{vPK}, s58, v{vL16}\nv_add_u32 v{T+6}, s33, v{vL16}\n@vm pk") + [unpark(n) for n in range(35, 60)], 0, 60, pace=True)
    b0 = g.add(mk("@lgkm up\ns_barrier"), 66, 69, after=[(up[-1], 4)])
    ll = g.add(late_loads(nlt, 24), 0, o.get("lle", 46), pace=True, win=2, prio=1)
    p2 = g.add(f3_issue(2), o.get("i2", 2), o.get("i2", 2) + 3, prio=2)
    c2 = g.add(f3_check(2), 0, 100, after=[(p2[-1], o.get("rtt", 36)), (sg[-1], 0)], prio=2)
    x2 = g.add(act_loads(2), o.get("lle", 46), o.get("x2e", 100), pace=True, win=2, after=[(c2[-1], 0), (ll[-1], 0)], prio=1)
    p3 = g.add(f3_issue(3), o.get("i3", 100), 150, after=[(c2[-1], 1)], prio=2)
    c3 = g.add(f3_check(3) + [e.stamp(5)] * bool(o.get("fst") and e.stamps), 0, 176, after=[(p3[-1], o.get("rtt", 36))], prio=2)
    g.add(act_loads(3), 66, 179, after=[(c3[-1], 0), (x2[-1], 0)], prio=2)
    for n, (c, k) in enumerate(order):
        if n: g.add(mk(f"@vm x{c}_{k}"), 5 * n - 1, 5 * n - 1, prio=-1)
    done = {c: 5 * order.index((c, 11)) + 5 for c in range(4)}
    w0 = g.add(part_write(0) + part_write(1), done[0] + 1, done[1] + 22, pace=True)
    for t in range(5): w0[5 + t]["lo"] = max(w0[5 + t]["lo"], done[1] + 3)
    br = {0: g.add(mk("@lgkm pw1\ns_barrier"), 0, done[1] + 30, after=[(w0[-1], 4)], prio=2)[-1]}
    br[1] = br[0]
    w2 = g.add(part_write(2), done[2] + 3, done[2] + 14, pace=True)
    prev = su[-1]
    for c in range(4):
        end = (done[2] - 4, done[2] + 20, 234, 239)[c]
        rd, un = res_read(c)
        r = g.add(rd, 0, end, after=[(prev, 0)])
        u = g.add(mk(f"@lgkm rr{c}") + un, 0, end, after=[(r[-1], 4)])
        if c == 2: br[2] = g.add(mk("@lgkm pw2\ns_barrier"), 0, done[2] + 24, after=[(w2[-1], 4)], prio=2)[-1]
        if c < 3:
            pr = g.add(part_read(c), 0, end, after=[(br[c], 0), (prev, 0)], prio=1)
            prev = g.add(mk(f"@lgkm pr{c}") + finish(c, False), 0, end, after=[(pr[-1], 4), (u[-1], 0)])[-1]
    if o.get("fst"): e(e.stamp(4))
    e.pre_g2 = list(e.p); e.g2 = g.run()
    e(e.g2)
    if o.get("fst"): e(e.stamp(10))
    e(part_write(3)); e("s_waitcnt lgkmcnt(0)\ns_barrier")
    e(part_read(3)); e(finish(3, True))
    if o.get("fst"): e(e.stamp(11)); e("s_waitcnt vmcnt(0)"); e(e.stamp(12))
    e.models = (model_cycles(e.g1), model_cycles(e.g2))
```

```python
import struct, math, sys
from asmlib import I, mk, finalize, Gaps, Sched, model_cycles, align8

NAME = "sequential_preLN__ssm_conv_s4__geglu_ffn__prompt"
def fx(x): return hex(struct.unpack("<I", struct.pack("<f", x))[0])
LOG2E = math.log2(math.e)

EPOCH, F1, FW, F2, F2B, F3, DBG = 0, 0x1000, 0x11000, 0x21000, 0x31000, 0x60000, 0x50000
HOFF = 0x8000
UP = 161 * 256
UT, XT, HT, W1P, W2P, ACT, WS_SIZE = 1 << 20, 4 << 20, 7 << 20, 10 << 20, 14 << 20, 16 << 20, 23 << 20
U0, X0, CH0, CHS = 0, 20480, 36864, 21760
PS, A5, A3, A9, A7 = 832, 0, 3328, 6656, 9984 + 64
KTS = 272
KN = 13376; W4 = 55 * KTS; W4P = 2832; K2 = W4 + 2 * W4P; K3 = K2 + 752
LNU = CH0 + 4 * CHS; LNS = 1344
SLOT = 40960
STP = 3 * SLOT
RES = STP + 2048
RST = 160 * 1024 - 4 * 6144
PART = 0
LDS_BYTES = 160 * 1024
assert LNU + 10752 <= LDS_BYTES and RES + 4 * 2816 <= RST

sW, sCLS, sIDX = 36, 37, 38
SRD = "s[40:43]"; TAG = "s[44:45]"; SRD2 = "s[64:67]"
SPIN = 20000

class K:
    def __init__(self, stop=None, stamps=False, opt=None):
        self.p = []; self.stop = stop; self.stamps = stamps; self.nlab = 0
        self.o = dict(opt or {}); self.in_ffn = self.in_ln = False; self.cold = []
    def __call__(self, x, **kw): self.p += mk(x, **kw)
    def lab(self, s):
        self.nlab += 1; return f"L_{s}_{self.nlab}"
    def stamp(self, k):
        if self.o.get("nost") and k: return []
        if self.o.get("fst") and not self.in_ffn and (k not in (0, 1, 6, 7, 8, 13) or (k == 1 and self.in_ln)): return []
        return mk(f"s_memrealtime s[{74 + 2 * k}:{75 + 2 * k}]") if self.stamps else []

    vSIG, vTAG = 177, 178
    def signal_setup(self):
        return mk(f"""s_lshl_b32 s48, s2, 4
            v_lshl_add_u32 v{self.vSIG}, v0, 12, s48
            v_cmp_gt_u32 vcc, 8, v0
            v_mov_b32 v{self.vTAG}, 0x40000000
            v_cndmask_b32 v{self.vSIG}, v{self.vTAG}, v{self.vSIG}, vcc""")
    def hint_setup(self, dst, sub):
        return mk(f"""s_lshl_b32 s48, s2, 7
            s_add_u32 s48, s48, {HOFF}
            s_sub_u32 s48, s48, {sub}
            v_cmp_eq_u32 vcc, 8, v0
            v_mov_b32 v{dst}, s48
            v_cndmask_b32 v{dst}, v{self.vSIG}, v{dst}, vcc""")
    def hint_wait(self, region):
        L = self.lab("hint")
        return mk(f"""s_sub_u32 s48, s2, 160
            s_lshl_b32 s48, s48, 7
            s_add_u32 s48, s48, {region + HOFF}
            v_mov_b32 v196, s48
            s_cmp_lg_u32 s{sW}, 0
            s_cbranch_scc1 {L}""") + self.poll_issue(196, 192) + self.poll_check(196, 192, slp=4) + mk(f"{L}:\ns_barrier")
    def signal_all(self, region, va=None):
        return mk(f"s_mov_b32 s48, {region}\nbuffer_store_dwordx2 v[{self.vTAG}:{self.vTAG+1}], v{va or self.vSIG}, {SRD}, s48 offen sc1")
    def poll_issue(self, va, vd, so="0"):
        return mk(f"buffer_load_dwordx2 v[{vd}:{vd+1}], v{va}, {SRD}, {so} offen sc1")
    def poll_check(self, va, vd, so="0", slp=2):
        A, B = self.lab("retry"), self.lab("seen")
        self.cold.append(f"""{A}:
    s_mov_b32 s49, 0
{A}_l:
    s_mov_b64 exec, vcc
    s_sleep {slp}
    buffer_load_dwordx2 v[{vd}:{vd+1}], v{va}, {SRD}, {so} offen sc1
    s_add_u32 s49, s49, 1
    s_waitcnt vmcnt(0)
    v_cmp_ne_u64 vcc, {TAG}, v[{vd}:{vd+1}]
    s_mov_b64 exec, -1
    s_cmp_ge_u32 s49, {SPIN}
    s_cbranch_scc1 {B}
    s_nop 1
    s_cbranch_vccnz {A}_l
    s_branch {B}""")
        br = I(f"s_cbranch_vccnz {A}")
        br.uses |= {("v", va), ("v", vd), ("v", vd + 1)} | ({("s", int(so[1:]))} if so != "0" else set())
        return mk(f"v_cmp_ne_u64 vcc, {TAG}, v[{vd}:{vd+1}]") + [br] + mk(f"{B}:")

    def prologue(self):
        e = self
        e(f"s_cmp_ge_u32 s2, 256\ns_cbranch_scc1 L_end")
        e(self.stamp(0))
        e(f"""s_load_dwordx16 s[4:19], s[0:1], 0
            s_load_dwordx16 s[20:35], s[0:1], 64
            s_getpc_b64 s[46:47]
            L_pc:
            v_and_b32 v1, 63, v0
            v_lshrrev_b32 v2, 6, v0
            s_lshr_b32 s{sIDX}, s2, 3
            v_readfirstlane_b32 s{sW}, v2
            s_mul_i32 s48, s{sIDX}, 14
            v_min_u32 v3, 13, v0
            v_add_u32 v3, s48, v3
            v_lshlrev_b32 v3, 7, v3
            v_min_u32 v3, L_code_end-{NAME}_kernel-64, v3
            global_load_dword v4, v3, s[46:47]
            s_and_b32 s{sCLS}, s2, 7
            v_lshrrev_b32 v5, 5, v0
            v_and_b32 v6, 31, v0
            s_lshl_b32 s48, s2, 3
            v_add_u32 v7, s48, v5
            v_mul_u32_u24 v7, 1280, v7
            v_lshl_add_u32 v2, v6, 2, v7
            v_lshl_add_u32 v7, v6, 4, v7""")

    def x_loads(self):
        self(f"""global_load_dwordx4 v[10:13], v7, s[4:5]
            global_load_dwordx4 v[14:17], v7, s[4:5] offset:512
            global_load_dword v18, v2, s[4:5] offset:1024
            global_load_dword v19, v2, s[4:5] offset:1152
            s_mov_b32 s40, s34
            s_mov_b32 s41, s35
            s_mov_b32 s42, {WS_SIZE}
            s_mov_b32 s43, 0x20000
            v_mov_b32 v8, {EPOCH}
            buffer_load_dword v9, v8, {SRD}, 0 offen sc1""")

    def conv_param_loads(self):
        e = self
        e(f"""s_mul_i32 s50, s{sCLS}, 80
            s_lshl2_add_u32 s50, s{sIDX}, s50
            s_add_u32 s50, s50, s{sW}
            s_mul_i32 s48, s50, 384
            v_lshl_add_u32 v34, v1, 2, s48
            v_lshl_add_u32 v35, v1, 1, s48
            s_lshl_b32 s48, s50, 1
            v_mov_b32 v36, s48
            global_load_ushort v32, v36, s[18:19]""")
        for a in range(6):
            e(f"global_load_dword v{20+a}, v34, s[{6+2*a}:{7+2*a}]")
        for a in range(6):
            e(f"global_load_ushort v{26+a}, v35, s[{6+2*a}:{7+2*a}] offset:256")
        e("global_load_ushort v33, v36, s[20:21]")

    def ln_consts(self):
        self(f"""v_mul_u32_u24 v141, {LNS}, v5
            v_add_u32 v141, {LNU}, v141
            v_lshl_add_u32 v140, v6, 2, v141
            v_add_u32 v140, 1024, v140
            v_lshl_add_u32 v141, v6, 4, v141
            v_and_b32 v143, 3, v5
            v_mul_u32_u24 v143, {2 * LNS}, v143
            v_add_u32 v143, {LNU + 1280}, v143
            v_mov_b32 v2, 0
            v_mov_b32 v3, 0
            ds_write_b64 v143, v[2:3]
            v_lshrrev_b32 v139, 2, v5
            v_lshl_add_u32 v143, v139, 1, v143
            v_bfe_u32 v142, v1, 2, 2
            v_mul_u32_u24 v142, {LNS}, v142
            v_lshrrev_b32 v139, 4, v1
            v_lshl_add_u32 v142, v139, 5, v142
            v_and_b32 v139, 3, v1
            v_lshl_add_u32 v142, v139, 3, v142
            s_lshl_b32 s48, s{sW}, 7
            s_add_u32 s48, s48, {LNU}
            v_add_u32 v142, s48, v142
            s_lshr_b32 s51, s2, 2
            s_and_b32 s48, s51, 7
            s_lshl_b32 s49, s2, 1
            s_and_b32 s49, s49, 4
            s_xor_b32 s48, s48, s49
            v_xor_b32 v139, s48, v139
            v_lshrrev_b32 v8, 2, v1
            v_lshlrev_b32 v8, 8, v8
            v_lshl_add_u32 v8, v139, 4, v8
            v_cmp_gt_u32 vcc, 132, v0
            v_mov_b32 v37, 0x40000000
            s_mul_i32 s51, s51, {UP}
            s_and_b32 s48, s2, 1
            v_cndmask_b32 v37, v37, v8, vcc
            s_lshl_b32 s48, s48, 7
            s_add_u32 s51, s51, s48
            s_lshl_b32 s48, s{sW}, 12
            s_add_u32 s51, s51, s48
            s_add_u32 s51, s51, {UT}
            s_add_u32 s52, s51, 16384
            s_add_u32 s53, s51, 32768
            s_mov_b32 s54, 0x3f803f80""")
        self(self.signal_setup())

    def ln1(self):
        keep, self.p, self.in_ln = self.p, [], True
        e = self
        for i in range(10):
            e(f"v_dot2c_f32_bf16 v2, s54, v{10+i}\nv_dot2c_f32_bf16 v3, v{10+i}, v{10+i}")
        e(self.stamp(1))
        un = [f"v_lshlrev_b32 v{80+2*i}, 16, v{10+i}" for i in range(10)] + [f"v_and_b32 v{81+2*i}, 0xffff0000, v{10+i}" for i in range(10)]
        e(un.pop()); e(un.pop()); e(un.pop())
        for m in ("quad_perm:[1,0,3,2]", "quad_perm:[2,3,0,1]", "row_half_mirror", "row_mirror"):
            e(f"v_add_f32_dpp v2, v2, v2 {m} row_mask:0xf bank_mask:0xf\nv_add_f32_dpp v3, v3, v3 {m} row_mask:0xf bank_mask:0xf")
            e(un.pop())
        e("v_mov_b32 v4, v2\nv_mov_b32 v5, v3"); e(un.pop()); e(un.pop())
        e("v_permlane16_swap_b32 v4, v2\nv_permlane16_swap_b32 v5, v3")
        e(f"""v_add_f32 v2, v2, v4
            v_add_f32 v3, v3, v5
            v_mul_f32 v2, {fx(1/640)}, v2
            v_mul_f32 v3, {fx(1/640)}, v3
            v_fma_f32 v3, -v2, v2, v3
            v_max_f32 v3, 0, v3
            v_cvt_pk_bf16_f32 v2, v2, v3
            v_and_b32 v3, 0xffff0000, v2
            v_add_f32 v3, {fx(1e-5)}, v3
            v_cvt_pk_bf16_f32 v3, v3, v3
            v_lshlrev_b32 v3, 16, v3
            v_sqrt_f32 v3, v3
            v_lshlrev_b32 v2, 16, v2
            v_cvt_pk_bf16_f32 v3, v3, v3
            v_lshlrev_b32 v3, 16, v3
            v_rcp_f32 v4, v3""")
        e(un)
        e("v_mul_f32_e64 v6, -v2, v4")
        for i in range(10):
            e(f"v_pk_fma_f32 v[{80+2*i}:{81+2*i}], v[{80+2*i}:{81+2*i}], v[4:5], v[6:7] op_sel_hi:[1,0,0]")
        for i in range(10):
            e(f"v_cvt_pk_bf16_f32 v{128+i}, v{80+2*i}, v{81+2*i}")
        e("ds_write_b128 v141, v[128:131]\nds_write_b128 v141, v[132:135] offset:512\nds_write2_b32 v140, v136, v137 offset1:32")
        e(f"ds_write_b16_d16_hi v143, v3 offset:{LNS}\nds_write_b16_d16_hi v143, v2 offset:{LNS + 4}")
        e("s_waitcnt lgkmcnt(0)\ns_barrier")
        for k in range(3):
            e(f"""ds_read_b64_tr_b16 v[{100+4*k}:{101+4*k}], v142 offset:{512*k}
                ds_read_b64_tr_b16 v[{102+4*k}:{103+4*k}], v142 offset:{512*k + 4*LNS}""")
        e(f"""v_readfirstlane_b32 s44, v9
            s_add_u32 s44, s44, 1
            s_xor_b32 s45, s44, 0x5bd1e995
            v_mov_b32 v{e.vTAG}, s44
            v_mov_b32 v{e.vTAG+1}, s45""")
        for k in range(3):
            e(f"buffer_store_dwordx4 v[{100+4*k}:{103+4*k}], v{8 if k < 2 else 37}, {SRD}, s{51+k} offen sc1", tag="ln")
        e(self.stamp(2))
        out, self.p, self.in_ln = self.p, keep, False
        return out

    def ln_publish(self):
        return mk("@vm ln\ns_barrier") + self.signal_all(F1) + self.stamp(3)

    TB0 = 200
    vUB, vBB, vHST, vDMA, vPOLL, vST = 200, 208, 209, 210, 211, 212
    vAB, vBW, vR2, vR3, vK2A, vK3A = 216, 217, 218, 220, 222, 223
    vKTX, vKTY, vKNW, vK2W, vK3W, vW4S, vW4D, vW4S3, vW4D3, vZB = range(224, 234)
    vBAND, vL16 = 236, 252

    def lane_table(self):
        e = self
        tab = {r: [0] * 64 for r in range(200, 252)}
        ua = lambda ap, hh, s: 256 * ap + 128 * (hh & 1) + 16 * ((4 * (hh >> 1) + s) ^ (ap & 7))
        for l in range(64):
            col, h, q, r, c, h2 = l & 15, l >> 4, (l >> 2) & 3, l & 3, l & 31, l >> 5
            for j in range(8): tab[e.vUB + j][l] = U0 + 2048 + ua(col - j, h, 0)
            o8 = 2 * col - 1 + h
            tab[e.vBB][l] = U0 + 4096 + ua(o8 >> 2, o8 & 3, 0)
            tab[e.vHST][l] = 40960 * col + 16 * h
            tab[e.vDMA][l] = UT + 40960 + UP * h + 16 * col
            tab[e.vPOLL][l] = F1 + 16 * l
            for s in range(4): tab[e.vST + s][l] = U0 + 2048 + ua(col, h, s)
            tab[e.vAB][l] = 32 * (q - h) + 8 * r
            tab[e.vBW][l] = PS * ((h + 3) & 3) + 8 * (col + ((h + 7) >> 2))
            for mt in range(2):
                v = 2 * r + mt + q
                tab[e.vR2 + mt][l] = (A3 if q & 1 else A5) + PS * (v & 3) + 8 * ((v >> 2) + 2 * h)
                v = 2 * r + mt + 2 * q
                tab[e.vR3 + mt][l] = (A7 if q & 1 else A9) + PS * (v & 3) + 8 * ((v >> 2) + 4 * h)
            tab[e.vK2A][l] = 16 * (h - col); tab[e.vK3A][l] = 8 * (2 * h - col)
            tab[e.vKTX][l] = KTS * (c - 16 if c > 22 else c) + 16 * h2
            tab[e.vKTY][l] = KTS * c + 16 * h2
            tab[e.vKNW][l] = 8 * (2 * c + h2)
            tab[e.vK2W][l] = -(128 * h2 + 4 * c); tab[e.vK3W][l] = -(128 * h2 + 2 * c)
            tab[e.vW4S][l] = 8 * l
            tab[e.vW4D][l] = W4P * (l & 1) + 32 * (l >> 1)
            tab[e.vW4S3][l] = {0: 1032, 1: 1040, 24: 1048, 25: 1056}.get(l, 0)
            tab[e.vW4D3][l] = tab[e.vW4D][l] + 2176 if l < 40 else 0
            tab[e.vZB][l] = {16: KN, 17: KN + 1040, 18: KN + 1056}.get(l, (A5, A3, A9, A7)[q] + PS * r)
            for rr in range(e.vAB, e.vZB + 1): tab[rr][l] += CH0
            for b, w in enumerate((2, 1, 4, 3)):
                for m in range(4):
                    on = lambda k: 0x3F80 if abs(8 * h + k - 4 - col) <= w else 0
                    tab[e.vBAND + 4 * b + m][l] = on(2 * m) | on(2 * m + 1) << 16
        words = [tab[200 + 4 * k + i][l] for k in range(13) for l in range(64) for i in range(4)]
        return "\n".join(".long " + ",".join(hex(x) if x > 99999 else str(x) for x in words[n:n + 16]) for n in range(0, len(words), 16))
    def table_loads(self, ks):
        return [I(f"global_load_dwordx4 v[{200+4*k}:{203+4*k}], v{254 + (k >= 8)}, s[46:47] offset:{1024 * (k % 8) - 4096}") for k in ks]

    def conv_consts_a(self):
        e = self
        e(f"""s_mul_i32 s70, s{sW}, {CHS}
            v_lshlrev_b32 v{e.vL16}, 4, v1
            v_add_u32 v254, L_table-L_pc+4096, v{e.vL16}
            v_add_u32 v255, 8192, v254
            v_mov_b32 v190, 0
            v_mov_b32 v191, 0
            v_mov_b32 v192, 0
            v_mov_b32 v193, 0
            v_lshlrev_b32 v186, 4, v0
            v_add_u32 v187, s70, v{e.vL16}
            v_mov_b32 v188, 0x3f80
            s_mov_b32 m0, s70
            ds_write_b128 v186, v[190:193] offset:{U0}
            ds_write_b128 v187, v[190:193] offset:{CH0 + W4}
            ds_write_b128 v187, v[190:193] offset:{CH0 + W4 + W4P}
            ds_write_b128 v187, v[190:193] offset:{CH0 + K2}
            ds_write_b128 v187, v[190:193] offset:{CH0 + K2 + 112}
            ds_write_addtid_b32 v188 offset:{CH0}
            s_lshl_b32 s59, s{sW}, 12""")
    def conv_fix(self):
        e = self
        a = mk(f"""v_add_u32 v{e.vKTX}, s70, v{e.vKTX}
            v_add_u32 v{e.vKTY}, s70, v{e.vKTY}
            s_lshl_b32 s48, s{sCLS}, 12
            s_lshl_b32 s49, s{sW}, 10
            s_add_u32 s48, s48, s49
            v_add_u32 v{e.vPOLL}, s48, v{e.vPOLL}
            s_mul_i32 s49, s{sW}, {16 * UP}
            v_add_u32 v176, s49, v{e.vDMA}
            s_lshr_b32 s48, s50, 2
            s_sub_u32 s48, 160, s48
            s_lshl_b32 s48, s48, 8
            v_subrev_u32 v{e.vDMA}, s48, v176
            v_add_u32 v{e.vZB}, s70, v{e.vZB}""")
        b = mk([f"v_add_u32 v{r}, s55, v{r}" for r in list(range(e.vKNW, e.vZB)) + list(range(e.vAB, e.vKTX))])
        b += mk(f"s_lshl_b32 s68, s{sW}, 4") + mk([f"v_xor_b32 v{r}, s68, v{r}" for r in range(e.vUB, e.vBB + 1)])
        b += mk(f"""s_lshl_b32 s68, s50, 2
            s_and_b32 s68, s68, 32
            v_xor_b32 v{e.vHST}, s68, v{e.vHST}
            s_lshl_b32 s68, s50, 6
            v_add_u32 v{e.vHST}, s68, v{e.vHST}
            s_mul_i32 s69, s{sIDX}, {-7 * 16}
            s_mul_i32 s48, s{sCLS}, {19 * 16}
            s_add_u32 s69, s69, s48""") + e.hint_setup(199, "s69")
        return a, b

    @staticmethod
    def cmul(d, z, w, t):
        return [f"v_pk_mul_f32 v[{t}:{t+1}], v[{z}:{z+1}], v[{w}:{w+1}] op_sel:[1,1] op_sel_hi:[1,0] neg_lo:[1,0]",
                f"v_pk_fma_f32 v[{d}:{d+1}], v[{z}:{z+1}], v[{w}:{w+1}], v[{t}:{t+1}] op_sel_hi:[0,1,1]"]

    def kgen_setup(self, j):
        out = []
        for a in range(6):
            src = 20 + a if j < 2 else 26 + a
            out.append(f"v_and_b32 v{146+a}, 0xffff0000, v{src}" if j == 1 else f"v_lshlrev_b32 v{146+a}, 16, v{src}")
        out += f"""v_mul_f32 v146, s56, v146
            v_mul_f32 v147, s57, v147
            v_mul_f32 v148, s58, v148
            v_mul_f32 v149, s58, v149
            v_mul_f32 v152, 0x41000000, v146
            v_mul_f32 v153, 0xc1000000, v147
            v_mul_f32 v154, 0x43800000, v146
            v_mul_f32 v155, 0x43800000, v147
            v_fract_f32 v147, v147
            v_fract_f32 v153, v153
            v_fract_f32 v155, v155
            v_exp_f32 v146, v146
            v_mul_f32 v44, v150, v148
            v_cos_f32 v38, v147
            v_mul_f32 v45, v150, v149
            v_sin_f32 v39, v147
            v_fma_f32 v44, -v151, v149, v44
            v_exp_f32 v152, v152
            v_fmac_f32 v45, v151, v148
            v_cos_f32 v40, v153
            v_mul_f32 v38, v146, v38
            v_sin_f32 v41, v153
            v_mul_f32 v39, v146, v39
            v_exp_f32 v154, v154
            v_mul_f32 v40, v152, v40
            v_cos_f32 v42, v155
            v_mul_f32 v41, v152, v41
            v_sin_f32 v43, v155
            v_mul_f32 v42, v154, v42
            v_mul_f32 v43, v154, v43""".split("\n")
        return mk(out)

    def kgen_tables(self):
        e = self
        W1, W8, W256 = 38, 40, 42
        rows = [0, 1, 2, 3, 4, 5, 6, 7, 256, 258, 260, 1288, 260, 262, 264, 1800, 516, 520, 1032, None, 772, 776, 1544]
        xs = [(("x", 0), None, None)] + [(("x", x), ("x", x - 1), "w1") for x in range(1, 9)] + [(("x", x), ("x", x - 256), "w256") for x in (256, 258, 260, 262, 264, 516, 520, 772, 776, 1032, 1288, 1544, 1800)]
        ys = [(("y", 1), None, None)] + [(("y", c), ("y", c - 1), "w8") for c in range(2, 32)]
        ny, nx = e.o.get("ky", 8), e.o.get("kx", 5)
        batches = [ys[len(ys) * k // ny: len(ys) * (k + 1) // ny] for k in range(ny)] + [xs[len(xs) * k // nx: len(xs) * (k + 1) // nx] for k in range(nx)]
        last = {}
        for b, its in enumerate(batches):
            for d, s, w in its:
                last[d] = max(last.get(d, b), b)
                if s: last[s] = b
        reg = {"w1": W1, "w8": W8, "w256": W256, ("y", 1): W8, ("x", 0): 44}
        free = [46, 48, 50, 52, 54, 56, 62, 168, 170, 172, 174, 144]
        out = []
        for b, its in enumerate(batches):
            mul, cvt, st = [], [], []
            for k, (d, s, w) in enumerate(its):
                if s:
                    reg[d] = free.pop(0)
                    mul += e.cmul(reg[d], reg[s], reg[w], 58 + 2 * (k & 1))
                if d != ("x", 8):
                    o = 156 + len(cvt)
                    cvt.append(f"v_cvt_pk_bf16_f32 v{o}, v{reg[d]}, v{reg[d]+1}")
                    for r in ([d[1]] if d[0] == "y" else [32 + n for n, x in enumerate(rows) if x == d[1]]):
                        st.append(f"ds_write_addtid_b32 v{o} offset:{CH0 + KTS * r}")
            for d in [d for d, l in last.items() if l == b and d not in (("y", 1), ("x", 0))]: free.append(reg[d])
            out.append((mk(mul), mk(cvt), mk(st)))
        return out, ny

    def kgen(self):
        e = self
        e(f"""v_lshlrev_b32 v32, 16, v32""")
        e(f"""
            v_mul_f32 v32, {fx(LOG2E)}, v32
            v_exp_f32 v32, v32
            v_lshlrev_b32 v33, 16, v33
            v_cvt_pk_bf16_f32 v32, v32, v32
            v_lshlrev_b32 v32, 16, v32
            v_mul_f32 v34, {fx(LOG2E)}, v32
            v_mul_f32 v35, 0.15915494, v32
            v_readfirstlane_b32 s58, v32
            v_readfirstlane_b32 s56, v34
            v_readfirstlane_b32 s57, v35
            s_mov_b32 s55, s70""")
        drip = []
        def wdrip():
            w = e.w1_pack_issue(); drip.extend(w[k:k + 4] for k in range(0, 16, 4))
        if e.o.get("wl", 1) == 1: wdrip()
        def pub():
            if e.o.get("wl", 1) == 2: wdrip()
            return e.ln_publish()
        def gather():
            a, b = e.gather(); drip.extend(b)
            for k, i in enumerate(e.table_loads(range(9, 13))): drip[-4 + k] = drip[-4 + k][:3] + [i] + drip[-4 + k][3:]
            return a
        def pack():
            drip.extend([i] for i in e.w1_pack_stores())
            return e.w1_pack_perm() + e.stamp(9)
        hooks = {e.o.get("pub", 9): pub,
                 e.o.get("p1i", 22): lambda: e.poll_issue(e.vPOLL, 18),
                 e.o.get("pk", 20): pack,
                 e.o.get("p1c", 28): gather,
                 e.o.get("pw", 35): lambda: e.w1_publish(163) + e.stamp(12)}
        fix, e.late = e.conv_fix()
        hooks[e.o.get("fix", 6)] = lambda: fix
        assert len(hooks) == 6 and e.o.get("pk", 20) < e.o.get("p1c", 28)
        xrd = lambda: mk([f"ds_read_b128 v[{64+8*ks}:{67+8*ks}], v{e.vKTX} offset:{32*ks + 32*KTS}" for ks in range(8)])
        yrd = lambda: mk([f"ds_read_b128 v[{68+8*ks}:{71+8*ks}], v{e.vKTY} offset:{32*ks}" for ks in range(8)])
        mfs = lambda j: [I(f"v_mfma_f32_32x32x16_bf16 v[128:143], v[{64+8*ks}:{67+8*ks}], v[{68+8*ks}:{71+8*ks}], " + ("0" if j == 0 and ks == 0 else "v[128:143]")) for ks in range(8)]
        n, mf, xr, w1 = 0, [], [], e.w1_loads()
        e.w1_early = 0
        for j in range(3):
            e(e.kgen_setup(j))
            pend, yr = [], yrd()
            tb, ny = e.kgen_tables()
            for b, (mul, cvt, st) in enumerate(tb):
                e(mul)
                for _ in range(-(-len(mf) // (ny + 1 - b)) if b <= ny else 0): e(mf.pop(0))
                e(pend)
                for _ in range(min(len(xr), -(-8 // ny))): e(xr.pop(0))
                if b >= ny:
                    assert not mf and not xr
                    for _ in range(-(-len(yr) // (len(tb) - b))): e(yr.pop(0))
                if drip: e(drip.pop(0))
                if n in hooks: e(hooks[n]())
                e(cvt)
                pend = st; n += 1
            e(pend)
            xr, mf = xrd(), mfs(j)
            for _ in range(2 if j < 2 else 8): e(xr.pop(0))
        e(f"ds_write_b128 v{e.vZB}, v[190:193]")
        assert not drip
        e(e.stamp(11))
        fwi = mk(f"s_mov_b32 s70, {FW - F1}") + e.poll_issue(e.vPOLL, 234, "s70")
        if e.o.get("fwi", 10) == 0: e(fwi)
        e(e.late[:16])
        for k, m in enumerate(mf):
            e(m); e(e.late[16 + 4 * k: 20 + 4 * k])
        assert len(e.late) <= 48
        R = 128
        e(f"""v_cmp_eq_u32 vcc, 0, v1
            s_mov_b32 s71, 0xffff
            v_cndmask_b32 v33, 0, v33, vcc
            v_add_f32 v{R}, v{R}, v33
            v_cvt_pk_bf16_f32 v20, v{R}, v{R+1}
            v_cvt_pk_bf16_f32 v21, v{R+2}, v{R+3}
            ds_write_b64 v{e.vKNW}, v[20:21] offset:{KN + 16}""")
        e(e.w4_reads(0))
        e(f"""v_cvt_pk_bf16_f32 v22, v{R+4}, v{R+4}
            v_cvt_pk_bf16_f32 v23, v{R+5}, v{R+6}
            v_cvt_pk_bf16_f32 v24, v{R+6}, v{R+6}
            v_cvt_pk_bf16_f32 v25, v{R+6}, 0
            v_cvt_pk_bf16_f32 v26, 0, v{R+9}
            v_cvt_pk_bf16_f32 v27, v{R+9}, 0
            v_cvt_pk_bf16_f32 v28, v{R+9}, v{R+8}
            v_cvt_pk_bf16_f32 v29, v{R+10}, v{R+7}
            ds_write_b64 v{e.vKNW}, v[22:23] offset:{KN + 16 + 512}
            ds_write_b32 v{e.vK2W}, v28 offset:{K2 + 508}
            ds_write_b16 v{e.vK3W}, v29 offset:{K3 + 254}
            ds_write_b16_d16_hi v{e.vK3W}, v29 offset:{K3 + 190}
            s_mov_b32 exec_lo, 0
            s_mov_b32 exec_hi, 0x80000000
            ds_write_b64 v{e.vKNW}, v[24:25] offset:{KN + 16 + 1024 - 504}
            ds_write2_b32 v{e.vK3W}, v26, v27 offset0:0 offset1:1
            s_mov_b64 exec, -1""".replace(f"ds_write2_b32 v{e.vK3W}, v26, v27 offset0:0 offset1:1", f"ds_write_b32 v{e.vKNW}, v26 offset:{KN + 16 + 1044 - 504}\nds_write_b32 v{e.vKNW}, v27 offset:{KN + 16 + 1048 - 504}"))
        if e.o.get("pw", 35) == 99: e(e.w1_publish(163) + e.stamp(12))
        e(e.w4_build(0))
        if e.o.get("fwi", 10) == 1: e(fwi)
        e.fwi = fwi
        e(self.stamp(5))

    W4S, W4O = 92, 128
    def w4_reads(self, rnd):
        e = self
        a, off = (e.vW4S, KN + 8 + 512 * rnd) if rnd < 2 else (e.vW4S3, KN)
        r = e.W4S + 4 * (rnd & 1)
        return mk(f"ds_read_b64 v[{r}:{r+1}], v{a} offset:{off}\nds_read_b64 v[{r+2}:{r+3}], v{a} offset:{off + 8}", tag=f"w4r{rnd}")
    def w4_build(self, rnd):
        e = self
        p0, p1, o0, o1 = (e.W4S + 4 * (rnd & 1) + i for i in range(4))
        d = e.W4O + 8 * (rnd & 1)
        a, off = (e.vW4D, W4 + 128 + 1024 * rnd) if rnd < 2 else (e.vW4D3, W4)
        return mk(f"""v_bfi_b32 v{d}, s71, v{o0}, v{p1}
            v_bfi_b32 v{d+1}, s71, v{p1}, v{p0}
            v_alignbit_b32 v{d+2}, v{o0}, v{o0}, 16
            v_alignbit_b32 v{d+3}, v{p1}, v{p1}, 16
            v_bfi_b32 v{d+4}, s71, v{o1}, v{o0}
            v_mov_b32 v{d+5}, v{d}
            v_alignbit_b32 v{d+6}, v{o1}, v{o1}, 16
            v_mov_b32 v{d+7}, v{d+2}
            ds_write_b128 v{a}, v[{d}:{d+3}] offset:{off}
            ds_write_b128 v{a}, v[{d+4}:{d+7}] offset:{off + 16}""")

    def gather(self):
        e = self
        out = e.stamp(10) + e.poll_check(e.vPOLL, 18) + e.stamp(4)
        items = []
        for lds, va in ((U0 + 4096, e.vDMA), (X0, 176)):
            for k in range(4):
                items.append(mk(f"s_add_u32 m0, s59, {lds + 1024 * k}") + mk(f"global_load_lds_dwordx4 v{va}, s[34:35] sc1", tag="u") +
                             mk("s_mov_b32 m0, s70") + (mk(f"v_add_u32 v{va}, {4 * UP}, v{va}") if k < 3 else []))
        return out, items

    def w1_loads(self):
        out = []
        for n in range(60):
            gq, k = n // 15, n % 15
            b = 4 + 4 * gq + 2 * (k // 8)
            out.append(I(f"global_load_dwordx4 a[{4*n}:{4*n+3}], v{self.vL16}, s[{b}:{b+1}] offset:{1024 * (k % 8) - 4096} sc1", tag="w1"))
        return out

    def ffn_ids(self):
        return mk(f"""s_and_b32 s62, s{sCLS}, 1
            s_lshl_b32 s62, s62, 3
            s_lshr_b32 s48, s{sIDX}, 2
            s_add_u32 s62, s62, s48
            s_lshr_b32 s63, s{sCLS}, 1
            s_and_b32 s48, s{sIDX}, 3
            s_lshl2_add_u32 s63, s63, s48
            s_lshl2_add_u32 s60, s63, s{sW}
            s_mul_i32 s60, s60, 61440
            s_add_u32 s60, s60, {W1P + 4096}
            s_add_u32 s39, s{sW}, {"s62" if self.o.get("rot", 1) else 0}
            s_and_b32 s39, s39, 3""") + [i for gq in range(4) for i in mk(f"""s_add_u32 s48, s39, {gq}
            s_and_b32 s48, s48, 3
            s_mul_i32 s48, s48, 15360
            s_add_u32 s48, s48, s60
            s_add_u32 s{4+4*gq}, s34, s48
            s_addc_u32 s{5+4*gq}, s35, 0
            s_add_u32 s{6+4*gq}, s{4+4*gq}, 8192
            s_addc_u32 s{7+4*gq}, s{5+4*gq}, 0""")]

    def fw_poll_addr(self, va):
        return mk(f"""s_lshl_b32 s48, s{sCLS}, 12
            s_add_u32 s48, s48, {FW + 160 * 16}
            v_lshl_add_u32 v{va}, v1, 4, s48
            v_add_u32 v{va+1}, 512, v{va}""")

    def conv(self):
        e = self; o = e.o
        ACC = lambda t, mt: 144 + 8 * t + 4 * mt
        BR, AR, XB, XD, XC, K2F, K3F, AX, XU = 2, 50, 100, 108, 124, 68, 128, 100, 180
        main = []
        def mf(acc, A, B, need, zero=False):
            main.append(I(f"v_mfma_f32_16x16x32_bf16 v[{acc}:{acc+3}], v[{A}:{A+3}], v[{B}:{B+3}], " + ("0" if zero else f"v[{acc}:{acc+3}]"), need=need))
        def rd(txt, reg, n, tag, grp):
            return I(txt, tag=grp, put={("v", reg + i): tag for i in range(n)})
        def nd(*items): return {("v", reg + i): tag for reg, n, tag in items for i in range(n)}
        start, reads, pos = [], [], {}
        boxes = [(T, b) for T in range(6) for b in range(4) if not (b >= 2 and T >= 4)]
        arr = (A5, A3, A9, A7)
        nbox, box_at = 0, []
        for s, j in enumerate(list(range(2, 16)) + [0, 1]):
            grp = f"s{s}"
            start.append(len(main)); R = []
            b0 = BR + 16 * (s % 3)
            steps = [(0, 4 * j, (0, 1))]
            if j == 0: steps += [(1, 64, (0, 1)), (2, 76, (0, 1))]
            if j == 1: steps += [(1, 68, (0,)), (2, 80, (0,))]
            for i in range(4):
                R.append(rd(f"ds_read_b128 v[{b0+4*i}:{b0+4*i+3}], v{e.vUB + (j & 7)} offset:{4096 * i + 2048 - 2048 * (j >> 3)}", b0 + 4 * i, 4, ("B", j, i), grp))
            for iF, o0, mts in steps:
                a0 = AR + 6 * (s % 3) if iF == 0 else AX - 6 + 6 * iF + 12 * j
                base = W4 + 128 + 32 * o0
                for k, off in ((0, base + W4P), (2, base), (4, base + W4P - 32)):
                    if k == 0 and mts == (0,): continue
                    R.insert(0 if iF == 0 else len(R), rd(f"ds_read_b64 v[{a0+k}:{a0+k+1}], v{e.vAB} offset:{off}", a0 + k, 2, ("A", j, iF, k), grp))
                for t in range(iF, 4):
                    for mt in mts:
                        A = a0 + 2 - 2 * mt
                        pos.setdefault((t, mt), []).append(len(main))
                        mf(ACC(t, mt), A, b0 + 4 * (t - iF), nd((A, 2, ("A", j, iF, 2 - 2 * mt)), (A + 2, 2, ("A", j, iF, 4 - 2 * mt)), (b0 + 4 * (t - iF), 4, ("B", j, t - iF))))
            for _ in range(min(2, 20 - nbox)):
                T, b = boxes[nbox]
                xb = XB + 4 * (T & 1); xd = XD + 4 * (nbox & 3)
                if b == 0:
                    R.append(rd(f"ds_read_b128 v[{xb}:{xb+3}], v{e.vBB} offset:{2048 * T}", xb, 4, ("XB", T), grp if T < 5 else "xb5"))
                mf(xd, e.vBAND + 4 * b, xb, nd((xb, 4, ("XB", T))), zero=True)
                xc = XC + 2 * (nbox & 1)
                main[-1].put = nd((xd, 4, ("XD", nbox)))
                box_at.append((len(main) - 1, [
                    I(f"v_cvt_pk_bf16_f32 v{xc}, v{xd}, v{xd+1}", need=nd((xd, 2, ("XD", nbox))), put=nd((xc, 1, ("XC", nbox)))),
                    I(f"v_cvt_pk_bf16_f32 v{xc+1}, v{xd+2}, v{xd+3}", need=nd((xd + 2, 2, ("XD", nbox))), put=nd((xc + 1, 1, ("XC", nbox)))),
                    I(f"ds_write_b64 v{e.vBW}, v[{xc}:{xc+1}] offset:{arr[b] + 128 * T}", need=nd((xc, 2, ("XC", nbox))))]))
                nbox += 1
            reads.append(R)
        far = [("2", 0), ("2", 2), ("3", 0), ("2", 4), ("2", 6), ("2", 8), ("2", 10), ("3", 2)]
        kreads = []
        for phi in range(1, 9):
            kreads.append(rd(f"ds_read_b128 v[{K2F+4*(phi-1)}:{K2F+4*(phi-1)+3}], v{e.vK2A} offset:{K2 + 752 - 64 * phi}", K2F + 4 * (phi - 1), 4, ("K2", phi), None))
        for phi in range(3, 7):
            for k in range(2):
                r_ = K3F + 4 * (phi - 3) + 2 * k
                kreads.append(rd(f"ds_read_b64 v[{r_}:{r_+1}], v{e.vK3A} offset:{K3 + 504 - 64 * phi + 8 * k}", r_, 2, ("K3", phi), None))
        for s, (reg, k0) in enumerate(far, 16):
            start.append(len(main)); R = []
            b0 = BR + 16 * (s % 3)
            for kk in range(2):
                ks = k0 + kk
                for mt in range(2):
                    a0 = b0 + 8 * kk + 4 * mt
                    va, st, hf = (e.vR2 + mt, 64, 8) if reg == "2" else (e.vR3 + mt, 128, 16)
                    for k in range(2):
                        R.append(rd(f"ds_read_b64_tr_b16 v[{a0+2*k}:{a0+2*k+1}], v{va} offset:{st * ks + hf * k}", a0 + 2 * k, 2, ("F", reg, ks, mt), f"s{s}"))
                    for t in range(1, 4):
                        phi = 4 * t - ks if reg == "2" else 2 * t - ks
                        if (1 <= phi <= 8 if reg == "2" else 3 <= phi <= 6):
                            kf = K2F + 4 * (phi - 1) if reg == "2" else K3F + 4 * (phi - 3)
                            pos[t, mt].append(len(main))
                            mf(ACC(t, mt), a0, kf, nd((a0, 4, ("F", reg, ks, mt)), (kf, 4, ("K" + reg, phi))))
            reads.append(R)
        ns = len(reads); start.append(len(main))
        xb5 = [r for r in reads[9] if r.tag == "xb5"]; reads[9] = [r for r in reads[9] if r.tag != "xb5"]
        g = Sched(main)
        SO = X0 - U0 - 2048
        g.pre = [I(f"ds_read_b128 v[{ACC(t, mt)}:{ACC(t, mt)+3}], v{e.vST + 2 + mt} offset:{SO + 4096 * t}", tag="s0") for t in range(4) for mt in range(2)]
        g.pre = reads[0] + g.pre + reads[1] + e.w4_reads(1) + e.w4_reads(2) + mk("@lgkm s0")
        w41 = g.add(e.w4_build(1), 2, start[3] - 1, prio=1)
        w42 = g.add(e.w4_build(2), 2, start[9], after=[(w41[-1], 0)])
        for s in range(ns - 2):
            g.add(reads[s + 2], start[s], start[s + 1] + (2 if s < 19 else 0), prio=2, pace=True)
            g.add(mk(f"@lgkm s{s+1}"), start[s + 1] - 1, start[s + 1] - 1, prio=3)
        g.add(mk(f"@lgkm s{ns-1}"), start[ns - 1] - 1, start[ns - 1] - 1, prio=3)
        g.add(xb5, start[8], start[8] + 3, prio=2)
        prev = [None, None]
        for n, (k, ins) in enumerate(box_at):
            prev[n & 1] = g.add(ins, k + 3, k + 14, after=[(prev[n & 1], 0)] if prev[n & 1] else None, prio=1)[-1]
        g.add(kreads, start[10], start[15], after=[(w42[-1], 0)])
        last = None
        for t in range(4):
            s = o.get("xs", 7) + 2 * t
            r = g.add([I(f"ds_read_b128 v[{XU}:{XU+3}], v{e.vUB} offset:{2048 + 4096 * t}", tag=f"xr{t}")] +
                      [I(f"ds_read_b128 v[{XU+4+4*mt}:{XU+7+4*mt}], v{e.vST + mt} offset:{SO + 4096 * t}", tag=f"xr{t}") for mt in range(2)],
                      0, pos[t, 0][s - 1] - 6, after=[(last, 0)] if last else None, prio=1)
            for mt in range(2):
                p = pos[t, mt][s - 1 + mt]; q = pos[t, mt][s + mt]
                un = g.add(mk(([f"@lgkm xr{t}"] if mt == 0 else []) + [f"v_lshlrev_b32 v{XU+12+2*k}, 16, v{XU+2*mt+k}\nv_and_b32 v{XU+13+2*k}, 0xffff0000, v{XU+2*mt+k}" for k in range(2)]),
                           0, p + 2, after=[(r[-1], 5)] if mt == 0 else [(last, 0)])
                last = g.add(mk([f"v_fmac_f32 v{ACC(t, mt)+k}, v{XU+4+4*mt+k}, v{XU+12+k}" for k in range(4)]), p + 3, q - 2, after=[(un[-1], 0)], prio=2)[-1]
        def hstore(t):
            oo = XU + 4 * t
            return mk([f"s_mov_b32 s68, {HT + 16 * 40960 * t}"] + [f"v_cvt_pk_bf16_f32 v{oo+k}, v{ACC(t, k >> 1) + 2 * (k & 1)}, v{ACC(t, k >> 1) + 2 * (k & 1) + 1}" for k in range(4)]) + \
                mk(f"buffer_store_dwordx4 v[{oo}:{oo+3}], v{e.vHST}, {SRD}, s68 offen sc1", tag="h01" if t < 2 else "h23")
        for t in range(3):
            p = max(pos[t, 0][-1], pos[t, 1][-1])
            last = g.add(hstore(t), p + 3, p + 8, after=[(last, 0)], prio=2)[-1]
        w1 = e.w1_loads(); n1 = o.get("w1n", 34)
        fwc = o.get("fwc", 40)
        chk = e.poll_check(e.vPOLL, 234, "s70")
        if o.get("fwi", 10) > 1: g.add(e.fwi, o.get("fwi", 10), o.get("fwi", 10) + 2, prio=2)
        if fwc >= 0:
            c = g.add([chk[0], chk[1:], I("s_barrier")], fwc, fwc + 4, prio=2)
        ids, blk = e.ffn_ids(), []
        for i in ids:
            if i.mn == "s_addc_u32": blk[-1] = [blk[-1], i]
            else: blk.append(i)
        sid = g.add(blk[:18], 0, fwc + 4)
        sid2 = g.add(blk[18:], 0, fwc + 30, after=[(sid[-1], 0)])
        wl = g.add(w1[:n1], fwc + 5, start[o.get("w1e", 22)], pace=True, win=3, after=[(c[-1], 0), (sid[-1], 1)])
        wl[15]["after"] = [(sid2[-1], 1)]
        if fwc < 0: e(chk)
        e("@vm u\ns_barrier")
        e(e.stamp(6))
        e.pre_conv = list(e.p); e.conv_stream = g.run(); e.conv_steps = (main, start)
        e(e.conv_stream)
        e(e.stamp(7))
        e(hstore(3))
        e(f"""v_cmp_eq_u32 vcc, 0, v{e.vSIG}
            v_mov_b32 v198, 0x40000000
            s_add_u32 s48, s69, {F2}
            v_cndmask_b32 v198, v198, v{e.vSIG}, vcc
            @vm h01
            s_barrier
            buffer_store_dwordx2 v[{e.vTAG}:{e.vTAG+1}], v199, {SRD}, s48 offen sc1""")
        e(e.stamp(8))
        if e.stop == "conv": return
        import gen_ffn as F
        sa, sb = F.setup(e)
        e(sa)
        g = Sched(F.colsums(), dense=True)
        g.add(sb, 0, 50)
        wl = g.add(w1[n1:], 0, n1 - 4, pace=True, prio=1)
        g.add(mk(f"""s_add_u32 s48, s69, {F2B}
            @vm h23
            s_barrier
            buffer_store_dwordx2 v[{e.vTAG}:{e.vTAG+1}], v{e.vSIG}, {SRD}, s48 offen sc1
            buffer_store_dword v{e.vTAG}, v198, {SRD}, 0 offen sc1"""), o.get("sgb", 16), o.get("sgb", 16) + 6, prio=2)
        g.add(e.poll_issue(F.vPF, F.PD), o.get("f2i", 24), o.get("f2i", 24), prio=2)
        st = g.run()
        k = [n for n, i in enumerate(st) if i.kind == "mfma"][o.get("f2c", 52)]
        e(st[:k]); e(e.stamp(13))
        e(e.poll_check(F.vPF, F.PD)); e(e.stamp(1) if o.get("fst") else [])
        e(F.chunk(0)); e(st[k:])

    def w1_pack_loads(self):
        out = mk(f"""s_lshl2_add_u32 s71, s2, s{sW}
            s_min_u32 s71, s71, 959
            s_mul_i32 s72, s71, 5462
            s_lshr_b32 s72, s72, 16
            s_mul_i32 s48, s72, 12
            s_sub_u32 s71, s71, s48
            s_mul_i32 s48, s72, {8 * 3072}
            s_lshl_b32 s49, s71, 8
            s_add_u32 s48, s48, s49
            s_add_u32 s48, s48, 3072
            v_lshl_add_u32 v196, v6, 2, s48
            v_mov_b32 v197, 0
            v_lshl_add_u64 v[194:195], v[196:197], 0, s[26:27]
            s_mov_b32 exec_hi, 0
            v_lshl_add_u64 v[194:195], v[196:197], 0, s[24:25]
            s_mov_b32 exec_hi, -1
            s_mov_b32 s48, 9216
            s_mov_b32 s49, 0
            v_lshl_add_u64 v[196:197], v[194:195], 0, s[48:49]
            v_lshl_add_u64 v[198:199], v[196:197], 0, s[48:49]""")
        return out
    def w1_pack_issue(self):
        out = []
        for j in range(8):
            for hf in range(2):
                a = 194 + 2 * (j // 3)
                out += mk(f"global_load_dword v{236+8*hf+j}, v[{a}:{a+1}], off offset:{3072 * (j % 3 - 1) + 128 * hf}")
        return out
    def w1_pack_addr(self):
        out = mk(f"""s_lshl_b32 s48, s71, 4
            v_bfe_u32 v160, v1, 3, 2
            v_lshl_add_u32 v160, v160, 1, s48
            s_lshr_b32 s48, s72, 2
            s_mul_i32 s48, s48, 3072
            s_and_b32 s49, s72, 3
            s_lshl_b32 s49, s49, 8
            s_add_u32 s48, s48, s49
            s_add_u32 s48, s48, {W1P}
            v_and_b32 v161, 1, v1
            v_lshl_add_u32 v161, v161, 4, s48
            v_bfe_u32 v162, v1, 1, 2
            v_lshl_add_u32 v161, v162, 6, v161
            v_and_b32 v162, 32, v1
            v_add_u32 v161, v161, v162
            s_mov_b32 s49, 57
            s_mov_b32 s72, 0x05040100
            s_mov_b32 s73, 0x07060302""")
        for t in range(4):
            out += mk(f"""v_mul_u32_u24 v162, 21846, v160
                v_lshrrev_b32 v162, 16, v162
                v_mad_u32_u24 v162, v162, s49, v160
                v_lshl_add_u32 v{164+t}, v162, 10, v161""")
            if t < 3: out += mk(f"v_add_u32 v160, {7 if t == 1 else 1}, v160")
        return out
    def w1_pack_perm(self):
        return mk([f"v_perm_b32 v{2+4*t+jj}, v{236+8*(t>>1)+2*jj+1}, v{236+8*(t>>1)+2*jj}, s{72+(t&1)}" for t in range(4) for jj in range(4)])
    def w1_pack_stores(self):
        return mk([f"global_store_dwordx4 v{164+t}, v[{2+4*t}:{5+4*t}], s[34:35] sc1" for t in range(4)], tag="w1p")
    def w1_pack(self):
        return self.w1_pack_perm() + self.w1_pack_stores() + self.stamp(9)
    def w1_publish(self, va=None):
        return mk("@vm w1p\ns_barrier") + self.signal_all(FW, va)

    def w2_consts(self):
        e = self
        e(f"""s_sub_u32 s50, s2, 160
            v_lshlrev_b32 v{e.vL16}, 4, v1
            s_lshr_b32 s55, s50, 1
            s_and_b32 s56, s50, 1
            s_mul_i32 s48, s55, {32 * 1280}
            s_mul_i32 s49, s56, 640
            s_add_u32 s48, s48, s49
            s_mul_i32 s49, s{sW}, {8 * 1280}
            s_add_u32 s48, s48, s49
            s_lshl2_add_u32 s56, s56, s{sW}
            s_mul_i32 s56, s56, 48
            s_add_u32 s55, s55, s56
            s_mul_i32 s56, s{sW}, 5120""")
        for n in range(5):
            e(f"""v_add_u32 v20, {64 * n}, v1
                v_mul_u32_u24 v21, 1639, v20
                v_lshrrev_b32 v21, 16, v21
                v_mul_u32_u24 v21, 640, v21
                v_lshl_add_u32 v21, v20, 4, v21
                v_add_u32 v{24+n}, s48, v21""")
        e(f"""v_bfe_u32 v20, v1, 2, 2
            v_bfe_u32 v21, v1, 4, 1
            v_lshl_add_u32 v20, v20, 1, v21
            v_lshrrev_b32 v21, 5, v1
            v_lshl_add_u32 v20, v21, 4, v20
            v_mul_u32_u24 v20, 640, v20
            v_and_b32 v21, 3, v1
            v_lshl_add_u32 v20, v21, 3, v20
            s_mul_i32 s48, s{sW}, 160
            v_add_u32 v20, s48, v20""")

    def helper_main(self):
        e = self
        wl, w2l = e.o.get("wl", 1), e.o.get("w2l", 3)
        dma = [i for n in range(5) for i in mk(f"s_add_u32 m0, s56, {1024 * n}") + mk(f"global_load_lds_dwordx4 v{24+n}, s[28:29]", tag="w2l")]
        e.x_loads(); e.w2_consts()
        if w2l == 0: e(dma)
        e(e.w1_pack_loads()); e.ln_consts()
        ln = e.ln1()
        e(ln[:20])
        if wl == 0: e(e.w1_pack_issue())
        if w2l == 1: e(dma)
        e(ln[20:])
        if wl == 1: e(e.w1_pack_issue())
        e(e.ln_publish())
        if wl == 2: e(e.w1_pack_issue())
        if w2l == 2: e(dma)
        if e.o.get("hd", 1): e("s_waitcnt vmcnt(0)")
        e(e.w1_pack_addr()); e(e.w1_pack_perm())
        e(e.ffn_ids())
        e(f"""s_lshl_b32 s48, s{sCLS}, 12
            s_add_u32 s48, s48, {FW}
            v_lshl_add_u32 v{e.vPOLL}, v0, 4, s48
            s_mul_i32 s58, s55, 5120
            s_add_u32 s58, s58, {W2P}
            s_add_u32 s59, s58, 4096""")
        e(e.w1_pack_stores()); e(e.stamp(9))
        w2s = mk([f"buffer_store_dwordx4 v[{32+4*t}:{35+4*t}], v{e.vL16}, {SRD}, s{58 + t // 4} offen offset:{1024 * (t & 3)} sc1" for t in range(5)], tag="w2p")
        e(e.w1_publish())
        e(e.stamp(4))
        if w2l == 3: e(dma); e("@vm w2l")
        e(e.stamp(10))
        e(e.hint_wait(FW))
        e(e.poll_issue(e.vPOLL, 192))
        for t in range(5):
            e(f"ds_read_b64_tr_b16 v[{32+4*t}:{33+4*t}], v20 offset:{32*t}\nds_read_b64_tr_b16 v[{34+4*t}:{35+4*t}], v20 offset:{32*t + 8*640}")
        e(e.poll_check(e.vPOLL, 192, slp=8))
        e("s_barrier")
        e(e.stamp(6))
        w1 = e.w1_loads(); a, b = e.o.get("h1", 0), e.o.get("h2", 20)
        e(w1[:a]); e(w2s); e(w1[a:b])
        e("@vm w2p\ns_barrier"); e(e.signal_all(F2B))
        e(e.stamp(5))
        e(w1[b:])
        if e.stop == "conv": return
        import gen_ffn as F
        sa, sb = F.setup(e)
        e(sa); e(sb); e(F.colsums())
        e(e.stamp(7))
        e(e.hint_wait(F2))
        e(e.stamp(13))
        e(e.poll_issue(F.vPF, F.PD)); e(e.poll_check(F.vPF, F.PD)); e(e.stamp(1) if e.o.get("fst") else [])
        e(F.chunk(0))

    def finish_stamps(self):
        e = self
        if not e.stamps: return
        e(f"""s_waitcnt lgkmcnt(0)
            s_lshl2_add_u32 s48, s2, s{sW}
            s_lshl_b32 s48, s48, 6
            s_add_u32 s48, s48, {DBG}
            v_mov_b32 v2, s48""")
        for k in range(14):
            e(f"v_mov_b32 v3, s{74 + 2 * k}\nbuffer_store_dword v3, v2, {SRD}, 0 offen offset:{4 * k}")

    def build(self):
        e = self
        e.prologue()
        e(f"s_cmp_ge_u32 s{sIDX}, 20\ns_cbranch_scc1 L_helper")
        head = list(e.p)
        e.x_loads(); e.conv_param_loads(); e(e.w1_pack_loads()); e.ln_consts(); e(e.w1_pack_addr()); e(e.hint_setup(163, 0)); e.conv_consts_a()
        tl = e.table_loads([6, 2, 8, 0, 1, 3, 4, 5, 7])
        ln = e.ln1()
        k = e.o.get("tbl", 20)
        e(ln[:k]); e(tl)
        if e.o.get("wl", 1) == 0: e(e.w1_pack_issue())
        e(ln[k:])
        e.kgen(); e.conv()
        e("s_branch L_join")
        a, sa = finalize(e.p)
        e.p = list(head); e("L_helper:")
        e.helper_main()
        b, sb = finalize(e.p)
        k = next(n for n, i in enumerate(b) if i.text == "L_helper:")
        e.p = []
        e("L_join:")
        if e.stop != "conv":
            import gen_ffn
            e.in_ffn = True
            gen_ffn.ffn(e)
        e.finish_stamps()
        c, sc = finalize(e.p)
        self.stats = (sa, sb, sc)
        allp = a + b[k:] + c
        if e.o.get("al", 0): self.stats += (align8(allp),)
        body = "\n".join(("" if i.kind == "meta" else "    ") + i.text for i in allp if i.kind != "pseudo")
        return f"""; @launch grid=(256,1,1) block=(256,1,1) lds={LDS_BYTES}
.amdgcn_target "amdgcn-amd-amdhsa--gfx950"
.text
.globl {NAME}_kernel
.p2align 8
.type {NAME}_kernel,@function
{NAME}_kernel:
{body}
L_end:
    s_endpgm
{chr(10).join(self.cold)}
.p2align 7
L_table:
{self.lane_table()}
L_code_end:
.section .rodata,"a"
.p2align 6
.amdhsa_kernel {NAME}_kernel
  .amdhsa_next_free_vgpr 512
  .amdhsa_next_free_sgpr 102
  .amdhsa_accum_offset 256
  .amdhsa_group_segment_fixed_size 0
  .amdhsa_kernarg_size 128
  .amdhsa_user_sgpr_count 2
  .amdhsa_user_sgpr_kernarg_segment_ptr 1
  .amdhsa_system_sgpr_workgroup_id_x 1
.end_amdhsa_kernel
"""

if __name__ == "__main__":
    opt = {a.split("=")[0]: int(a.split("=")[1]) for a in sys.argv[4:]}
    k = K(stop=sys.argv[2] if len(sys.argv) > 2 and sys.argv[2] != "-" else None, stamps=len(sys.argv) > 3 and sys.argv[3] == "stamps", opt=opt)
    open(sys.argv[1], "w").write(k.build())
    print(k.stats, getattr(k, 'models', None))
```

```python
import struct, math, sys
from asmlib import I, mk, finalize, Gaps, Sched, model_cycles, align8

NAME = "sequential_preLN__ssm_conv_s4__geglu_ffn__prompt"
def fx(x): return hex(struct.unpack("<I", struct.pack("<f", x))[0])
LOG2E = math.log2(math.e)

EPOCH, F1, FW, F2, F2B, F3, DBG = 0, 0x10000, 0x40000, 0x70000, 0xa0000, 4 << 20, 0xe0000
F2C = (4 << 20) + 0x90000
HOFF = 0x20000
UP = 161 * 256
UT, XT, HT, W1P, W2P, ACT, WS_SIZE = 1 << 20, 4 << 20, 7 << 20, 10 << 20, 14 << 20, 16 << 20, 23 << 20
U0, X0, CH0, CHS = 0, 20480, 36864, 21760
PS, A5, A3, A9, A7 = 832, 0, 3328, 6656, 9984 + 64
KTS = 272
KN = 13376; W4 = 55 * KTS; W4P = 2832; K2 = W4 + 2 * W4P; K3 = K2 + 752
LNU = CH0 + 4 * CHS; LNS = 1344
SLOT = 40960
STP = 3 * SLOT
RES = STP + 2048
RST = 160 * 1024 - 4 * 6144
PART = 0
LDS_BYTES = 160 * 1024
assert LNU + 10752 <= LDS_BYTES and RES + 4 * 2816 <= RST

sW, sCLS, sIDX = 36, 37, 38
SRD = "s[40:43]"; TAG = "s[44:45]"; SRD2 = "s[64:67]"
SPIN = 20000

class K:
    def __init__(self, stop=None, stamps=False, opt=None):
        self.p = []; self.stop = stop; self.stamps = stamps; self.nlab = 0
        self.o = dict(opt or {}); self.in_ffn = self.in_ln = False; self.cold = []
    def __call__(self, x, **kw): self.p += mk(x, **kw)
    def lab(self, s):
        self.nlab += 1; return f"L_{s}_{self.nlab}"
    def stamp(self, k):
        if self.o.get("nost") and k and k != self.o.get("st"): return []
        if self.o.get("fst") and not self.in_ffn and (k not in (0, 1, 6, 7, 8, 13) or (k == 1 and self.in_ln)): return []
        return mk(f"s_memrealtime s[{74 + 2 * k}:{75 + 2 * k}]") if self.stamps else []

    vSIG, vTAG = 177, 178
    def signal_setup(self):
        return mk(f"""s_lshl_b32 s48, s2, 6
            v_lshrrev_b32 v{self.vSIG}, 3, v0
            v_lshl_add_u32 v{self.vSIG}, v{self.vSIG}, 14, s48
            v_and_b32 v{self.vTAG}, 7, v0
            v_lshl_add_u32 v{self.vSIG}, v{self.vTAG}, 3, v{self.vSIG}
            s_min_u32 s48, s{sW}, 1
            s_lshl_b32 s48, s48, 30
            v_add_u32 v{self.vSIG}, s48, v{self.vSIG}""")
    def prewarm(self):
        if not self.o.get("pwm", 1): return []
        return mk(f"""v_lshrrev_b32 v174, 3, v1
            s_lshl_b32 s48, s2, 6
            v_lshl_add_u32 v174, v174, 14, s48
            v_and_b32 v175, 7, v1
            v_lshl_add_u32 v174, v175, 3, v174
            s_mul_i32 s48, s{sW}, {FW - F1}
            s_add_u32 s48, s48, {F1}
            buffer_store_dwordx2 v[2:3], v174, {SRD}, s48 offen sc1
            s_mov_b32 s48, {F2C}
            buffer_store_dwordx2 v[2:3], v{self.vSIG}, {SRD}, s48 offen sc1""")
    def extra_lanes(self, dst, code):
        return mk(code + f"""
            v_lshrrev_b32 v{dst}, 3, v0
            v_cmp_eq_u32 vcc, 8, v{dst}
            v_lshl_add_u32 v{dst}, v1, 3, s48
            v_cndmask_b32 v{dst}, v{self.vSIG}, v{dst}, vcc""")
    def hint_setup(self, dst, sub):
        return self.extra_lanes(dst, f"s_lshl_b32 s48, s2, 7\ns_add_u32 s48, s48, {HOFF}\ns_sub_u32 s48, s48, {sub}")
    def hint_wait(self, region):
        L = self.lab("hint")
        return mk(f"""s_sub_u32 s48, s2, 160
            s_lshl_b32 s48, s48, 7
            s_add_u32 s48, s48, {region + HOFF}
            v_mov_b32 v196, s48
            s_cmp_lg_u32 s{sW}, 0
            s_cbranch_scc1 {L}""") + self.poll_issue(196, 192) + self.poll_check(196, 192, slp=4) + mk(f"{L}:\ns_barrier")
    def signal_all(self, region, va=None):
        return mk(f"s_mov_b32 s48, {region}\nbuffer_store_dwordx2 v[{self.vTAG}:{self.vTAG+1}], v{va or self.vSIG}, {SRD}, s48 offen sc1")
    def poll_issue(self, va, vd, so="0"):
        return mk(f"buffer_load_dwordx2 v[{vd}:{vd+1}], v{va}, {SRD}, {so} offen sc1")
    def poll_check(self, va, vd, so="0", slp=2):
        A, B = self.lab("retry"), self.lab("seen")
        self.cold.append(f"""{A}:
    s_mov_b32 s49, 0
{A}_l:
    s_mov_b64 exec, vcc
    s_sleep {slp}
    buffer_load_dwordx2 v[{vd}:{vd+1}], v{va}, {SRD}, {so} offen sc1
    s_add_u32 s49, s49, 1
    s_waitcnt vmcnt(0)
    v_cmp_ne_u64 vcc, {TAG}, v[{vd}:{vd+1}]
    s_mov_b64 exec, -1
    s_cmp_ge_u32 s49, {SPIN}
    s_cbranch_scc1 {B}
    s_nop 1
    s_cbranch_vccnz {A}_l
    s_branch {B}""")
        br = I(f"s_cbranch_vccnz {A}")
        br.uses |= {("v", va), ("v", vd), ("v", vd + 1)} | ({("s", int(so[1:]))} if so != "0" else set())
        return mk(f"v_cmp_ne_u64 vcc, {TAG}, v[{vd}:{vd+1}]") + [br] + mk(f"{B}:")

    def prologue(self):
        e = self
        e(f"s_cmp_ge_u32 s2, 256\ns_cbranch_scc1 L_end")
        e(self.stamp(0))
        e(f"""s_load_dwordx16 s[4:19], s[0:1], 0
            s_load_dwordx16 s[20:35], s[0:1], 64
            s_getpc_b64 s[46:47]
            L_pc:
            v_and_b32 v1, 63, v0
            v_lshrrev_b32 v2, 6, v0
            s_lshr_b32 s{sIDX}, s2, 3
            v_readfirstlane_b32 s{sW}, v2
            s_mul_i32 s48, s{sIDX}, 14
            v_min_u32 v3, 13, v0
            v_add_u32 v3, s48, v3
            v_lshlrev_b32 v3, 7, v3
            v_min_u32 v3, L_code_end-{NAME}_kernel-64, v3
            global_load_dword v4, v3, s[46:47]
            s_and_b32 s{sCLS}, s2, 7
            v_lshrrev_b32 v5, 5, v0
            v_and_b32 v6, 31, v0
            s_lshl_b32 s48, s2, 3
            v_add_u32 v7, s48, v5
            v_mul_u32_u24 v7, 1280, v7
            v_lshl_add_u32 v2, v6, 2, v7
            v_lshl_add_u32 v7, v6, 4, v7""")

    def x_loads(self):
        self(f"""global_load_dwordx4 v[10:13], v7, s[4:5]
            global_load_dwordx4 v[14:17], v7, s[4:5] offset:512
            global_load_dword v18, v2, s[4:5] offset:1024
            global_load_dword v19, v2, s[4:5] offset:1152
            s_mov_b32 s40, s34
            s_mov_b32 s41, s35
            s_mov_b32 s42, {WS_SIZE}
            s_mov_b32 s43, 0x20000
            v_mov_b32 v8, {EPOCH}
            buffer_load_dword v9, v8, {SRD}, 0 offen sc1""")

    def conv_param_loads(self):
        e = self
        e(f"""s_mul_i32 s50, s{sCLS}, 80
            s_lshl2_add_u32 s50, s{sIDX}, s50
            s_add_u32 s50, s50, s{sW}
            s_mul_i32 s48, s50, 384
            v_lshl_add_u32 v34, v1, 2, s48
            v_lshl_add_u32 v35, v1, 1, s48
            s_lshl_b32 s48, s50, 1
            v_mov_b32 v36, s48
            global_load_ushort v32, v36, s[18:19]""")
        for a in range(6):
            e(f"global_load_dword v{20+a}, v34, s[{6+2*a}:{7+2*a}]")
        for a in range(6):
            e(f"global_load_ushort v{26+a}, v35, s[{6+2*a}:{7+2*a}] offset:256")
        e("global_load_ushort v33, v36, s[20:21]")

    def ln_consts(self):
        self(f"""v_mul_u32_u24 v141, {LNS}, v5
            v_add_u32 v141, {LNU}, v141
            v_lshl_add_u32 v140, v6, 2, v141
            v_add_u32 v140, 1024, v140
            v_lshl_add_u32 v141, v6, 4, v141
            v_and_b32 v143, 3, v5
            v_mul_u32_u24 v143, {2 * LNS}, v143
            v_add_u32 v143, {LNU + 1280}, v143
            v_mov_b32 v2, 0
            v_mov_b32 v3, 0
            ds_write_b64 v143, v[2:3]
            v_lshrrev_b32 v139, 2, v5
            v_lshl_add_u32 v143, v139, 1, v143
            v_bfe_u32 v142, v1, 2, 2
            v_mul_u32_u24 v142, {LNS}, v142
            v_lshrrev_b32 v139, 4, v1
            v_lshl_add_u32 v142, v139, 5, v142
            v_and_b32 v139, 3, v1
            v_lshl_add_u32 v142, v139, 3, v142
            s_lshl_b32 s48, s{sW}, 7
            s_add_u32 s48, s48, {LNU}
            v_add_u32 v142, s48, v142
            s_lshr_b32 s51, s2, 2
            s_and_b32 s48, s51, 7
            s_lshl_b32 s49, s2, 1
            s_and_b32 s49, s49, 4
            s_xor_b32 s48, s48, s49
            v_xor_b32 v139, s48, v139
            v_lshrrev_b32 v8, 2, v1
            v_lshlrev_b32 v8, 8, v8
            v_lshl_add_u32 v8, v139, 4, v8
            v_cmp_gt_u32 vcc, 132, v0
            v_mov_b32 v37, 0x40000000
            s_mul_i32 s51, s51, {UP}
            s_and_b32 s48, s2, 1
            v_cndmask_b32 v37, v37, v8, vcc
            s_lshl_b32 s48, s48, 7
            s_add_u32 s51, s51, s48
            s_lshl_b32 s48, s{sW}, 12
            s_add_u32 s51, s51, s48
            s_add_u32 s51, s51, {UT}
            s_add_u32 s52, s51, 16384
            s_add_u32 s53, s51, 32768
            s_mov_b32 s54, 0x3f803f80""")
        self(self.signal_setup()); self(self.prewarm())

    def ln1(self):
        keep, self.p, self.in_ln = self.p, [], True
        e = self
        for i in range(10):
            e(f"v_dot2c_f32_bf16 v2, s54, v{10+i}\nv_dot2c_f32_bf16 v3, v{10+i}, v{10+i}")
        e(self.stamp(1))
        un = [f"v_lshlrev_b32 v{80+2*i}, 16, v{10+i}" for i in range(10)] + [f"v_and_b32 v{81+2*i}, 0xffff0000, v{10+i}" for i in range(10)]
        e(un.pop()); e(un.pop()); e(un.pop())
        for m in ("quad_perm:[1,0,3,2]", "quad_perm:[2,3,0,1]", "row_half_mirror", "row_mirror"):
            e(f"v_add_f32_dpp v2, v2, v2 {m} row_mask:0xf bank_mask:0xf\nv_add_f32_dpp v3, v3, v3 {m} row_mask:0xf bank_mask:0xf")
            e(un.pop())
        e("v_mov_b32 v4, v2\nv_mov_b32 v5, v3"); e(un.pop()); e(un.pop())
        e("v_permlane16_swap_b32 v4, v2\nv_permlane16_swap_b32 v5, v3")
        e(f"""v_add_f32 v2, v2, v4
            v_add_f32 v3, v3, v5
            v_mul_f32 v2, {fx(1/640)}, v2
            v_mul_f32 v3, {fx(1/640)}, v3
            v_fma_f32 v3, -v2, v2, v3
            v_max_f32 v3, 0, v3
            v_cvt_pk_bf16_f32 v2, v2, v3
            v_and_b32 v3, 0xffff0000, v2
            v_add_f32 v3, {fx(1e-5)}, v3
            v_cvt_pk_bf16_f32 v3, v3, v3
            v_lshlrev_b32 v3, 16, v3
            v_sqrt_f32 v3, v3
            v_lshlrev_b32 v2, 16, v2
            v_cvt_pk_bf16_f32 v3, v3, v3
            v_lshlrev_b32 v3, 16, v3
            v_rcp_f32 v4, v3""")
        e(un)
        e("v_mul_f32_e64 v6, -v2, v4")
        for i in range(10):
            e(f"v_pk_fma_f32 v[{80+2*i}:{81+2*i}], v[{80+2*i}:{81+2*i}], v[4:5], v[6:7] op_sel_hi:[1,0,0]")
        for i in range(10):
            e(f"v_cvt_pk_bf16_f32 v{128+i}, v{80+2*i}, v{81+2*i}")
        e("ds_write_b128 v141, v[128:131]\nds_write_b128 v141, v[132:135] offset:512\nds_write2_b32 v140, v136, v137 offset1:32")
        e(f"ds_write_b16_d16_hi v143, v3 offset:{LNS}\nds_write_b16_d16_hi v143, v2 offset:{LNS + 4}")
        e("s_waitcnt lgkmcnt(0)\ns_barrier")
        for k in range(3):
            e(f"""ds_read_b64_tr_b16 v[{100+4*k}:{101+4*k}], v142 offset:{512*k}
                ds_read_b64_tr_b16 v[{102+4*k}:{103+4*k}], v142 offset:{512*k + 4*LNS}""")
        e(f"""v_readfirstlane_b32 s44, v9
            s_add_u32 s44, s44, 1
            s_xor_b32 s45, s44, 0x5bd1e995
            v_mov_b32 v{e.vTAG}, s44
            v_mov_b32 v{e.vTAG+1}, s45""")
        for k in range(3):
            e(f"buffer_store_dwordx4 v[{100+4*k}:{103+4*k}], v{8 if k < 2 else 37}, {SRD}, s{51+k} offen sc1", tag="ln")
        e(self.stamp(2))
        out, self.p, self.in_ln = self.p, keep, False
        return out

    def ln_publish(self):
        return mk("@vm ln\ns_barrier") + self.signal_all(F1) + self.stamp(3)

    TB0 = 200
    vUB, vBB, vHST, vDMA, vPOLL, vST = 200, 208, 209, 210, 211, 212
    vAB, vBW, vR2, vR3, vK2A, vK3A = 216, 217, 218, 220, 222, 223
    vKTX, vKTY, vKNW, vK2W, vK3W, vW4S, vW4D, vW4S3, vW4D3, vZB = range(224, 234)
    vBAND, vL16 = 236, 252

    def lane_table(self):
        e = self
        tab = {r: [0] * 64 for r in range(200, 252)}
        ua = lambda ap, hh, s: 256 * ap + 128 * (hh & 1) + 16 * ((4 * (hh >> 1) + s) ^ (ap & 7))
        for l in range(64):
            col, h, q, r, c, h2 = l & 15, l >> 4, (l >> 2) & 3, l & 3, l & 31, l >> 5
            for j in range(8): tab[e.vUB + j][l] = U0 + 2048 + ua(col - j, h, 0)
            o8 = 2 * col - 1 + h
            tab[e.vBB][l] = U0 + 4096 + ua(o8 >> 2, o8 & 3, 0)
            tab[e.vHST][l] = 40960 * col + 16 * h
            tab[e.vDMA][l] = UT + 40960 + UP * h + 16 * col
            tab[e.vPOLL][l] = F1 + 64 * l
            for s in range(4): tab[e.vST + s][l] = U0 + 2048 + ua(col, h, s)
            tab[e.vAB][l] = 32 * (q - h) + 8 * r
            tab[e.vBW][l] = PS * ((h + 3) & 3) + 8 * (col + ((h + 7) >> 2))
            for mt in range(2):
                v = 2 * r + mt + q
                tab[e.vR2 + mt][l] = (A3 if q & 1 else A5) + PS * (v & 3) + 8 * ((v >> 2) + 2 * h)
                v = 2 * r + mt + 2 * q
                tab[e.vR3 + mt][l] = (A7 if q & 1 else A9) + PS * (v & 3) + 8 * ((v >> 2) + 4 * h)
            tab[e.vK2A][l] = 16 * (h - col); tab[e.vK3A][l] = 8 * (2 * h - col)
            tab[e.vKTX][l] = KTS * (c - 16 if c > 22 else c) + 16 * h2
            tab[e.vKTY][l] = KTS * c + 16 * h2
            tab[e.vKNW][l] = 8 * (2 * c + h2)
            tab[e.vK2W][l] = -(128 * h2 + 4 * c); tab[e.vK3W][l] = -(128 * h2 + 2 * c)
            tab[e.vW4S][l] = 8 * l
            tab[e.vW4D][l] = W4P * (l & 1) + 32 * (l >> 1)
            tab[e.vW4S3][l] = {0: 1032, 1: 1040, 24: 1048, 25: 1056}.get(l, 0)
            tab[e.vW4D3][l] = tab[e.vW4D][l] + 2176 if l < 40 else 0
            tab[e.vZB][l] = {16: KN, 17: KN + 1040, 18: KN + 1056}.get(l, (A5, A3, A9, A7)[q] + PS * r)
            for rr in range(e.vAB, e.vZB + 1): tab[rr][l] += CH0
            for b, w in enumerate((2, 1, 4, 3)):
                for m in range(4):
                    on = lambda k: 0x3F80 if abs(8 * h + k - 4 - col) <= w else 0
                    tab[e.vBAND + 4 * b + m][l] = on(2 * m) | on(2 * m + 1) << 16
        words = [tab[200 + 4 * k + i][l] for k in range(13) for l in range(64) for i in range(4)]
        return "\n".join(".long " + ",".join(hex(x) if x > 99999 else str(x) for x in words[n:n + 16]) for n in range(0, len(words), 16))
    def table_loads(self, ks):
        return [I(f"global_load_dwordx4 v[{200+4*k}:{203+4*k}], v{254 + (k >= 8)}, s[46:47] offset:{1024 * (k % 8) - 4096}") for k in ks]

    def conv_consts_a(self):
        e = self
        e(f"""s_mul_i32 s70, s{sW}, {CHS}
            v_lshlrev_b32 v{e.vL16}, 4, v1
            v_add_u32 v254, L_table-L_pc+4096, v{e.vL16}
            v_add_u32 v255, 8192, v254
            v_mov_b32 v190, 0
            v_mov_b32 v191, 0
            v_mov_b32 v192, 0
            v_mov_b32 v193, 0
            v_lshlrev_b32 v186, 4, v0
            v_add_u32 v187, s70, v{e.vL16}
            v_mov_b32 v188, 0x3f80
            s_mov_b32 m0, s70
            ds_write_b128 v186, v[190:193] offset:{U0}
            ds_write_b128 v187, v[190:193] offset:{CH0 + W4}
            ds_write_b128 v187, v[190:193] offset:{CH0 + W4 + W4P}
            ds_write_b128 v187, v[190:193] offset:{CH0 + K2}
            ds_write_b128 v187, v[190:193] offset:{CH0 + K2 + 112}
            ds_write_addtid_b32 v188 offset:{CH0}
            s_lshl_b32 s59, s{sW}, 12""")
    def conv_fix(self):
        e = self
        a = mk(f"""v_add_u32 v{e.vKTX}, s70, v{e.vKTX}
            v_add_u32 v{e.vKTY}, s70, v{e.vKTY}
            s_lshl_b32 s48, s{sCLS}, 14
            s_lshl_b32 s49, s{sW}, 12
            s_add_u32 s48, s48, s49
            v_add_u32 v{e.vPOLL}, s48, v{e.vPOLL}
            s_mul_i32 s49, s{sW}, {16 * UP}
            v_add_u32 v176, s49, v{e.vDMA}
            s_lshr_b32 s48, s50, 2
            s_sub_u32 s48, 160, s48
            s_lshl_b32 s48, s48, 8
            v_subrev_u32 v{e.vDMA}, s48, v176
            v_add_u32 v{e.vZB}, s70, v{e.vZB}""")
        b = mk([f"v_add_u32 v{r}, s55, v{r}" for r in list(range(e.vKNW, e.vZB)) + list(range(e.vAB, e.vKTX))])
        b += mk(f"s_lshl_b32 s68, s{sW}, 4") + mk([f"v_xor_b32 v{r}, s68, v{r}" for r in range(e.vUB, e.vBB + 1)])
        b += mk(f"""s_lshl_b32 s68, s50, 2
            s_and_b32 s68, s68, 32
            v_xor_b32 v{e.vHST}, s68, v{e.vHST}
            s_lshl_b32 s68, s50, 6
            v_add_u32 v{e.vHST}, s68, v{e.vHST}
            s_mul_i32 s69, s{sIDX}, {-7 * 64}
            s_mul_i32 s48, s{sCLS}, {19 * 64}
            s_add_u32 s69, s69, s48""") + e.hint_setup(199, "s69")
        b += mk(f"s_add_u32 s48, s69, {F2B}\nv_add_u32 v{e.vSIG}, s48, v{e.vSIG}") + e.extra_lanes(198, f"s_min_u32 s48, s2, 1\ns_lshl_b32 s48, s48, 30")
        return a, b

    @staticmethod
    def cmul(d, z, w, t):
        return [f"v_pk_mul_f32 v[{t}:{t+1}], v[{z}:{z+1}], v[{w}:{w+1}] op_sel:[1,1] op_sel_hi:[1,0] neg_lo:[1,0]",
                f"v_pk_fma_f32 v[{d}:{d+1}], v[{z}:{z+1}], v[{w}:{w+1}], v[{t}:{t+1}] op_sel_hi:[0,1,1]"]

    def kgen_setup(self, j):
        out = []
        for a in range(6):
            src = 20 + a if j < 2 else 26 + a
            out.append(f"v_and_b32 v{146+a}, 0xffff0000, v{src}" if j == 1 else f"v_lshlrev_b32 v{146+a}, 16, v{src}")
        out += f"""v_mul_f32 v146, s56, v146
            v_mul_f32 v147, s57, v147
            v_mul_f32 v148, s58, v148
            v_mul_f32 v149, s58, v149
            v_mul_f32 v152, 0x41000000, v146
            v_mul_f32 v153, 0xc1000000, v147
            v_mul_f32 v154, 0x43800000, v146
            v_mul_f32 v155, 0x43800000, v147
            v_fract_f32 v147, v147
            v_fract_f32 v153, v153
            v_fract_f32 v155, v155
            v_exp_f32 v146, v146
            v_mul_f32 v44, v150, v148
            v_cos_f32 v38, v147
            v_mul_f32 v45, v150, v149
            v_sin_f32 v39, v147
            v_fma_f32 v44, -v151, v149, v44
            v_exp_f32 v152, v152
            v_fmac_f32 v45, v151, v148
            v_cos_f32 v40, v153
            v_mul_f32 v38, v146, v38
            v_sin_f32 v41, v153
            v_mul_f32 v39, v146, v39
            v_exp_f32 v154, v154
            v_mul_f32 v40, v152, v40
            v_cos_f32 v42, v155
            v_mul_f32 v41, v152, v41
            v_sin_f32 v43, v155
            v_mul_f32 v42, v154, v42
            v_mul_f32 v43, v154, v43""".split("\n")
        return mk(out)

    def kgen_tables(self):
        e = self
        W1, W8, W256 = 38, 40, 42
        rows = [0, 1, 2, 3, 4, 5, 6, 7, 256, 258, 260, 1288, 260, 262, 264, 1800, 516, 520, 1032, None, 772, 776, 1544]
        xs = [(("x", 0), None, None)] + [(("x", x), ("x", x - 1), "w1") for x in range(1, 9)] + [(("x", x), ("x", x - 256), "w256") for x in (256, 258, 260, 262, 264, 516, 520, 772, 776, 1032, 1288, 1544, 1800)]
        ys = [(("y", 1), None, None)] + [(("y", c), ("y", c - 1), "w8") for c in range(2, 32)]
        ny, nx = e.o.get("ky", 8), e.o.get("kx", 5)
        batches = [ys[len(ys) * k // ny: len(ys) * (k + 1) // ny] for k in range(ny)] + [xs[len(xs) * k // nx: len(xs) * (k + 1) // nx] for k in range(nx)]
        last = {}
        for b, its in enumerate(batches):
            for d, s, w in its:
                last[d] = max(last.get(d, b), b)
                if s: last[s] = b
        reg = {"w1": W1, "w8": W8, "w256": W256, ("y", 1): W8, ("x", 0): 44}
        free = [46, 48, 50, 52, 54, 56, 62, 168, 170, 172, 174, 144]
        out = []
        for b, its in enumerate(batches):
            mul, cvt, st = [], [], []
            for k, (d, s, w) in enumerate(its):
                if s:
                    reg[d] = free.pop(0)
                    mul += e.cmul(reg[d], reg[s], reg[w], 58 + 2 * (k & 1))
                if d != ("x", 8):
                    o = 156 + len(cvt)
                    cvt.append(f"v_cvt_pk_bf16_f32 v{o}, v{reg[d]}, v{reg[d]+1}")
                    for r in ([d[1]] if d[0] == "y" else [32 + n for n, x in enumerate(rows) if x == d[1]]):
                        st.append(f"ds_write_addtid_b32 v{o} offset:{CH0 + KTS * r}")
            for d in [d for d, l in last.items() if l == b and d not in (("y", 1), ("x", 0))]: free.append(reg[d])
            out.append((mk(mul), mk(cvt), mk(st)))
        return out, ny

    def kgen(self):
        e = self
        e(f"""v_lshlrev_b32 v32, 16, v32""")
        e(f"""
            v_mul_f32 v32, {fx(LOG2E)}, v32
            v_exp_f32 v32, v32
            v_lshlrev_b32 v33, 16, v33
            v_cvt_pk_bf16_f32 v32, v32, v32
            v_lshlrev_b32 v32, 16, v32
            v_mul_f32 v34, {fx(LOG2E)}, v32
            v_mul_f32 v35, 0.15915494, v32
            v_readfirstlane_b32 s58, v32
            v_readfirstlane_b32 s56, v34
            v_readfirstlane_b32 s57, v35
            s_mov_b32 s55, s70""")
        drip = []
        def wdrip():
            w = e.w1_pack_issue(); drip.extend(w[k:k + 4] for k in range(0, 16, 4))
        if e.o.get("wl", 1) == 1: wdrip()
        def pub():
            if e.o.get("wl", 1) == 2: wdrip()
            return e.ln_publish()
        def gather():
            a, b = e.gather(); drip.extend(b)
            for k, i in enumerate(e.table_loads(range(9, 13))): drip[-4 + k] = drip[-4 + k][:3] + [i] + drip[-4 + k][3:]
            return a
        def pack():
            drip.extend([i] for i in e.w1_pack_stores())
            return e.w1_pack_perm() + e.stamp(9)
        hooks = {e.o.get("pub", 9): pub,
                 e.o.get("p1i", 24): lambda: e.poll_issue(e.vPOLL, 18),
                 e.o.get("pk", 17): pack,
                 e.o.get("p1c", 30): gather,
                 e.o.get("pw", 32): lambda: e.w1_publish(163) + e.stamp(12)}
        fix, e.late = e.conv_fix()
        hooks[e.o.get("fix", 6)] = lambda: fix
        assert len(hooks) == 6 and e.o.get("pk", 17) < e.o.get("p1c", 30)
        xrd = lambda: mk([f"ds_read_b128 v[{64+8*ks}:{67+8*ks}], v{e.vKTX} offset:{32*ks + 32*KTS}" for ks in range(8)])
        yrd = lambda: mk([f"ds_read_b128 v[{68+8*ks}:{71+8*ks}], v{e.vKTY} offset:{32*ks}" for ks in range(8)])
        mfs = lambda j: [I(f"v_mfma_f32_32x32x16_bf16 v[128:143], v[{64+8*ks}:{67+8*ks}], v[{68+8*ks}:{71+8*ks}], " + ("0" if j == 0 and ks == 0 else "v[128:143]")) for ks in range(8)]
        n, mf, xr, w1 = 0, [], [], e.w1_loads()
        e.w1_early = 0
        for j in range(3):
            e(e.kgen_setup(j))
            pend, yr = [], yrd()
            tb, ny = e.kgen_tables()
            for b, (mul, cvt, st) in enumerate(tb):
                e(mul)
                for _ in range(-(-len(mf) // (ny + 1 - b)) if b <= ny else 0): e(mf.pop(0))
                e(pend)
                for _ in range(min(len(xr), -(-8 // ny))): e(xr.pop(0))
                if b >= ny:
                    assert not mf and not xr
                    for _ in range(-(-len(yr) // (len(tb) - b))): e(yr.pop(0))
                if drip: e(drip.pop(0))
                if n in hooks: e(hooks[n]())
                e(cvt)
                pend = st; n += 1
            e(pend)
            xr, mf = xrd(), mfs(j)
            for _ in range(2 if j < 2 else 8): e(xr.pop(0))
        e(f"ds_write_b128 v{e.vZB}, v[190:193]")
        assert not drip
        e(e.stamp(11))
        fwi = mk(f"s_mov_b32 s70, {FW - F1}") + e.poll_issue(e.vPOLL, 234, "s70")
        if e.o.get("fwi", 1) == 0: e(fwi)
        e(e.late[:16])
        for k, m in enumerate(mf):
            e(m); e(e.late[16 + 5 * k: 21 + 5 * k])
        assert len(e.late) <= 56
        R = 128
        e(f"""v_cmp_eq_u32 vcc, 0, v1
            s_mov_b32 s71, 0xffff
            v_cndmask_b32 v33, 0, v33, vcc
            v_add_f32 v{R}, v{R}, v33
            v_cvt_pk_bf16_f32 v20, v{R}, v{R+1}
            v_cvt_pk_bf16_f32 v21, v{R+2}, v{R+3}
            ds_write_b64 v{e.vKNW}, v[20:21] offset:{KN + 16}""")
        e(e.w4_reads(0))
        e(f"""v_cvt_pk_bf16_f32 v22, v{R+4}, v{R+4}
            v_cvt_pk_bf16_f32 v23, v{R+5}, v{R+6}
            v_cvt_pk_bf16_f32 v24, v{R+6}, v{R+6}
            v_cvt_pk_bf16_f32 v25, v{R+6}, 0
            v_cvt_pk_bf16_f32 v26, 0, v{R+9}
            v_cvt_pk_bf16_f32 v27, v{R+9}, 0
            v_cvt_pk_bf16_f32 v28, v{R+9}, v{R+8}
            v_cvt_pk_bf16_f32 v29, v{R+10}, v{R+7}
            ds_write_b64 v{e.vKNW}, v[22:23] offset:{KN + 16 + 512}
            ds_write_b32 v{e.vK2W}, v28 offset:{K2 + 508}
            ds_write_b16 v{e.vK3W}, v29 offset:{K3 + 254}
            ds_write_b16_d16_hi v{e.vK3W}, v29 offset:{K3 + 190}
            s_mov_b32 exec_lo, 0
            s_mov_b32 exec_hi, 0x80000000
            ds_write_b64 v{e.vKNW}, v[24:25] offset:{KN + 16 + 1024 - 504}
            ds_write2_b32 v{e.vK3W}, v26, v27 offset0:0 offset1:1
            s_mov_b64 exec, -1""".replace(f"ds_write2_b32 v{e.vK3W}, v26, v27 offset0:0 offset1:1", f"ds_write_b32 v{e.vKNW}, v26 offset:{KN + 16 + 1044 - 504}\nds_write_b32 v{e.vKNW}, v27 offset:{KN + 16 + 1048 - 504}"))
        if e.o.get("pw", 32) == 99: e(e.w1_publish(163) + e.stamp(12))
        e(e.w4_build(0))
        if e.o.get("fwi", 1) == 1: e(fwi)
        e.fwi = fwi
        e(self.stamp(5))

    W4S, W4O = 92, 128
    def w4_reads(self, rnd):
        e = self
        a, off = (e.vW4S, KN + 8 + 512 * rnd) if rnd < 2 else (e.vW4S3, KN)
        r = e.W4S + 4 * (rnd & 1)
        return mk(f"ds_read_b64 v[{r}:{r+1}], v{a} offset:{off}\nds_read_b64 v[{r+2}:{r+3}], v{a} offset:{off + 8}", tag=f"w4r{rnd}")
    def w4_build(self, rnd):
        e = self
        p0, p1, o0, o1 = (e.W4S + 4 * (rnd & 1) + i for i in range(4))
        d = e.W4O
        a, off = (e.vW4D, W4 + 128 + 1024 * rnd) if rnd < 2 else (e.vW4D3, W4)
        return mk(f"""v_bfi_b32 v{d}, s71, v{o0}, v{p1}
            v_bfi_b32 v{d+1}, s71, v{p1}, v{p0}
            v_alignbit_b32 v{d+2}, v{o0}, v{o0}, 16
            v_alignbit_b32 v{d+3}, v{p1}, v{p1}, 16
            v_bfi_b32 v{d+4}, s71, v{o1}, v{o0}
            v_mov_b32 v{d+5}, v{d}
            v_alignbit_b32 v{d+6}, v{o1}, v{o1}, 16
            v_mov_b32 v{d+7}, v{d+2}
            ds_write_b128 v{a}, v[{d}:{d+3}] offset:{off}
            ds_write_b128 v{a}, v[{d+4}:{d+7}] offset:{off + 16}""")

    def gather(self):
        e = self
        out = e.stamp(10) + e.poll_check(e.vPOLL, 18) + e.stamp(4)
        items = []
        for lds, va in ((U0 + 4096, e.vDMA), (X0, 176)):
            for k in range(4):
                items.append(mk(f"s_add_u32 m0, s59, {lds + 1024 * k}") + mk(f"global_load_lds_dwordx4 v{va}, s[34:35] sc1", tag="u") +
                             mk("s_mov_b32 m0, s70") + (mk(f"v_add_u32 v{va}, {4 * UP}, v{va}") if k < 3 else []))
        return out, items

    def w1_loads(self):
        out = []
        for n in range(60):
            gq, k = n // 15, n % 15
            b = 4 + 4 * gq + 2 * (k // 8)
            out.append(I(f"global_load_dwordx4 a[{4*n}:{4*n+3}], v{self.vL16}, s[{b}:{b+1}] offset:{1024 * (k % 8) - 4096} sc1", tag="w1"))
        return out

    def ffn_ids(self):
        return mk(f"""s_and_b32 s62, s{sCLS}, 1
            s_lshl_b32 s62, s62, 3
            s_lshr_b32 s48, s{sIDX}, 2
            s_add_u32 s62, s62, s48
            s_lshr_b32 s63, s{sCLS}, 1
            s_and_b32 s48, s{sIDX}, 3
            s_lshl2_add_u32 s63, s63, s48
            s_lshl2_add_u32 s60, s63, s{sW}
            s_mul_i32 s60, s60, 61440
            s_add_u32 s60, s60, {W1P + 4096}
            s_add_u32 s39, s{sW}, {"s62" if self.o.get("rot", 0) else 0}
            s_and_b32 s39, s39, 3""") + [i for gq in range(4) for i in mk(f"""s_add_u32 s48, s39, {gq}
            s_and_b32 s48, s48, 3
            s_mul_i32 s48, s48, 15360
            s_add_u32 s48, s48, s60
            s_add_u32 s{4+4*gq}, s34, s48
            s_addc_u32 s{5+4*gq}, s35, 0
            s_add_u32 s{6+4*gq}, s{4+4*gq}, 8192
            s_addc_u32 s{7+4*gq}, s{5+4*gq}, 0""")]

    def fw_poll_addr(self, va):
        return mk(f"""s_lshl_b32 s48, s{sCLS}, 12
            s_add_u32 s48, s48, {FW + 160 * 16}
            v_lshl_add_u32 v{va}, v1, 4, s48
            v_add_u32 v{va+1}, 512, v{va}""")

    def conv(self):
        e = self; o = e.o
        ACC = lambda t, mt: 144 + 8 * t + 4 * mt
        BR, AR, XB, XD, XC, K2F, K3F, AX, XU = 2, 50, 100, 108, 124, 68, 128, 100, 180
        main = []
        def mf(acc, A, B, need, zero=False):
            main.append(I(f"v_mfma_f32_16x16x32_bf16 v[{acc}:{acc+3}], v[{A}:{A+3}], v[{B}:{B+3}], " + ("0" if zero else f"v[{acc}:{acc+3}]"), need=need))
        def rd(txt, reg, n, tag, grp):
            return I(txt, tag=grp, put={("v", reg + i): tag for i in range(n)})
        def nd(*items): return {("v", reg + i): tag for reg, n, tag in items for i in range(n)}
        start, reads, pos = [], [], {}
        boxes = [(T, b) for T in range(6) for b in range(4) if not (b >= 2 and T >= 4)]
        arr = (A5, A3, A9, A7)
        nbox, box_at = 0, []
        early = o.get("t0e", 1)
        J = list(range(4, 16)) + [2, 3, 0, 1] if early else list(range(2, 16)) + [0, 1]
        J2 = [0, 1, 2, 3, 12, 13, 14, 15]
        for s, j in enumerate(J):
            grp = f"s{s}"
            start.append(len(main)); R = []
            b0 = BR + 16 * (s % 3)
            steps = [(0, 4 * j, (0, 1))]
            if j == 0: steps += [(1, 64, (0, 1)), (2, 76, (0, 1))]
            if j == 1: steps += [(1, 68, (0,)), (2, 80, (0,))]
            def bread(reg, jj, i):
                return rd(f"ds_read_b128 v[{reg}:{reg+3}], v{e.vUB + (jj & 7)} offset:{4096 * i + 2048 - 2048 * (jj >> 3)}", reg, 4, ("B", jj, i), grp)
            def areads(a0, o0, jj, iF, mts):
                base = W4 + 128 + 32 * o0
                return [rd(f"ds_read_b64 v[{a0+k}:{a0+k+1}], v{e.vAB} offset:{off}", a0 + k, 2, ("A", jj, iF, k), grp)
                        for k, off in ((0, base + W4P), (2, base), (4, base + W4P - 32)) if not (k == 0 and mts == (0,))]
            def mm(t, mt, a0, jj, iF, breg):
                A = a0 + 2 - 2 * mt
                pos.setdefault((t, mt), []).append(len(main))
                mf(ACC(t, mt), A, breg, nd((A, 2, ("A", jj, iF, 2 - 2 * mt)), (A + 2, 2, ("A", jj, iF, 4 - 2 * mt)), (breg, 4, ("B", jj, t - iF))))
            skip0 = early and s >= 8
            for i in range(4):
                if i or not skip0 or j < 2: R.append(bread(b0 + 4 * i, j, i))
            for iF, o0, mts in steps:
                a0 = AR + 6 * (s % 3) if iF == 0 else AX - 6 + 6 * iF + 12 * j
                ar = areads(a0, o0, j, iF, mts)
                R = ar + R if iF == 0 else R + ar
                for t in range(iF, 4):
                    if t == 0 and skip0: continue
                    for mt in mts: mm(t, mt, a0, j, iF, b0 + 4 * (t - iF))
                    if t == 0 and early:
                        a2, b2 = 68 + 6 * (s % 3), (86, 136, 140)[s % 3]
                        R = R[:4] + areads(a2, 4 * J2[s], J2[s], 0, (0, 1)) + [bread(b2, J2[s], 0)] + R[4:]
                        for mt in range(2): mm(0, mt, a2, J2[s], 0, b2)
            for _ in range(min(2, 20 - nbox)):
                T, b = boxes[nbox]
                xb = XB + 4 * (T & 1); xd = XD + 4 * (nbox & 3)
                if b == 0:
                    R.append(rd(f"ds_read_b128 v[{xb}:{xb+3}], v{e.vBB} offset:{2048 * T}", xb, 4, ("XB", T), grp if T < 5 else "xb5"))
                mf(xd, e.vBAND + 4 * b, xb, nd((xb, 4, ("XB", T))), zero=True)
                xc = XC + 2 * (nbox & 1)
                main[-1].put = nd((xd, 4, ("XD", nbox)))
                box_at.append((len(main) - 1, [
                    I(f"v_cvt_pk_bf16_f32 v{xc}, v{xd}, v{xd+1}", need=nd((xd, 2, ("XD", nbox))), put=nd((xc, 1, ("XC", nbox)))),
                    I(f"v_cvt_pk_bf16_f32 v{xc+1}, v{xd+2}, v{xd+3}", need=nd((xd + 2, 2, ("XD", nbox))), put=nd((xc + 1, 1, ("XC", nbox)))),
                    I(f"ds_write_b64 v{e.vBW}, v[{xc}:{xc+1}] offset:{arr[b] + 128 * T}", need=nd((xc, 2, ("XC", nbox))))]))
                nbox += 1
            reads.append(R)
        far = [("2", 0), ("2", 2), ("3", 0), ("2", 4), ("2", 6), ("2", 8), ("2", 10), ("3", 2)]
        kreads = []
        for phi in range(1, 9):
            kreads.append(rd(f"ds_read_b128 v[{K2F+4*(phi-1)}:{K2F+4*(phi-1)+3}], v{e.vK2A} offset:{K2 + 752 - 64 * phi}", K2F + 4 * (phi - 1), 4, ("K2", phi), None))
        for phi in range(3, 7):
            for k in range(2):
                r_ = K3F + 4 * (phi - 3) + 2 * k
                kreads.append(rd(f"ds_read_b64 v[{r_}:{r_+1}], v{e.vK3A} offset:{K3 + 504 - 64 * phi + 8 * k}", r_, 2, ("K3", phi), None))
        for s, (reg, k0) in enumerate(far, 16):
            start.append(len(main)); R = []
            b0 = BR + 16 * (s % 3)
            for kk in range(2):
                ks = k0 + kk
                for mt in range(2):
                    a0 = b0 + 8 * kk + 4 * mt
                    va, st, hf = (e.vR2 + mt, 64, 8) if reg == "2" else (e.vR3 + mt, 128, 16)
                    for k in range(2):
                        R.append(rd(f"ds_read_b64_tr_b16 v[{a0+2*k}:{a0+2*k+1}], v{va} offset:{st * ks + hf * k}", a0 + 2 * k, 2, ("F", reg, ks, mt), f"s{s}"))
                    for t in range(1, 4):
                        phi = 4 * t - ks if reg == "2" else 2 * t - ks
                        if (1 <= phi <= 8 if reg == "2" else 3 <= phi <= 6):
                            kf = K2F + 4 * (phi - 1) if reg == "2" else K3F + 4 * (phi - 3)
                            pos[t, mt].append(len(main))
                            mf(ACC(t, mt), a0, kf, nd((a0, 4, ("F", reg, ks, mt)), (kf, 4, ("K" + reg, phi))))
            reads.append(R)
        ns = len(reads); start.append(len(main))
        xb5 = [r for r in reads[9] if r.tag == "xb5"]; reads[9] = [r for r in reads[9] if r.tag != "xb5"]
        g = Sched(main)
        SO = X0 - U0 - 2048
        g.pre = [I(f"ds_read_b128 v[{ACC(t, mt)}:{ACC(t, mt)+3}], v{e.vST + 2 + mt} offset:{SO + 4096 * t}", tag="s0") for t in range(4) for mt in range(2)]
        g.pre = reads[0] + g.pre + reads[1] + e.w4_reads(1) + e.w4_reads(2) + mk("@lgkm s0")
        w41 = g.add(e.w4_build(1), 2, start[2 if early else 3] - 1, prio=1)
        w42 = g.add(e.w4_build(2), 2, start[9], after=[(w41[-1], 0)])
        for s in range(ns - 2):
            g.add(reads[s + 2], start[s], start[s + 1] + (2 if s < 19 else 0), prio=2, pace=True)
            g.add(mk(f"@lgkm s{s+1}"), start[s + 1] - 1, start[s + 1] - 1, prio=3)
        g.add(mk(f"@lgkm s{ns-1}"), start[ns - 1] - 1, start[ns - 1] - 1, prio=3)
        g.add(xb5, start[8], start[8] + 3, prio=2)
        prev = [None, None]
        for n, (k, ins) in enumerate(box_at):
            prev[n & 1] = g.add(ins, k + 3, k + 14, after=[(prev[n & 1], 0)] if prev[n & 1] else None, prio=1)[-1]
        g.add(kreads, start[10], start[15], after=[(w42[-1], 0)])
        last = None
        for t in range(4):
            s = o.get("xs", 7) + 2 * t
            chain = lambda mt, k: pos[t, mt][k]
            if early and t == 0:
                s = o.get("xs0", 4); chain = lambda mt, k, last=False: pos[0, mt][2 * k + 1]
            r = g.add([I(f"ds_read_b128 v[{XU}:{XU+3}], v{e.vUB} offset:{2048 + 4096 * t}", tag=f"xr{t}")] +
                      [I(f"ds_read_b128 v[{XU+4+4*mt}:{XU+7+4*mt}], v{e.vST + mt} offset:{SO + 4096 * t}", tag=f"xr{t}") for mt in range(2)],
                      0, chain(0, s - 1) - 6, after=[(last, 0)] if last else None, prio=1)
            for mt in range(2):
                p = chain(mt, s - 1 + mt); q = pos[t, mt][pos[t, mt].index(p) + 1]
                un = g.add(mk(([f"@lgkm xr{t}"] if mt == 0 else []) + [f"v_lshlrev_b32 v{XU+12+2*k}, 16, v{XU+2*mt+k}\nv_and_b32 v{XU+13+2*k}, 0xffff0000, v{XU+2*mt+k}" for k in range(2)]),
                           0, p + 2, after=[(r[-1], 5)] if mt == 0 else [(last, 0)])
                last = g.add(mk([f"v_fmac_f32 v{ACC(t, mt)+k}, v{XU+4+4*mt+k}, v{XU+12+k}" for k in range(4)]), p + 3, q - 2, after=[(un[-1], 0)], prio=2)[-1]
        def hstore(t):
            oo = 86 if early and t == 0 else XU + 4 * t
            return mk([f"s_mov_b32 s68, {HT + 16 * 40960 * t}"] + [f"v_cvt_pk_bf16_f32 v{oo+k}, v{ACC(t, k >> 1) + 2 * (k & 1)}, v{ACC(t, k >> 1) + 2 * (k & 1) + 1}" for k in range(4)]) + \
                mk(f"buffer_store_dwordx4 v[{oo}:{oo+3}], v{e.vHST}, {SRD}, s68 offen sc1", tag=f"hs{min(t, 2)}")
        for t in range(3):
            p = max(pos[t, 0][-1], pos[t, 1][-1])
            st = g.add(hstore(t), p + 3, p + 8, after=[(last, 0)] if t or not early else None, prio=2)[-1]
            if t or not early: last = st
            if t == 0:
                g.add(mk(f"""s_add_u32 s48, s69, {F2}
                    @vm hs0
                    s_barrier
                    buffer_store_dwordx2 v[{e.vTAG}:{e.vTAG+1}], v199, {SRD}, s48 offen sc1""") + e.stamp(8), 0, len(main) - 1, after=[(st, o.get("sga", 44))], prio=2)
        w1 = e.w1_loads(); n1 = o.get("w1n", 39)
        fwc = o.get("fwc", 14)
        chk = e.poll_check(e.vPOLL, 234, "s70")
        if o.get("fwi", 1) > 1: g.add(e.fwi, o.get("fwi", 1), o.get("fwi", 1) + 2, prio=2)
        if fwc >= 0:
            c = g.add([chk[0], chk[1:], I("s_barrier")], fwc, fwc + 4, prio=2)
        ids, blk = e.ffn_ids(), []
        for i in ids:
            if i.mn == "s_addc_u32": blk[-1] = [blk[-1], i]
            else: blk.append(i)
        sid = g.add(blk[:18], 0, fwc + 4)
        sid2 = g.add(blk[18:], 0, fwc + 30, after=[(sid[-1], 0)])
        wl = g.add(w1[:n1], fwc + 5, start[o.get("w1e", 22)], pace=True, win=3, after=[(c[-1], 0), (sid[-1], 1)])
        wl[15]["after"] = [(sid2[-1], 1)]
        if fwc < 0: e(chk)
        e("@vm u\ns_barrier")
        e(e.stamp(6))
        e.pre_conv = list(e.p); e.conv_stream = g.run(); e.conv_steps = (main, start)
        e(e.conv_stream)
        e(e.stamp(7))
        e(hstore(3))
        if e.stop == "conv": return
        import gen_ffn as F
        sa, sb = F.setup(e)
        n2 = F.w1_before(e)
        e(sa)
        g = Sched(F.colsums()[:n2], dense=True)
        g.add(sb, 0, n2 - 1)
        if n2 > n1: g.add(w1[n1:n2], 0, 4 * (n2 - n1), pace=True, prio=1)
        g.add(e.poll_issue(F.vPF, F.PD), o.get("f2i", 0), o.get("f2i", 0), prio=2)
        g.add(mk(f"""s_mov_b32 s48, {F2C - F2B}
            @vm hs1
            s_barrier
            buffer_store_dwordx2 v[{e.vTAG}:{e.vTAG+1}], v{e.vSIG}, {SRD}, s48 offen sc1"""), o.get("sgc", 8), o.get("sgc", 8) + 4, prio=2)
        assert o.get("f2c", 20) > o.get("sgc", 8) + 4
        st = g.run()
        k = [n for n, i in enumerate(st) if i.kind == "mfma"][o.get("f2c", 20)]
        e(st[:k]); e(e.stamp(13))
        e(e.poll_check(F.vPF, F.PD)); e(e.stamp(1) if o.get("fst") else [])
        rest, c0 = st[k:], F.chunk(0)
        while c0:
            e(c0.pop(0))
            if e.p[-1].kind == "vm":
                while rest:
                    e(rest.pop(0))
                    if rest and rest[0].kind == "mfma":
                        e(rest.pop(0)); break
        e(rest)
        e(f"""@vm hs2
            s_barrier
            buffer_store_dwordx2 v[{e.vTAG}:{e.vTAG+1}], v198, {SRD}, 0 offen sc1""")

    def w1_pack_loads(self):
        out = mk(f"""s_lshl2_add_u32 s71, s2, s{sW}
            s_min_u32 s71, s71, 959
            s_mul_i32 s72, s71, 5462
            s_lshr_b32 s72, s72, 16
            s_mul_i32 s48, s72, 12
            s_sub_u32 s71, s71, s48
            s_mul_i32 s48, s72, {8 * 3072}
            s_lshl_b32 s49, s71, 8
            s_add_u32 s48, s48, s49
            s_add_u32 s48, s48, 3072
            v_lshl_add_u32 v196, v6, 2, s48
            v_mov_b32 v197, 0
            v_lshl_add_u64 v[194:195], v[196:197], 0, s[26:27]
            s_mov_b32 exec_hi, 0
            v_lshl_add_u64 v[194:195], v[196:197], 0, s[24:25]
            s_mov_b32 exec_hi, -1
            s_mov_b32 s48, 9216
            s_mov_b32 s49, 0
            v_lshl_add_u64 v[196:197], v[194:195], 0, s[48:49]
            v_lshl_add_u64 v[198:199], v[196:197], 0, s[48:49]""")
        return out
    def w1_pack_issue(self):
        out = []
        for j in range(8):
            for hf in range(2):
                a = 194 + 2 * (j // 3)
                out += mk(f"global_load_dword v{236+8*hf+j}, v[{a}:{a+1}], off offset:{3072 * (j % 3 - 1) + 128 * hf}")
        return out
    def w1_pack_addr(self):
        out = mk(f"""s_lshl_b32 s48, s71, 4
            v_bfe_u32 v160, v1, 3, 2
            v_lshl_add_u32 v160, v160, 1, s48
            s_lshr_b32 s48, s72, 2
            s_mul_i32 s48, s48, 3072
            s_and_b32 s49, s72, 3
            s_lshl_b32 s49, s49, 8
            s_add_u32 s48, s48, s49
            s_add_u32 s48, s48, {W1P}
            v_and_b32 v161, 1, v1
            v_lshl_add_u32 v161, v161, 4, s48
            v_bfe_u32 v162, v1, 1, 2
            v_lshl_add_u32 v161, v162, 6, v161
            v_and_b32 v162, 32, v1
            v_add_u32 v161, v161, v162
            s_mov_b32 s49, 57
            s_mov_b32 s72, 0x05040100
            s_mov_b32 s73, 0x07060302""")
        for t in range(4):
            out += mk(f"""v_mul_u32_u24 v162, 21846, v160
                v_lshrrev_b32 v162, 16, v162
                v_mad_u32_u24 v162, v162, s49, v160
                v_lshl_add_u32 v{164+t}, v162, 10, v161""")
            if t < 3: out += mk(f"v_add_u32 v160, {7 if t == 1 else 1}, v160")
        return out
    def w1_pack_perm(self):
        return mk([f"v_perm_b32 v{2+4*t+jj}, v{236+8*(t>>1)+2*jj+1}, v{236+8*(t>>1)+2*jj}, s{72+(t&1)}" for t in range(4) for jj in range(4)])
    def w1_pack_stores(self):
        return mk([f"global_store_dwordx4 v{164+t}, v[{2+4*t}:{5+4*t}], s[34:35] sc1" for t in range(4)], tag="w1p")
    def w1_pack(self):
        return self.w1_pack_perm() + self.w1_pack_stores() + self.stamp(9)
    def w1_publish(self, va=None):
        return mk("@vm w1p\ns_barrier") + self.signal_all(FW, va)

    def w2_consts(self):
        e = self
        e(f"""s_sub_u32 s50, s2, 160
            v_lshlrev_b32 v{e.vL16}, 4, v1
            s_lshr_b32 s55, s50, 1
            s_and_b32 s56, s50, 1
            s_mul_i32 s48, s55, {32 * 1280}
            s_mul_i32 s49, s56, 640
            s_add_u32 s48, s48, s49
            s_mul_i32 s49, s{sW}, {8 * 1280}
            s_add_u32 s48, s48, s49
            s_lshl2_add_u32 s56, s56, s{sW}
            s_mul_i32 s56, s56, 48
            s_add_u32 s55, s55, s56
            s_mul_i32 s56, s{sW}, 5120""")
        for n in range(5):
            e(f"""v_add_u32 v20, {64 * n}, v1
                v_mul_u32_u24 v21, 1639, v20
                v_lshrrev_b32 v21, 16, v21
                v_mul_u32_u24 v21, 640, v21
                v_lshl_add_u32 v21, v20, 4, v21
                v_add_u32 v{24+n}, s48, v21""")
        e(f"""v_bfe_u32 v20, v1, 2, 2
            v_bfe_u32 v21, v1, 4, 1
            v_lshl_add_u32 v20, v20, 1, v21
            v_lshrrev_b32 v21, 5, v1
            v_lshl_add_u32 v20, v21, 4, v20
            v_mul_u32_u24 v20, 640, v20
            v_and_b32 v21, 3, v1
            v_lshl_add_u32 v20, v21, 3, v20
            s_mul_i32 s48, s{sW}, 160
            v_add_u32 v20, s48, v20""")

    def helper_main(self):
        e = self
        wl, w2l = e.o.get("wl", 1), e.o.get("w2l", 3)
        dma = [i for n in range(5) for i in mk(f"s_add_u32 m0, s56, {1024 * n}") + mk(f"global_load_lds_dwordx4 v{24+n}, s[28:29]", tag="w2l")]
        e.x_loads(); e.w2_consts()
        if w2l == 0: e(dma)
        e(e.w1_pack_loads()); e.ln_consts()
        ln = e.ln1()
        e(ln[:20])
        if wl == 0: e(e.w1_pack_issue())
        if w2l == 1: e(dma)
        e(ln[20:])
        if wl == 1: e(e.w1_pack_issue())
        e(e.ln_publish())
        if wl == 2: e(e.w1_pack_issue())
        if w2l == 2: e(dma)
        if e.o.get("hd", 1): e("s_waitcnt vmcnt(0)")
        e(e.w1_pack_addr()); e(e.w1_pack_perm())
        e(e.ffn_ids())
        e(f"""s_lshl_b32 s48, s{sCLS}, 14
            s_add_u32 s48, s48, {FW}
            v_lshl_add_u32 v{e.vPOLL}, v0, 6, s48
            s_mul_i32 s58, s55, 5120
            s_add_u32 s58, s58, {W2P}
            s_add_u32 s59, s58, 4096""")
        e(e.w1_pack_stores()); e(e.stamp(9))
        w2s = mk([f"buffer_store_dwordx4 v[{32+4*t}:{35+4*t}], v{e.vL16}, {SRD}, s{58 + t // 4} offen offset:{1024 * (t & 3)} sc1" for t in range(5)], tag="w2p")
        e(e.w1_publish())
        e(e.stamp(4))
        if w2l == 3: e(dma); e("@vm w2l")
        e(e.stamp(10))
        e(e.hint_wait(FW))
        e(e.poll_issue(e.vPOLL, 192))
        for t in range(5):
            e(f"ds_read_b64_tr_b16 v[{32+4*t}:{33+4*t}], v20 offset:{32*t}\nds_read_b64_tr_b16 v[{34+4*t}:{35+4*t}], v20 offset:{32*t + 8*640}")
        e(e.poll_check(e.vPOLL, 192, slp=8))
        e("s_barrier")
        e(e.stamp(6))
        import gen_ffn as F
        w1 = e.w1_loads()[:F.w1_before(e)]; a, b = e.o.get("h1", 30), e.o.get("h2", 60)
        e(w1[:a]); e(w2s); e(w1[a:b])
        e(w1[b:])
        e("@vm w2p")
        e(e.stamp(5))
        if e.stop == "conv": return
        import gen_ffn as F
        sa, sb = F.setup(e)
        e(sa); e(sb); e(F.colsums()[:F.w1_before(e)])
        e(e.stamp(7))
        e(e.hint_wait(F2))
        e(e.stamp(13))
        e(e.poll_issue(F.vPF, F.PD)); e(e.poll_check(F.vPF, F.PD)); e(e.stamp(1) if e.o.get("fst") else [])
        e(F.chunk(0))
        e(e.signal_all(F2B))

    def finish_stamps(self):
        e = self
        if not e.stamps: return
        if e.o.get("nost"): e("s_waitcnt vmcnt(0)\ns_memrealtime s[100:101]")
        e(f"""s_waitcnt lgkmcnt(0)
            s_lshl2_add_u32 s48, s2, s{sW}
            s_lshl_b32 s48, s48, 6
            s_add_u32 s48, s48, {DBG}
            v_mov_b32 v2, s48""")
        for k in range(14):
            e(f"v_mov_b32 v3, s{74 + 2 * k}\nbuffer_store_dword v3, v2, {SRD}, 0 offen offset:{4 * k}")

    def build(self):
        e = self
        e.prologue()
        e(f"s_cmp_ge_u32 s{sIDX}, 20\ns_cbranch_scc1 L_helper")
        head = list(e.p)
        e.x_loads(); e.conv_param_loads(); e(e.w1_pack_loads()); e.ln_consts(); e(e.w1_pack_addr()); e(e.hint_setup(163, 0)); e.conv_consts_a()
        tl = e.table_loads([6, 2, 8, 0, 1, 3, 4, 5, 7])
        ln = e.ln1()
        k = e.o.get("tbl", 20)
        e(ln[:k]); e(tl)
        if e.o.get("wl", 1) == 0: e(e.w1_pack_issue())
        e(ln[k:])
        e.kgen(); e.conv()
        e("s_branch L_join")
        a, sa = finalize(e.p)
        e.p = list(head); e("L_helper:")
        e.helper_main()
        b, sb = finalize(e.p)
        k = next(n for n, i in enumerate(b) if i.text == "L_helper:")
        e.p = []
        e("L_join:")
        if e.stop != "conv":
            import gen_ffn
            e.in_ffn = True
            gen_ffn.ffn(e)
        e.finish_stamps()
        c, sc = finalize(e.p)
        self.stats = (sa, sb, sc)
        allp = a + b[k:] + c
        if e.o.get("al", 0): self.stats += (align8(allp),)
        body = "\n".join(("" if i.kind == "meta" else "    ") + i.text for i in allp if i.kind != "pseudo")
        return f"""; @launch grid=(256,1,1) block=(256,1,1) lds={LDS_BYTES}
; One persistent workgroup per CU. Hand-offs between workgroups go through write-through stores into d_ws and
.amdgcn_target "amdgcn-amd-amdhsa--gfx950"
.text
.globl {NAME}_kernel
.p2align 8
.type {NAME}_kernel,@function
{NAME}_kernel:
{body}
L_end:
    s_endpgm
{chr(10).join(self.cold)}
.p2align 7
L_table:
{self.lane_table()}
L_code_end:
.section .rodata,"a"
.p2align 6
.amdhsa_kernel {NAME}_kernel
  .amdhsa_next_free_vgpr 512
  .amdhsa_next_free_sgpr 102
  .amdhsa_accum_offset 256
  .amdhsa_group_segment_fixed_size 0
  .amdhsa_kernarg_size 128
  .amdhsa_user_sgpr_count 2
  .amdhsa_user_sgpr_kernarg_segment_ptr 1
  .amdhsa_system_sgpr_workgroup_id_x 1
.end_amdhsa_kernel
"""

if __name__ == "__main__":
    opt = {a.split("=")[0]: int(a.split("=")[1]) for a in sys.argv[4:]}
    k = K(stop=sys.argv[2] if len(sys.argv) > 2 and sys.argv[2] != "-" else None, stamps=len(sys.argv) > 3 and sys.argv[3] == "stamps", opt=opt)
    open(sys.argv[1], "w").write(k.build())
    print(k.stats, getattr(k, 'models', None))
```

```python
import math
from asmlib import I, mk, Gaps, Sched, model_cycles
import gen as G
from gen import fx, SRD, SRD2, sW, sCLS, sIDX, SLOT, STP, RST, RES, PART, HT, ACT, W2P, F2, F2B, F2C, F3

C0 = -2 * 0.7978845608028654 * math.log2(math.e)
vL16 = 252
TA = 2
FRG = 10
ACC = 50
S1, S2 = 74, 78
CS, ONES = 82, 94
CN = 98
T = 106
OUT = 120
vAST, vSW, vSR, vPF = 124, 125, 126, 127
W2E = 128
vSG, vTG = 116, 118
vPK = 117
PD = 254
MF = "v_mfma_f32_16x16x32_bf16"

def r4(kind, n): return f"{kind}[{n}:{n+3}]"

vW2, vX = 253, 115
NPK = 6

def setup(e):
    a = mk(f"""s_mul_i32 s57, s62, {SLOT}
        s_mul_i32 s58, s39, 10240
        s_add_u32 s57, s57, s58
        s_add_u32 s57, s57, {HT}
        s_mul_i32 s58, s58, 3
        v_add_u32 v{vPK}, s57, v{vL16}
        s_lshl_b32 s46, s{sCLS}, 14
        s_mul_i32 s47, s39, 2560
        s_add_u32 s47, s47, s46
        s_add_u32 s47, s47, {F2}
        v_min_u32 v{vPF}, 39, v1
        v_lshl_add_u32 v{vPF}, v{vPF}, 6, s47
        v_mov_b32 v{ONES}, 0x3f803f80
        v_mov_b32 v{ONES+1}, 0x3f803f80
        v_mov_b32 v{ONES+2}, 0x3f803f80
        v_mov_b32 v{ONES+3}, 0x3f803f80""")
    b = []
    for k in range(1, 4): b.append(mk(f"s_add_u32 s{20+2*k}, s34, {4096 * k}\ns_addc_u32 s{21+2*k}, s35, 0"))
    b += mk(f"""s_mov_b64 s[20:21], s[34:35]
        s_and_b32 s68, s63, 7
        s_lshr_b32 s72, s63, 3
        v_mov_b32 v{vTG}, s44
        v_mov_b32 v{vTG+1}, s45
        v_and_b32 v{T}, 15, v1
        v_lshrrev_b32 v{T+1}, 4, v1
        v_bfe_u32 v{T+2}, v1, 2, 2
        v_and_b32 v{T+3}, 3, v1
        v_lshlrev_b32 v{T+4}, 9, v{T+1}
        v_lshl_add_u32 v{T+4}, v{T+2}, 6, v{T+4}
        v_lshl_add_u32 v{T+4}, v{T+3}, 3, v{T+4}
        v_and_b32 v{T+5}, 1, v{T+1}
        v_lshl_add_u32 v{T+4}, v{T+5}, 5, v{T+4}""")
    for gq in range(4):
        b += mk(f"""s_add_u32 s47, s39, {gq}
            s_and_b32 s47, s47, 3
            s_mul_i32 s47, s47, 30720
            v_add_u32 v{TA+gq}, s47, v{T+4}
            v_xor_b32 v{TA+4+gq}, 32, v{TA+gq}""")
    b += mk(f"""v_mov_b32 v{OUT+3}, 0
        v_cmp_eq_u32 s[50:51], v{T+1}, v{T+2}
        v_cmp_gt_u32 s[52:53], 48, v1
        v_cmp_lt_u32 s[54:55], 39, v1
        s_lshl_b32 s47, s{sW}, 3
        s_add_u32 s47, s47, {STP}
        v_lshl_add_u32 v{vSW}, v{T}, 5, s47
        v_mov_b32 v{T+5}, {STP + 1024}
        v_lshl_add_u32 v{T+5}, v1, 3, v{T+5}
        v_cndmask_b32 v{vSW}, v{T+5}, v{vSW}, s[50:51]
        v_lshlrev_b32 v{vSR}, 5, v{T}
        v_add_u32 v{vSR}, {STP}, v{vSR}
        v_mov_b32 v{T+5}, 0x40000000
        v_cndmask_b32 v{vAST}, v{T+5}, v{vL16}, s[52:53]
        v_cmp_gt_u32 s[50:51], 8, v1
        s_mul_i32 s56, s62, {8 * 192 * 256}
        s_add_u32 s60, s56, {ACT}
        s_lshl2_add_u32 s47, s63, s{sW}
        s_mul_i32 s56, s47, 768
        s_add_u32 s56, s56, s60
        s_lshl_b32 s61, s62, 6
        s_add_u32 s47, s47, s61
        s_lshl_b32 s47, s47, 6
        s_add_u32 s47, s47, {F3}
        v_lshl_add_u32 v{vSG}, v1, 3, s47
        v_cndmask_b32 v{vSG}, v{T+5}, v{vSG}, s[50:51]
        s_mul_i32 s47, s{sW}, {24 * 64}
        s_add_u32 s47, s47, s46
        s_and_b32 s46, s68, 4
        s_lshl4_add_u32 s47, s46, s47
        s_add_u32 s47, s47, {F2 + 64 * 160 - 128 * 40}
        v_min_u32 v0, 51, v1
        v_lshl_add_u32 v0, v0, 7, s47
        v_cndmask_b32 v0, v{vPF}, v0, s[54:55]
        v_cmp_eq_u32 s[50:51], 1, v{T+3}
        v_cmp_eq_u32 s[52:53], 2, v{T+3}
        v_cmp_eq_u32 s[54:55], 3, v{T+3}
        s_lshl2_add_u32 s59, s68, s{sW}
        s_mul_i32 s59, s59, {12 * 5120}
        s_add_u32 s59, s59, {W2P}
        s_mul_i32 s47, s72, {192 * 256}
        s_add_u32 s60, s60, s47
        s_mul_i32 s47, s{sW}, {48 * 256}
        s_add_u32 s60, s60, s47
        s_lshr_b32 s47, s68, 1
        s_mul_i32 s47, s47, 30720
        s_and_b32 s46, s68, 1
        s_mul_i32 s46, s46, 5120
        s_add_u32 s47, s47, s46
        v_lshl_add_u32 v{T+6}, v{T+1}, 2, v{T+2}
        v_lshlrev_b32 v{T+6}, 6, v{T+6}
        v_lshl_add_u32 v{T+6}, v{T+3}, 3, v{T+6}
        v_lshrrev_b32 v{T+7}, 1, v{T+1}
        v_xor_b32 v{T+7}, s72, v{T+7}
        v_lshl_add_u32 v{T+6}, v{T+7}, 5, v{T+6}
        v_add_u32 v{T+6}, s47, v{T+6}
        v_mul_u32_u24 v{T+7}, 176, v{T}
        v_lshl_add_u32 v{T+7}, v{T+1}, 3, v{T+7}
        v_add_u32 v{T+7}, {RES}, v{T+7}
        s_mul_i32 s33, s{sW}, {1024 * NPK}
        s_add_u32 s33, s33, {RST}
        s_mov_b32 s32, {fx(1/640)}
        v_mov_b32 v{T+8}, {fx(1e-5)}""")
    return a, b

def code_touch(e, lines, dst):
    L = e.lab("pc")
    return [mk(f"s_getpc_b64 s[28:29]\n{L}:")] + mk(f"""s_mul_i32 s71, s{sIDX}, {128 * lines}
        v_min_u32 v{dst}, {lines - 1}, v1
        v_lshl_add_u32 v{dst}, v{dst}, 7, s71
        v_min_u32 v{dst}, L_table-{L}, v{dst}
        global_load_dword v{dst}, v{dst}, s[28:29]""")

def f3_prewarm(e):
    return mk(f"""s_lshl2_add_u32 s48, s63, s{sW}
        s_lshl_b32 s49, s62, 6
        s_add_u32 s48, s48, s49
        s_lshl_b32 s48, s48, 6
        s_add_u32 s48, s48, {F3}
        v_lshrrev_b32 v{T+4}, 3, v1
        v_and_b32 v{T+5}, 7, v1
        v_lshlrev_b32 v{T+4}, 16, v{T+4}
        v_lshl_add_u32 v{T+4}, v{T+5}, 3, v{T+4}
        buffer_store_dwordx2 v[{ONES}:{ONES+1}], v{T+4}, {SRD}, s48 offen sc1""")

def w1_before(e):
    return e.o.get("w1b", 45)

def colsums():
    return [I(f"{MF} {r4('v', CS + 4 * t)}, {r4('a', 12 * p + 4 * t)}, {r4('v', ONES)}, " + ("0" if p == 0 else r4('v', CS + 4 * t))) for p in range(20) for t in range(3)]

def dma(va, k0, m0base, m0off, n, tag):
    out = []
    for k in range(k0, k0 + n):
        if k % 4 == 0 or k == k0: out += mk(f"s_add_u32 m0, s{m0base}, {m0off + 1024 * (k - k % 4 - k0)}")
        b = 20 + 2 * (k // 4)
        out += mk(f"global_load_lds_dwordx4 v{va}, s[{b}:{b+1}] offset:{1024 * (k % 4)} sc1", tag=tag)
    return out

def chunk(c):
    return dma(vPK, 0, 58, (c % 3) * 10240, 10, f"h{c}") + (mk(f"v_add_u32 v{vPK}, {16 * SLOT}, v{vPK}") if c < 3 else [])

def ffn(e):
    o = e.o
    nb = w1_before(e)
    assert nb >= 45 and nb % 3 == 0
    wr = e.w1_loads()[nb:]
    nw0 = min(len(wr), o.get("nw0", 4))
    if o.get("pw3", 1):
        e(f3_prewarm(e))
    if o.get("ct", 1): e(code_touch(e, 6, vX))
    e(wr[:nw0])
    e(f"""s_lshl_b32 s48, s62, 4
        s_lshl2_add_u32 s48, s{sW}, s48
        s_lshl_b32 s49, s72, 8
        s_add_u32 s48, s48, s49
        s_lshl_b32 s48, s48, 8
        s_add_u32 s70, s48, {F3}
        s_add_u32 s46, s62, s63""")
    for gq in range(4):
        e(f"""s_add_u32 s48, s46, {gq}
            s_and_b32 s48, s48, {3 if o.get("rot2", 1) else 0}
            {"" if o.get("rot2", 1) else f"s_mov_b32 s48, {gq}"}
            s_mul_i32 s49, s48, 15360
            s_add_u32 s{4+gq}, s59, s49
            s_mul_i32 s49, s48, 3072
            s_add_u32 s49, s49, s60
            s_add_u32 s{8+2*gq}, s34, s49
            s_addc_u32 s{9+2*gq}, s35, 0""")

    late = [("x", c, k) for c in range(2) for k in range(12)]
    late += [("w", n, 0) for n in range(35, 60)]
    w2reg = {n: ("v", W2E + 4 * n) if n < 31 else ("a", 240 + 4 * (n - 31)) for n in range(35)}
    actreg = {}
    for n, (kind, a, b) in enumerate(late):
        if kind == "w": w2reg[a] = ("a", 4 * n)
        else: actreg[a, b] = ("a", 4 * n)
    for k in range(11): actreg[2, k] = ("a", 4 * (49 + k))
    actreg[2, 11] = ("a", 0)
    for k in range(12): actreg[3, k] = ("a", 4 * (k + 1))
    def tagput(reg, tag): return {(reg[0], reg[1] + i): tag for i in range(4)}
    grp = lambda n: mk(f"v_add_u32 v{vW2}, s{4 + n // 15}, v{vL16}")
    def w2_load(n):
        k = n % 15; b = 20 + 2 * (k // 4)
        return (grp(n) if k == 0 else []) + [I(f"global_load_dwordx4 {r4(*w2reg[n])}, v{vW2}, s[{b}:{b+1}] offset:{1024 * (k % 4)} sc1", put=tagput(w2reg[n], ("W2", n)))]
    def act_load(c, k):
        b = 8 + 2 * (k // 3); va = (vL16, vX, vW2, vX)[c]
        pre = mk(f"v_add_u32 v{va}, {2 * c * 192 * 256}, v{vL16}") if c and k == 0 else []
        return pre + [I(f"global_load_dwordx4 {r4(*actreg[c, k])}, v{va}, s[{b}:{b+1}] offset:{1024 * (k % 3)} sc1", tag=f"x{c}_{k}", put=tagput(actreg[c, k], ("X", c, k)))]
    def unpark(n):
        a, off = (vPK, 10240 + 1024 * (n - 35)) if n < 45 else (T + 6, 1024 * (n - 45)) if n < 45 + NPK else (vPK, 20480 + 1024 * (n - 45 - NPK))
        return I(f"ds_read_b128 {r4(*w2reg[n])}, v{a} offset:{off}", tag="up", put=tagput(w2reg[n], ("W2", n)))
    w2_loads = lambda a, b: [x for n in range(a, b) for x in w2_load(n)]
    act_loads = lambda c: [x for k in range(12) for x in act_load(c, k)]
    late_loads = lambda a, b: [x for kind, p, q in late[a:b] for x in (w2_load(p) if kind == "w" else act_load(p, q))]
    def f3_issue(c): return mk(f"s_mov_b32 s73, {2 * c * 65536}") + e.poll_issue(vPF, PD, "s73")
    def f3_check(c):
        a = e.poll_check(vPF, PD, "s73")
        return [a[0], a[1:]]
    def f3_signal(i):
        return mk(f"@vm st{i}\ns_mov_b32 s61, {65536 * i}\nbuffer_store_dwordx2 v[{vTG}:{vTG+1}], v{vSG}, {SRD}, s61 offen sc1")

    main, start, bstart, pstart = [], [], [], {}
    def frag(i, p): return FRG + 20 * ((p // 5) & 1) + 4 * (p % 5)
    def ftag(i, p): return {("v", frag(i, p) + k): ("H", i, p) for k in range(4)}
    for i in range(8):
        start.append(len(main))
        for p in range(20):
            if p % 5 == 0: bstart.append(len(main))
            pstart[i, p] = len(main)
            f = r4("v", frag(i, p))
            if p < 5:
                main.append(I(f"{MF} {r4('v', S1)}, {r4('v', ONES)}, {f}, " + ("0" if p == 0 else r4('v', S1)), need=ftag(i, p), put=tagput(("v", S1), ("S", i, p))))
                main.append(I(f"{MF} {r4('v', S2)}, {f}, {f}, " + ("0" if p == 0 else r4('v', S2)), need=ftag(i, p), put=tagput(("v", S2), ("S", i, p))))
            for t in range(3):
                a = ACC + 12 * (i & 1) + 4 * t
                main.append(I(f"{MF} {r4('v', a)}, {r4('a', 12 * p + 4 * t)}, {f}, " + ("0" if p == 0 else r4('v', a)), need=ftag(i, p)))
                if p == 19: main[-1].put = tagput(("v", a), ("G", i))
            if i == 0 and 3 * p >= nb: main.extend(colsums()[3 * p: 3 * p + 3])
    start.append(len(main)); bstart.append(len(main))
    def reads(b):
        i, gq = b // 4, b % 4
        slot = (i // 2) % 3
        base = TA + 4 * (i & 1) + gq
        out = []
        for p in range(5 * gq, 5 * gq + 5):
            f = frag(i, p); off = 10240 * slot + 2048 * (p % 5)
            out.append(I(f"ds_read_b64_tr_b16 v[{f}:{f+1}], v{base} offset:{off}", tag=f"b{b}_{p % 5 // 2}", put={("v", f): ("H", i, p), ("v", f + 1): ("H", i, p)}))
            out.append(I(f"ds_read_b64_tr_b16 v[{f+2}:{f+3}], v{base} offset:{off + 256}", tag=f"b{b}_{p % 5 // 2}", put={("v", f + 2): ("H", i, p), ("v", f + 3): ("H", i, p)}))
        return out
    def stats_out(i):
        out = mk(f"""v_cndmask_b32 v{S1+1}, v{S2}, v{S2+1}, s[50:51]
            v_cndmask_b32 v{S1+1}, v{S1+1}, v{S2+2}, s[52:53]
            v_cndmask_b32 v{S1+1}, v{S1+1}, v{S2+3}, s[54:55]""") + mk(f"ds_write_b64 v{vSW}, v[{S1}:{S1+1}] offset:{512 * (i & 1)}", tag=f"sp{i}")
        out[0].need = {("v", S2): ("S", i, 4)}; out[3].need = {("v", S1): ("S", i, 4)}
        return out
    def stats_in(i):
        c = CN + 4 * (i & 1); a = S1
        rd = mk(f"ds_read_b128 v[{a}:{a+3}], v{vSR} offset:{512 * (i & 1)}\nds_read_b128 v[{a+4}:{a+7}], v{vSR} offset:{512 * (i & 1) + 16}", tag=f"sr{i}")
        m = mk(f"""v_add_f32 v{a}, v{a}, v{a+2}
            v_add_f32 v{a+1}, v{a+1}, v{a+3}
            v_add_f32 v{a+4}, v{a+4}, v{a+6}
            v_add_f32 v{a+5}, v{a+5}, v{a+7}
            v_add_f32 v{a}, v{a}, v{a+4}
            v_add_f32 v{a+1}, v{a+1}, v{a+5}""")
        if o.get("mim", 0):
            m += mk(f"""v_mul_f32 v{a}, {fx(1/640)}, v{a}
                v_mul_f32 v{a+1}, {fx(1/640)}, v{a+1}
                v_fma_f32 v{a+1}, -v{a}, v{a}, v{a+1}
                v_max_f32 v{a+1}, 0, v{a+1}
                v_cvt_pk_bf16_f32 v{a}, v{a}, v{a+1}
                v_and_b32 v{a+1}, 0xffff0000, v{a}
                v_add_f32 v{a+1}, {fx(1e-5)}, v{a+1}
                v_cvt_pk_bf16_f32 v{a+1}, v{a+1}, v{a+1}
                v_lshlrev_b32 v{a+1}, 16, v{a+1}
                v_sqrt_f32 v{a+1}, v{a+1}
                v_lshlrev_b32 v{c}, 16, v{a}
                v_cvt_pk_bf16_f32 v{a+1}, v{a+1}, v{a+1}
                v_lshlrev_b32 v{a+1}, 16, v{a+1}
                v_rcp_f32 v{a+2}, v{a+1}
                v_mul_f32 v{c+3}, v{a+1}, v{a+1}""")
        else:
            m += mk(f"""v_mul_f32 v{c}, {fx(1/640)}, v{a}
                v_fmaak_f32 v{a+1}, s33, v{a+1}, {fx(1e-5)}
                v_fma_f32 v{a+1}, -v{c}, v{c}, v{a+1}
                v_max_f32 v{c+3}, {fx(1e-5)}, v{a+1}
                v_rsq_f32 v{a+2}, v{c+3}""".replace("v_fmaak_f32 v%d, s33, v%d, %s" % (a + 1, a + 1, fx(1e-5)), f"v_fma_f32 v{a+1}, v{a+1}, s32, v{T+8}"))
        m += mk(f"""v_mul_f32 v{c+1}, {fx(C0)}, v{a+2}
            v_mul_f32 v{a+2}, v{a+2}, v{a+2}
            v_mul_f32 v{a+2}, {fx(0.044715)}, v{a+2}
            v_mul_f32 v{c+2}, v{c+1}, v{a+2}""")
        m[-1].put = {("v", c + 2): ("C", i)}
        m[-2].put = {("v", a + 2): ("M", i)}; m[-1].need = {("v", a + 2): ("M", i)}
        return rd, m
    def epilogue(i, packed=False):
        c = CN + 4 * (i & 1)
        out = []
        for t in range(3):
            a = ACC + 12 * (i & 1) + 4 * t; s = CS + 4 * t; x = T
            p2 = lambda r: f"v[{r}:{r+1}]"
            if packed:
                out += mk(f"""v_pk_fma_f32 {p2(a)}, {p2(c)}, {p2(s)}, {p2(a)} op_sel_hi:[0,1,1] neg_lo:[1,0,0] neg_hi:[1,0,0]
                    v_pk_fma_f32 {p2(a+2)}, {p2(c)}, {p2(s+2)}, {p2(a+2)} op_sel_hi:[0,1,1] neg_lo:[1,0,0] neg_hi:[1,0,0]
                    v_pk_mul_f32 {p2(x)}, {p2(a)}, {p2(a)}
                    v_pk_fma_f32 {p2(x)}, {p2(x)}, {p2(c+2)}, {p2(c)} op_sel:[0,0,1] op_sel_hi:[1,0,1]
                    v_pk_mul_f32 {p2(x)}, {p2(x)}, {p2(a)}
                    v_exp_f32 v{x}, v{x}
                    v_exp_f32 v{x+1}, v{x+1}
                    v_pk_mul_f32 {p2(a)}, {p2(a)}, {p2(a+2)}
                    v_pk_fma_f32 {p2(x)}, {p2(x)}, {p2(c+2)}, {p2(c+2)} op_sel:[0,1,1] op_sel_hi:[1,1,1]
                    v_rcp_f32 v{x}, v{x}
                    v_rcp_f32 v{x+1}, v{x+1}""")
                if t == 2: out += mk(f"v_permlane32_swap_b32 v{OUT+1}, v{OUT+3}")
                out += mk(f"v_pk_mul_f32 {p2(a)}, {p2(a)}, {p2(x)}\nv_cvt_pk_bf16_f32 v{OUT+t}, v{a}, v{a+1}")
                continue
            first = [I(f"v_fma_f32 v{a+k}, -v{c}, v{s+k}, v{a+k}", need={("v", a + k): ("G", i), ("v", c + 2): ("C", i)}) for k in range(4)]
            out += first[:2] + mk(f"v_mul_f32 v{x}, v{a}, v{a}\nv_mul_f32 v{x+1}, v{a+1}, v{a+1}")
            out += mk(f"""v_fma_f32 v{x}, v{x}, v{c+2}, v{c+1}
                v_fma_f32 v{x+1}, v{x+1}, v{c+2}, v{c+1}
                v_mul_f32 v{x}, v{x}, v{a}
                v_mul_f32 v{x+1}, v{x+1}, v{a+1}
                v_exp_f32 v{x}, v{x}
                v_exp_f32 v{x+1}, v{x+1}""") + first[2:] + mk(f"""v_fma_f32 v{x}, v{x}, v{c+3}, v{c+3}
                v_fma_f32 v{x+1}, v{x+1}, v{c+3}, v{c+3}
                v_rcp_f32 v{x}, v{x}
                v_rcp_f32 v{x+1}, v{x+1}
                v_mul_f32 v{a}, v{a}, v{a+2}
                v_mul_f32 v{a+1}, v{a+1}, v{a+3}
                v_mul_f32 v{a}, v{a}, v{x}
                v_mul_f32 v{a+1}, v{a+1}, v{x+1}
                v_cvt_pk_bf16_f32 v{OUT+t}, v{a}, v{a+1}""")
            if t == 2: out[-9:-9] = mk(f"v_permlane32_swap_b32 v{OUT+1}, v{OUT+3}")
        out += mk(f"""s_add_u32 s3, s56, {i * 192 * 256}
            v_permlane32_swap_b32 v{OUT}, v{OUT+2}
            v_permlane16_swap_b32 v{OUT}, v{OUT+1}
            v_permlane16_swap_b32 v{OUT+2}, v{OUT+3}""")
        out[-1].put = {("v", OUT + 3): ("O", i)}
        out.append(I(f"buffer_store_dwordx4 v[{OUT}:{OUT+3}], v{vAST}, {SRD}, s3 offen sc1", tag=f"st{i}", need={("v", OUT + 3): ("O", i)}))
        return out

    g = Sched(main)
    LEAD = o.get("lead", 1)
    bar = {}
    for i in range(8):
        s0 = start[i]
        so = g.add(stats_out(i), s0 + 24, s0 + 30, prio=2)
        w = ([f"@vm h{i // 2 + 1}"] if i & 1 and i < 7 else []) + [f"@lgkm sp{i}", "s_barrier"]
        bar[i] = g.add(mk(w), s0 + (o.get("bar", 35) if i != 1 else o.get("bar1", 46)), s0 + (42 if i != 1 else 52), after=[(so[-1], 4)], prio=2)[-1]
        rd, m = stats_in(i)
        r = g.add(rd, s0, s0 + 56, after=[(bar[i], 0)], prio=2)
        g.add(mk(f"@lgkm sr{i}") + m, s0, start[i + 1] - 1, after=[(r[-1], 6)])
        if i > 0:
            ep = g.add(epilogue(i - 1), s0 + 1, s0 + (o.get("epe", 70) if i < 7 else o.get("epe7", 50)))
            if i < 7: g.add(f3_signal(i - 1), s0, start[i + 1] + 69, after=[(ep[-1], o.get("drain", 45))], prio=2)
    for b in range(31):
        r = g.add(reads(b + 1), bstart[b], bstart[b + 1] - 1 - LEAD, pace=True, prio=1, after=[(bar[b // 4], 0)] if b % 8 == 7 else None)
        if b == 0: r1 = r
    for b in range(32):
        for q in range(3):
            k = pstart[b // 4, 5 * (b % 4) + 2 * q] - 1
            if b > 0: g.add(mk(f"@lgkm b{b}_{q}"), k, k, prio=3)
    pb = g.add(mk(f"s_mov_b32 s73, {F2C - F2}") + e.poll_issue(vPF, PD, "s73"), o.get("pci", 20), o.get("pci", 20) + 3)
    a = e.poll_check(vPF, PD, "s73")
    cc = g.add([a[0], a[1:]] + mk(f"v_and_b32 v{vPF}, 15, v1\nv_lshl_add_u32 v{vPF}, v{vPF}, 6, s70"), 0, 90, after=[(pb[-1], o.get("rtb", 32))], prio=2)
    pb2 = g.add(mk(f"s_mov_b32 s73, {F2B - F2}") + e.poll_issue(0, PD, "s73"), o.get("pbi", 66), o.get("pbi", 66) + 3, after=[(cc[1], 1)])
    a = e.poll_check(0, PD, "s73")
    cb = g.add([a[0], a[1:]], 0, 150, after=[(pb2[-1], o.get("rtb", 32))], prio=2)
    e(f"""v_lshl_add_u32 v{T+2}, s{sW}, 10, v{T+6}
        v_lshl_add_u32 v{T+3}, s{sW}, 5, v{T+7}""")
    mv = []
    for c in range(4):
        lo = start[2 * c] + (4 if c == 0 else 0); hi = start[2 * c + 1] + 60
        for ra, ro, wa, wo in ((T + 2, 0, T + 3, 0), (T + 6, 4096, T + 7, 128)):
            mv.append(g.add(mk(f"ds_read_b64_tr_b16 v[{T+4}:{T+5}], v{ra} offset:{10240 * (c % 3) + ro}"), lo, hi, after=[(mv[-1][-1], 2)] if mv else None, prio=1))
            mv.append(g.add(mk(f"ds_write_b64 v{wa}, v[{T+4}:{T+5}] offset:{2816 * c + wo}"), lo, hi + 4, after=[(mv[-1][-1], 12)], prio=1))
    parts = [wr[nw0:], chunk(1) + chunk(2), grp(45) + dma(vW2, 0, 33, 0, NPK, "pk"), w2_loads(0, 7), chunk(3), w2_loads(7, 35),
             dma(vW2, 5, 58, 10240, 10, "pk"), grp(45) + dma(vW2, NPK, 58, 20480, 15 - NPK, "pk")]
    ld = g.add([x for p in parts for x in p], 0, start[7] + 30)
    first = [sum(len(p) for p in parts[:k]) for k in range(len(parts))]
    ld[first[1] + len(chunk(1))]["after"] = [(cb[-1], 0)]
    for k, a in ((1, cc[1]), (4, bar[2]), (6, bar[4]), (7, bar[6])): ld[first[k]]["after"] = [(a, 0)]
    t0 = o.get("t0", 54)
    t, per = 12.0, (start[6] + 42 - t0) / (75 + NPK)
    for k, x in enumerate(ld):
        if k == first[1]: t = t0
        vm = x["ins"][0].kind == "vm"
        x["lo"] = int(t) - (0 if vm else 3); x["hi"] = int(t) + (4 if vm else 1)
        if vm: t += (t0 - 12) / first[1] if k < first[1] else per if k < first[7] else o.get("pk2", 4)
    s7 = start[7]
    if o.get("ct", 1) > 1: g.add(code_touch(e, 4, vX), start[4], start[4] + 30)
    dead = lambda n: s7 + (5 * (n // 3) + 4 if n < 15 else 25 + 3 * (n // 3 - 5) + 2)
    p0 = g.add(f3_issue(0), start[5] + 10, start[5] + 20)
    c0 = g.add(f3_check(0), 0, start[6], after=[(p0[-1], 40)])
    p1 = g.add(f3_issue(1), start[6] + 20, start[6] + 30, after=[(c0[-1], 1)])
    c1 = g.add(f3_check(1), 0, s7 + 3, after=[(p1[-1], 40)])
    nl7 = o.get("nl7", 16)
    it = g.add(late_loads(0, nl7), s7 + 14, s7 + o.get("x7e", 68), pace=True, win=3, after=[(c1[-1], 0), (ld[-1], 0)])
    n = 0
    for x in it:
        if x["ins"][0].kind == "vm":
            x["lo"] = max(x["lo"], dead(n)); x["hi"] = max(x["hi"], x["lo"]); n += 1
    if o.get("gst"):
        for i in range(1, 8): g.add(e.stamp(3 + i if i < 7 else 13), start[i], start[i], prio=3)
    newer = 1 + nw0 + o.get("pw3", 1) + bool(o.get("ct", 1))
    r0 = reads(0)
    head = []
    for p in range(5):
        it = mk(f"s_waitcnt vmcnt({newer + 8 - 2 * p})") + r0[2 * p: 2 * p + 2]
        if p < 2: head += it
        else: hb = g.add(it, 5 * (p - 2), 5 * (p - 2) + 2, prio=4)
    hb = g.add(mk("s_barrier"), 11, 13, after=[(hb[0], 0)], prio=4)
    r1[0]["after"] = [(hb[-1], 0)]; mv[0][0]["after"] = [(hb[-1], 0)]
    for k, x in enumerate(r1): x["lo"] = 13 + k
    ld[0]["after"] = ld[0]["after"] + [(hb[-1], 0)]; pb[0]["after"] = [(hb[-1], 0)]
    if o.get("fst"): e(e.stamp(2))
    e.pre_g1 = list(e.p)
    e.g1 = head + g.run(); e.g1m = (main, start)
    e(e.g1)
    if o.get("fst"): e(e.stamp(3))
    if o.get("gst"): o["fst"] = 0
    RD, RR, RU, O2 = 50, 82, 86, 120
    A2 = lambda c: 10 + 20 * (c & 1)
    vPW, vPR, vRR, vOS = TA, TA + 1, TA + 2, TA + 3
    nup = o.get("nup", 4)
    e(f"v_add_u32 v{vPK}, s58, v{vL16}\nv_add_u32 v{T+6}, s33, v{vL16}\n@vm pk")
    e([unpark(n) for n in range(35, 35 + nup)])
    e(epilogue(7, True))
    e(f3_signal(6))
    nlt = nl7 + o.get("nlt", 2)
    e(late_loads(nl7, nlt))
    e(f"""v_and_b32 v{T+4}, 15, v1
        v_lshrrev_b32 v{T+5}, 4, v1
        v_mul_u32_u24 v{vPW}, 176, v{T+4}
        v_lshrrev_b32 v{T+4}, 1, v{T+5}
        v_lshl_add_u32 v{vPW}, v{T+4}, 4, v{vPW}
        v_and_b32 v{T+4}, 1, v{T+5}
        v_mul_u32_u24 v{T+4}, 2816, v{T+4}
        v_add_u32 v{vPW}, v{vPW}, v{T+4}
        s_mul_i32 s48, s{sW}, 5632
        s_add_u32 s48, s48, {PART}
        v_add_u32 v{vPW}, s48, v{vPW}""")
    setup2 = mk(f"""v_min_u32 v{T+4}, 39, v1
        v_mul_u32_u24 v{T+5}, 6554, v{T+4}
        v_lshrrev_b32 v{T+5}, 16, v{T+5}
        v_mul_u32_u24 v{T+7}, 10, v{T+5}
        v_sub_u32 v{T+4}, v{T+4}, v{T+7}
        s_lshl_b32 s48, s{sW}, 2
        v_add_u32 v{T+5}, s48, v{T+5}
        v_mul_u32_u24 v{vPR}, 176, v{T+5}
        v_lshl_add_u32 v{vPR}, v{T+4}, 4, v{vPR}
        v_add_u32 v{vRR}, {RES}, v{vPR}
        v_mul_u32_u24 v{vOS}, 1280, v{T+5}
        v_lshl_add_u32 v{vOS}, v{T+4}, 4, v{vOS}
        v_cmp_gt_u32 s[50:51], 40, v1
        v_mov_b32 v{T+5}, 0x40000000
        s_mov_b32 s64, s30
        s_mov_b32 s65, s31
        s_mov_b32 s66, {2048 * 1280}
        s_mov_b32 s67, 0x20000
        v_cndmask_b32 v{vOS}, v{T+5}, v{vOS}, s[50:51]
        s_lshl1_add_u32 s46, s62, s72
        s_mul_i32 s46, s46, {16 * 1280}
        s_mul_i32 s48, s68, 160
        s_add_u32 s46, s46, s48""")
    assert PART == 0
    main = []
    NT = o.get("nt", 4)
    first_use, done = {}, {}
    for c in range(4):
        seq = [(k, t) for k in range(12 - NT) for t in range(5)] + [(k, t) for t in range(5) for k in range(12 - NT, 12)]
        for k, t in seq:
            a = A2(c) + 4 * t
            first_use.setdefault((c, k), len(main))
            need = dict(tagput(w2reg[5 * k + t], ("W2", 5 * k + t))); need.update(tagput(actreg[c, k], ("X", c, k)))
            main.append(I(f"{MF} {r4('v', a)}, {r4(*w2reg[5 * k + t])}, {r4(*actreg[c, k])}, " + ("0" if k == 0 else r4('v', a)), need=need))
            if k == 11:
                main[-1].put = tagput(("v", a), ("P", c)); done[c, t] = len(main) - 1
    def part_write(c):
        return [I(f"ds_write_b128 v{vPW}, {r4('v', A2(c) + 4 * t)} offset:{(c & 1) * 22528 + 32 * t}", tag=f"pw{c}", need=tagput(("v", A2(c) + 4 * t), ("P", c))) for t in range(5)]
    def res_read(c):
        rd = mk(f"ds_read_b128 {r4('v', RR)}, v{vRR} offset:{2816 * c}", tag=f"rr{c}")
        un = mk([f"v_lshlrev_b32 v{RU+2*k}, 16, v{RR+k}\nv_and_b32 v{RU+2*k+1}, 0xffff0000, v{RR+k}" for k in range(4)])
        return rd, un
    def part_read(c):
        return mk([f"ds_read_b128 {r4('v', RD + 8 * w + 4 * hf)}, v{vPR} offset:{(c & 1) * 22528 + 5632 * w + 2816 * hf}" for w in range(4) for hf in range(2)], tag=f"pr{c}")
    def finish(c, packed):
        out = [f"s_add_u32 s47, s46, {c * 512 * 1280}"]
        for w in range(4):
            if packed: out += [f"v_pk_add_f32 v[{RU+2*k}:{RU+2*k+1}], v[{RU+2*k}:{RU+2*k+1}], v[{RD+8*w+2*k}:{RD+8*w+2*k+1}]" for k in range(4)]
            else: out += [f"v_add_f32 v{RU+k}, v{RU+k}, v{RD+8*w+k}" for k in range(8)]
        out += [f"v_cvt_pk_bf16_f32 v{O2+k}, v{RU+2*k}, v{RU+2*k+1}" for k in range(4)]
        out += [f"buffer_store_dwordx4 {r4('v', O2)}, v{vOS}, {SRD2}, s47 offen" + (" sc1" if o.get("osc") else "")]
        return mk(out)
    g = Sched(main, dense=True)
    su = g.add(setup2, 0, 40)
    sg = g.add(f3_signal(7), o.get("sig7", 30), o.get("sig7", 30) + 3, prio=3)
    up = g.add([unpark(n) for n in range(35 + nup, 60)], 0, 28, pace=True)
    b0 = g.add(mk("@lgkm up\ns_barrier"), 33, 34, after=[(up[-1], 4)])
    ll = g.add(late_loads(nlt, 24), 0, o.get("lle", 46), pace=True, win=2, prio=1)
    p2 = g.add(f3_issue(2), o.get("i2", 8), o.get("i2", 8) + 3, prio=2)
    c2 = g.add(f3_check(2), 0, 100, after=[(p2[-1], o.get("rtt", 36)), (sg[-1], 0)], prio=2)
    x2 = g.add(act_loads(2), o.get("lle", 46), o.get("x2e", 104), pace=True, win=2, after=[(c2[-1], 0), (ll[-1], 0)], prio=1)
    i3 = o.get("i3", 100); r3 = o.get("rt3", 30)
    p3 = g.add(f3_issue(3), i3, i3 + 3, after=[(c2[-1], 1)], prio=2)
    c3 = g.add(f3_check(3) + [e.stamp(5)] * bool(o.get("fst") and e.stamp(5)), 0, i3 + r3 + 6, after=[(p3[-1], r3)], prio=2)
    x3 = g.add(act_loads(3), 66, 239, after=[(c3[-1], 0), (x2[-1], 0)], prio=2)
    for k, x in enumerate(x3[1:]):
        x["lo"] = i3 + r3 + max(0, k - 3) * o.get("p3", 4); x["hi"] = min(x["lo"] + 6, first_use[3, k] - 2)
    for (c, k), n in first_use.items():
        if n and (k <= 12 - NT or c == 3): g.add(mk(f"@vm x{c}_{k if k < 12 - NT or c == 3 else 11}"), n - 1, n - 1, prio=-1)
    prev = su[-1]
    for c in range(4):
        b = 60 * (c + 1)
        rd, un = res_read(c)
        r = g.add(rd, 0, b - 6, after=[(prev, 0)])
        u = g.add(mk(f"@lgkm rr{c}") + un, 0, b - 1 + (10 if c < 3 else 0), after=[(r[-1], 4)])
        pw = part_write(c)
        nin = 5 if c < 3 else 3
        w = g.add(pw[:nin], 0, b + 6, prio=2, after=[(b0[-1], 0)])
        for t in range(nin): w[t]["lo"] = min(done[c, t] + o.get("wd", 6), 239)
        if c < 3:
            br = g.add(mk(f"@lgkm pw{c}\ns_barrier"), 0, b + 14, after=[(w[-1], 5)], prio=2)
            pr = g.add(part_read(c), b + 8, b + 8 + o.get("prs", 10), pace=True, after=[(br[-1], 0)], prio=1)
            prev = g.add(mk(f"@lgkm pr{c}") + finish(c, False), 0, b + 48, after=[(pr[-1], 4), (u[-1], 0)])[-1]
    if o.get("fst"): e(e.stamp(4))
    e.pre_g2 = list(e.p); e.g2 = g.run()
    e(e.g2)
    if o.get("fst"): e(e.stamp(10))
    e(pw[3:]); e("s_waitcnt lgkmcnt(0)\ns_barrier")
    e(part_read(3)); e(finish(3, True))
    if o.get("fst"): e(e.stamp(11)); e("s_waitcnt vmcnt(0)"); e(e.stamp(12))
    e.models = (model_cycles(e.g1), model_cycles(e.g2))
```

```python
import struct, math, sys
from asmlib import I, mk, finalize, Gaps, Sched, model_cycles, align8

NAME = "sequential_preLN__ssm_conv_s4__geglu_ffn__prompt"
def fx(x): return hex(struct.unpack("<I", struct.pack("<f", x))[0])
LOG2E = math.log2(math.e)

EPOCH, F1, FW, F2, F2B, F3, DBG = 0, 0x1000, 0x11000, 0x21000, 0x31000, 0x60000, 0xe0000
HOFF = 0x8000
UP = 161 * 256
UT, XT, HT, W1P, W2P, ACT, WS_SIZE = 1 << 20, 4 << 20, 7 << 20, 10 << 20, 14 << 20, 16 << 20, 23 << 20
U0, X0, CH0, CHS = 0, 20480, 36864, 21760
PS, A5, A3, A9, A7 = 832, 0, 3328, 6656, 9984 + 64
KTS = 272
KN = 13376; W4 = 55 * KTS; W4P = 2832; K2 = W4 + 2 * W4P; K3 = K2 + 752
LNU = CH0 + 4 * CHS; LNS = 1344
SLOT = 40960
STP = 3 * SLOT
RES = STP + 2048
RST = 160 * 1024 - 4 * 6144
PART = 0
LDS_BYTES = 160 * 1024
assert LNU + 10752 <= LDS_BYTES and RES + 4 * 2816 <= RST

sW, sCLS, sIDX = 36, 37, 38
SRD = "s[40:43]"; TAG = "s[44:45]"; SRD2 = "s[64:67]"
SPIN = 20000

class K:
    def __init__(self, stop=None, stamps=False, opt=None):
        self.p = []; self.stop = stop; self.stamps = stamps; self.nlab = 0
        self.o = dict(opt or {}); self.in_ffn = self.in_ln = False; self.cold = []
    def __call__(self, x, **kw): self.p += mk(x, **kw)
    def lab(self, s):
        self.nlab += 1; return f"L_{s}_{self.nlab}"
    def stamp(self, k):
        if self.o.get("nost") and k and k != self.o.get("st"): return []
        if self.o.get("fst") and not self.in_ffn and (k not in (0, 1, 6, 7, 8, 13) or (k == 1 and self.in_ln)): return []
        return mk(f"s_memrealtime s[{74 + 2 * k}:{75 + 2 * k}]") if self.stamps else []

    vSIG, vTAG = 177, 178
    def signal_setup(self):
        return mk(f"""s_lshl_b32 s48, s2, 4
            v_lshl_add_u32 v{self.vSIG}, v0, 12, s48
            v_cmp_gt_u32 vcc, 8, v0
            v_mov_b32 v{self.vTAG}, 0x40000000
            v_cndmask_b32 v{self.vSIG}, v{self.vTAG}, v{self.vSIG}, vcc""")
    def hint_setup(self, dst, sub):
        return mk(f"""s_lshl_b32 s48, s2, 7
            s_add_u32 s48, s48, {HOFF}
            s_sub_u32 s48, s48, {sub}
            v_cmp_eq_u32 vcc, 8, v0
            v_mov_b32 v{dst}, s48
            v_cndmask_b32 v{dst}, v{self.vSIG}, v{dst}, vcc""")
    def hint_wait(self, region):
        L = self.lab("hint")
        return mk(f"""s_sub_u32 s48, s2, 160
            s_lshl_b32 s48, s48, 7
            s_add_u32 s48, s48, {region + HOFF}
            v_mov_b32 v196, s48
            s_cmp_lg_u32 s{sW}, 0
            s_cbranch_scc1 {L}""") + self.poll_issue(196, 192) + self.poll_check(196, 192, slp=4) + mk(f"{L}:\ns_barrier")
    def signal_all(self, region, va=None):
        return mk(f"s_mov_b32 s48, {region}\nbuffer_store_dwordx2 v[{self.vTAG}:{self.vTAG+1}], v{va or self.vSIG}, {SRD}, s48 offen sc1")
    def poll_issue(self, va, vd, so="0"):
        return mk(f"buffer_load_dwordx2 v[{vd}:{vd+1}], v{va}, {SRD}, {so} offen sc1")
    def poll_check(self, va, vd, so="0", slp=2):
        A, B = self.lab("retry"), self.lab("seen")
        self.cold.append(f"""{A}:
    s_mov_b32 s49, 0
{A}_l:
    s_mov_b64 exec, vcc
    s_sleep {slp}
    buffer_load_dwordx2 v[{vd}:{vd+1}], v{va}, {SRD}, {so} offen sc1
    s_add_u32 s49, s49, 1
    s_waitcnt vmcnt(0)
    v_cmp_ne_u64 vcc, {TAG}, v[{vd}:{vd+1}]
    s_mov_b64 exec, -1
    s_cmp_ge_u32 s49, {SPIN}
    s_cbranch_scc1 {B}
    s_nop 1
    s_cbranch_vccnz {A}_l
    s_branch {B}""")
        br = I(f"s_cbranch_vccnz {A}")
        br.uses |= {("v", va), ("v", vd), ("v", vd + 1)} | ({("s", int(so[1:]))} if so != "0" else set())
        return mk(f"v_cmp_ne_u64 vcc, {TAG}, v[{vd}:{vd+1}]") + [br] + mk(f"{B}:")

    def prologue(self):
        e = self
        e(f"s_cmp_ge_u32 s2, 256\ns_cbranch_scc1 L_end")
        e(self.stamp(0))
        e(f"""s_load_dwordx16 s[4:19], s[0:1], 0
            s_load_dwordx16 s[20:35], s[0:1], 64
            s_getpc_b64 s[46:47]
            L_pc:
            v_and_b32 v1, 63, v0
            v_lshrrev_b32 v2, 6, v0
            s_lshr_b32 s{sIDX}, s2, 3
            v_readfirstlane_b32 s{sW}, v2
            s_mul_i32 s48, s{sIDX}, 14
            v_min_u32 v3, 13, v0
            v_add_u32 v3, s48, v3
            v_lshlrev_b32 v3, 7, v3
            v_min_u32 v3, L_code_end-{NAME}_kernel-64, v3
            global_load_dword v4, v3, s[46:47]
            s_and_b32 s{sCLS}, s2, 7
            v_lshrrev_b32 v5, 5, v0
            v_and_b32 v6, 31, v0
            s_lshl_b32 s48, s2, 3
            v_add_u32 v7, s48, v5
            v_mul_u32_u24 v7, 1280, v7
            v_lshl_add_u32 v2, v6, 2, v7
            v_lshl_add_u32 v7, v6, 4, v7""")

    def x_loads(self):
        self(f"""global_load_dwordx4 v[10:13], v7, s[4:5]
            global_load_dwordx4 v[14:17], v7, s[4:5] offset:512
            global_load_dword v18, v2, s[4:5] offset:1024
            global_load_dword v19, v2, s[4:5] offset:1152
            s_mov_b32 s40, s34
            s_mov_b32 s41, s35
            s_mov_b32 s42, {WS_SIZE}
            s_mov_b32 s43, 0x20000
            v_mov_b32 v8, {EPOCH}
            buffer_load_dword v9, v8, {SRD}, 0 offen sc1""")

    def conv_param_loads(self):
        e = self
        e(f"""s_mul_i32 s50, s{sCLS}, 80
            s_lshl2_add_u32 s50, s{sIDX}, s50
            s_add_u32 s50, s50, s{sW}
            s_mul_i32 s48, s50, 384
            v_lshl_add_u32 v34, v1, 2, s48
            v_lshl_add_u32 v35, v1, 1, s48
            s_lshl_b32 s48, s50, 1
            v_mov_b32 v36, s48
            global_load_ushort v32, v36, s[18:19]""")
        for a in range(6):
            e(f"global_load_dword v{20+a}, v34, s[{6+2*a}:{7+2*a}]")
        for a in range(6):
            e(f"global_load_ushort v{26+a}, v35, s[{6+2*a}:{7+2*a}] offset:256")
        e("global_load_ushort v33, v36, s[20:21]")

    def ln_consts(self):
        self(f"""v_mul_u32_u24 v141, {LNS}, v5
            v_add_u32 v141, {LNU}, v141
            v_lshl_add_u32 v140, v6, 2, v141
            v_add_u32 v140, 1024, v140
            v_lshl_add_u32 v141, v6, 4, v141
            v_and_b32 v143, 3, v5
            v_mul_u32_u24 v143, {2 * LNS}, v143
            v_add_u32 v143, {LNU + 1280}, v143
            v_mov_b32 v2, 0
            v_mov_b32 v3, 0
            ds_write_b64 v143, v[2:3]
            v_lshrrev_b32 v139, 2, v5
            v_lshl_add_u32 v143, v139, 1, v143
            v_bfe_u32 v142, v1, 2, 2
            v_mul_u32_u24 v142, {LNS}, v142
            v_lshrrev_b32 v139, 4, v1
            v_lshl_add_u32 v142, v139, 5, v142
            v_and_b32 v139, 3, v1
            v_lshl_add_u32 v142, v139, 3, v142
            s_lshl_b32 s48, s{sW}, 7
            s_add_u32 s48, s48, {LNU}
            v_add_u32 v142, s48, v142
            s_lshr_b32 s51, s2, 2
            s_and_b32 s48, s51, 7
            s_lshl_b32 s49, s2, 1
            s_and_b32 s49, s49, 4
            s_xor_b32 s48, s48, s49
            v_xor_b32 v139, s48, v139
            v_lshrrev_b32 v8, 2, v1
            v_lshlrev_b32 v8, 8, v8
            v_lshl_add_u32 v8, v139, 4, v8
            v_cmp_gt_u32 vcc, 132, v0
            v_mov_b32 v37, 0x40000000
            s_mul_i32 s51, s51, {UP}
            s_and_b32 s48, s2, 1
            v_cndmask_b32 v37, v37, v8, vcc
            s_lshl_b32 s48, s48, 7
            s_add_u32 s51, s51, s48
            s_lshl_b32 s48, s{sW}, 12
            s_add_u32 s51, s51, s48
            s_add_u32 s51, s51, {UT}
            s_add_u32 s52, s51, 16384
            s_add_u32 s53, s51, 32768
            s_mov_b32 s54, 0x3f803f80""")
        self(self.signal_setup())

    def ln1(self):
        keep, self.p, self.in_ln = self.p, [], True
        e = self
        for i in range(10):
            e(f"v_dot2c_f32_bf16 v2, s54, v{10+i}\nv_dot2c_f32_bf16 v3, v{10+i}, v{10+i}")
        e(self.stamp(1))
        un = [f"v_lshlrev_b32 v{80+2*i}, 16, v{10+i}" for i in range(10)] + [f"v_and_b32 v{81+2*i}, 0xffff0000, v{10+i}" for i in range(10)]
        e(un.pop()); e(un.pop()); e(un.pop())
        for m in ("quad_perm:[1,0,3,2]", "quad_perm:[2,3,0,1]", "row_half_mirror", "row_mirror"):
            e(f"v_add_f32_dpp v2, v2, v2 {m} row_mask:0xf bank_mask:0xf\nv_add_f32_dpp v3, v3, v3 {m} row_mask:0xf bank_mask:0xf")
            e(un.pop())
        e("v_mov_b32 v4, v2\nv_mov_b32 v5, v3"); e(un.pop()); e(un.pop())
        e("v_permlane16_swap_b32 v4, v2\nv_permlane16_swap_b32 v5, v3")
        e(f"""v_add_f32 v2, v2, v4
            v_add_f32 v3, v3, v5
            v_mul_f32 v2, {fx(1/640)}, v2
            v_mul_f32 v3, {fx(1/640)}, v3
            v_fma_f32 v3, -v2, v2, v3
            v_max_f32 v3, 0, v3
            v_cvt_pk_bf16_f32 v2, v2, v3
            v_and_b32 v3, 0xffff0000, v2
            v_add_f32 v3, {fx(1e-5)}, v3
            v_cvt_pk_bf16_f32 v3, v3, v3
            v_lshlrev_b32 v3, 16, v3
            v_sqrt_f32 v3, v3
            v_lshlrev_b32 v2, 16, v2
            v_cvt_pk_bf16_f32 v3, v3, v3
            v_lshlrev_b32 v3, 16, v3
            v_rcp_f32 v4, v3""")
        e(un)
        e("v_mul_f32_e64 v6, -v2, v4")
        for i in range(10):
            e(f"v_pk_fma_f32 v[{80+2*i}:{81+2*i}], v[{80+2*i}:{81+2*i}], v[4:5], v[6:7] op_sel_hi:[1,0,0]")
        for i in range(10):
            e(f"v_cvt_pk_bf16_f32 v{128+i}, v{80+2*i}, v{81+2*i}")
        e("ds_write_b128 v141, v[128:131]\nds_write_b128 v141, v[132:135] offset:512\nds_write2_b32 v140, v136, v137 offset1:32")
        e(f"ds_write_b16_d16_hi v143, v3 offset:{LNS}\nds_write_b16_d16_hi v143, v2 offset:{LNS + 4}")
        e("s_waitcnt lgkmcnt(0)\ns_barrier")
        for k in range(3):
            e(f"""ds_read_b64_tr_b16 v[{100+4*k}:{101+4*k}], v142 offset:{512*k}
                ds_read_b64_tr_b16 v[{102+4*k}:{103+4*k}], v142 offset:{512*k + 4*LNS}""")
        e(f"""v_readfirstlane_b32 s44, v9
            s_add_u32 s44, s44, 1
            s_xor_b32 s45, s44, 0x5bd1e995
            v_mov_b32 v{e.vTAG}, s44
            v_mov_b32 v{e.vTAG+1}, s45""")
        for k in range(3):
            e(f"buffer_store_dwordx4 v[{100+4*k}:{103+4*k}], v{8 if k < 2 else 37}, {SRD}, s{51+k} offen sc1", tag="ln")
        e(self.stamp(2))
        out, self.p, self.in_ln = self.p, keep, False
        return out

    def ln_publish(self):
        return mk("@vm ln\ns_barrier") + self.signal_all(F1) + self.stamp(3)

    TB0 = 200
    vUB, vBB, vHST, vDMA, vPOLL, vST = 200, 208, 209, 210, 211, 212
    vAB, vBW, vR2, vR3, vK2A, vK3A = 216, 217, 218, 220, 222, 223
    vKTX, vKTY, vKNW, vK2W, vK3W, vW4S, vW4D, vW4S3, vW4D3, vZB = range(224, 234)
    vBAND, vL16 = 236, 252

    def lane_table(self):
        e = self
        tab = {r: [0] * 64 for r in range(200, 252)}
        ua = lambda ap, hh, s: 256 * ap + 128 * (hh & 1) + 16 * ((4 * (hh >> 1) + s) ^ (ap & 7))
        for l in range(64):
            col, h, q, r, c, h2 = l & 15, l >> 4, (l >> 2) & 3, l & 3, l & 31, l >> 5
            for j in range(8): tab[e.vUB + j][l] = U0 + 2048 + ua(col - j, h, 0)
            o8 = 2 * col - 1 + h
            tab[e.vBB][l] = U0 + 4096 + ua(o8 >> 2, o8 & 3, 0)
            tab[e.vHST][l] = 40960 * col + 16 * h
            tab[e.vDMA][l] = UT + 40960 + UP * h + 16 * col
            tab[e.vPOLL][l] = F1 + 16 * l
            for s in range(4): tab[e.vST + s][l] = U0 + 2048 + ua(col, h, s)
            tab[e.vAB][l] = 32 * (q - h) + 8 * r
            tab[e.vBW][l] = PS * ((h + 3) & 3) + 8 * (col + ((h + 7) >> 2))
            for mt in range(2):
                v = 2 * r + mt + q
                tab[e.vR2 + mt][l] = (A3 if q & 1 else A5) + PS * (v & 3) + 8 * ((v >> 2) + 2 * h)
                v = 2 * r + mt + 2 * q
                tab[e.vR3 + mt][l] = (A7 if q & 1 else A9) + PS * (v & 3) + 8 * ((v >> 2) + 4 * h)
            tab[e.vK2A][l] = 16 * (h - col); tab[e.vK3A][l] = 8 * (2 * h - col)
            tab[e.vKTX][l] = KTS * (c - 16 if c > 22 else c) + 16 * h2
            tab[e.vKTY][l] = KTS * c + 16 * h2
            tab[e.vKNW][l] = 8 * (2 * c + h2)
            tab[e.vK2W][l] = -(128 * h2 + 4 * c); tab[e.vK3W][l] = -(128 * h2 + 2 * c)
            tab[e.vW4S][l] = 8 * l
            tab[e.vW4D][l] = W4P * (l & 1) + 32 * (l >> 1)
            tab[e.vW4S3][l] = {0: 1032, 1: 1040, 24: 1048, 25: 1056}.get(l, 0)
            tab[e.vW4D3][l] = tab[e.vW4D][l] + 2176 if l < 40 else 0
            tab[e.vZB][l] = {16: KN, 17: KN + 1040, 18: KN + 1056}.get(l, (A5, A3, A9, A7)[q] + PS * r)
            for rr in range(e.vAB, e.vZB + 1): tab[rr][l] += CH0
            for b, w in enumerate((2, 1, 4, 3)):
                for m in range(4):
                    on = lambda k: 0x3F80 if abs(8 * h + k - 4 - col) <= w else 0
                    tab[e.vBAND + 4 * b + m][l] = on(2 * m) | on(2 * m + 1) << 16
        words = [tab[200 + 4 * k + i][l] for k in range(13) for l in range(64) for i in range(4)]
        return "\n".join(".long " + ",".join(hex(x) if x > 99999 else str(x) for x in words[n:n + 16]) for n in range(0, len(words), 16))
    def table_loads(self, ks):
        return [I(f"global_load_dwordx4 v[{200+4*k}:{203+4*k}], v{254 + (k >= 8)}, s[46:47] offset:{1024 * (k % 8) - 4096}") for k in ks]

    def conv_consts_a(self):
        e = self
        e(f"""s_mul_i32 s70, s{sW}, {CHS}
            v_lshlrev_b32 v{e.vL16}, 4, v1
            v_add_u32 v254, L_table-L_pc+4096, v{e.vL16}
            v_add_u32 v255, 8192, v254
            v_mov_b32 v190, 0
            v_mov_b32 v191, 0
            v_mov_b32 v192, 0
            v_mov_b32 v193, 0
            v_lshlrev_b32 v186, 4, v0
            v_add_u32 v187, s70, v{e.vL16}
            v_mov_b32 v188, 0x3f80
            s_mov_b32 m0, s70
            ds_write_b128 v186, v[190:193] offset:{U0}
            ds_write_b128 v187, v[190:193] offset:{CH0 + W4}
            ds_write_b128 v187, v[190:193] offset:{CH0 + W4 + W4P}
            ds_write_b128 v187, v[190:193] offset:{CH0 + K2}
            ds_write_b128 v187, v[190:193] offset:{CH0 + K2 + 112}
            ds_write_addtid_b32 v188 offset:{CH0}
            s_lshl_b32 s59, s{sW}, 12""")
    def conv_fix(self):
        e = self
        a = mk(f"""v_add_u32 v{e.vKTX}, s70, v{e.vKTX}
            v_add_u32 v{e.vKTY}, s70, v{e.vKTY}
            s_lshl_b32 s48, s{sCLS}, 12
            s_lshl_b32 s49, s{sW}, 10
            s_add_u32 s48, s48, s49
            v_add_u32 v{e.vPOLL}, s48, v{e.vPOLL}
            s_mul_i32 s49, s{sW}, {16 * UP}
            v_add_u32 v176, s49, v{e.vDMA}
            s_lshr_b32 s48, s50, 2
            s_sub_u32 s48, 160, s48
            s_lshl_b32 s48, s48, 8
            v_subrev_u32 v{e.vDMA}, s48, v176
            v_add_u32 v{e.vZB}, s70, v{e.vZB}""")
        b = mk([f"v_add_u32 v{r}, s55, v{r}" for r in list(range(e.vKNW, e.vZB)) + list(range(e.vAB, e.vKTX))])
        b += mk(f"s_lshl_b32 s68, s{sW}, 4") + mk([f"v_xor_b32 v{r}, s68, v{r}" for r in range(e.vUB, e.vBB + 1)])
        b += mk(f"""s_lshl_b32 s68, s50, 2
            s_and_b32 s68, s68, 32
            v_xor_b32 v{e.vHST}, s68, v{e.vHST}
            s_lshl_b32 s68, s50, 6
            v_add_u32 v{e.vHST}, s68, v{e.vHST}
            s_mul_i32 s69, s{sIDX}, {-7 * 16}
            s_mul_i32 s48, s{sCLS}, {19 * 16}
            s_add_u32 s69, s69, s48""") + e.hint_setup(199, "s69")
        return a, b

    @staticmethod
    def cmul(d, z, w, t):
        return [f"v_pk_mul_f32 v[{t}:{t+1}], v[{z}:{z+1}], v[{w}:{w+1}] op_sel:[1,1] op_sel_hi:[1,0] neg_lo:[1,0]",
                f"v_pk_fma_f32 v[{d}:{d+1}], v[{z}:{z+1}], v[{w}:{w+1}], v[{t}:{t+1}] op_sel_hi:[0,1,1]"]

    def kgen_setup(self, j):
        out = []
        for a in range(6):
            src = 20 + a if j < 2 else 26 + a
            out.append(f"v_and_b32 v{146+a}, 0xffff0000, v{src}" if j == 1 else f"v_lshlrev_b32 v{146+a}, 16, v{src}")
        out += f"""v_mul_f32 v146, s56, v146
            v_mul_f32 v147, s57, v147
            v_mul_f32 v148, s58, v148
            v_mul_f32 v149, s58, v149
            v_mul_f32 v152, 0x41000000, v146
            v_mul_f32 v153, 0xc1000000, v147
            v_mul_f32 v154, 0x43800000, v146
            v_mul_f32 v155, 0x43800000, v147
            v_fract_f32 v147, v147
            v_fract_f32 v153, v153
            v_fract_f32 v155, v155
            v_exp_f32 v146, v146
            v_mul_f32 v44, v150, v148
            v_cos_f32 v38, v147
            v_mul_f32 v45, v150, v149
            v_sin_f32 v39, v147
            v_fma_f32 v44, -v151, v149, v44
            v_exp_f32 v152, v152
            v_fmac_f32 v45, v151, v148
            v_cos_f32 v40, v153
            v_mul_f32 v38, v146, v38
            v_sin_f32 v41, v153
            v_mul_f32 v39, v146, v39
            v_exp_f32 v154, v154
            v_mul_f32 v40, v152, v40
            v_cos_f32 v42, v155
            v_mul_f32 v41, v152, v41
            v_sin_f32 v43, v155
            v_mul_f32 v42, v154, v42
            v_mul_f32 v43, v154, v43""".split("\n")
        return mk(out)

    def kgen_tables(self):
        e = self
        W1, W8, W256 = 38, 40, 42
        rows = [0, 1, 2, 3, 4, 5, 6, 7, 256, 258, 260, 1288, 260, 262, 264, 1800, 516, 520, 1032, None, 772, 776, 1544]
        xs = [(("x", 0), None, None)] + [(("x", x), ("x", x - 1), "w1") for x in range(1, 9)] + [(("x", x), ("x", x - 256), "w256") for x in (256, 258, 260, 262, 264, 516, 520, 772, 776, 1032, 1288, 1544, 1800)]
        ys = [(("y", 1), None, None)] + [(("y", c), ("y", c - 1), "w8") for c in range(2, 32)]
        ny, nx = e.o.get("ky", 8), e.o.get("kx", 5)
        batches = [ys[len(ys) * k // ny: len(ys) * (k + 1) // ny] for k in range(ny)] + [xs[len(xs) * k // nx: len(xs) * (k + 1) // nx] for k in range(nx)]
        last = {}
        for b, its in enumerate(batches):
            for d, s, w in its:
                last[d] = max(last.get(d, b), b)
                if s: last[s] = b
        reg = {"w1": W1, "w8": W8, "w256": W256, ("y", 1): W8, ("x", 0): 44}
        free = [46, 48, 50, 52, 54, 56, 62, 168, 170, 172, 174, 144]
        out = []
        for b, its in enumerate(batches):
            mul, cvt, st = [], [], []
            for k, (d, s, w) in enumerate(its):
                if s:
                    reg[d] = free.pop(0)
                    mul += e.cmul(reg[d], reg[s], reg[w], 58 + 2 * (k & 1))
                if d != ("x", 8):
                    o = 156 + len(cvt)
                    cvt.append(f"v_cvt_pk_bf16_f32 v{o}, v{reg[d]}, v{reg[d]+1}")
                    for r in ([d[1]] if d[0] == "y" else [32 + n for n, x in enumerate(rows) if x == d[1]]):
                        st.append(f"ds_write_addtid_b32 v{o} offset:{CH0 + KTS * r}")
            for d in [d for d, l in last.items() if l == b and d not in (("y", 1), ("x", 0))]: free.append(reg[d])
            out.append((mk(mul), mk(cvt), mk(st)))
        return out, ny

    def kgen(self):
        e = self
        e(f"""v_lshlrev_b32 v32, 16, v32""")
        e(f"""
            v_mul_f32 v32, {fx(LOG2E)}, v32
            v_exp_f32 v32, v32
            v_lshlrev_b32 v33, 16, v33
            v_cvt_pk_bf16_f32 v32, v32, v32
            v_lshlrev_b32 v32, 16, v32
            v_mul_f32 v34, {fx(LOG2E)}, v32
            v_mul_f32 v35, 0.15915494, v32
            v_readfirstlane_b32 s58, v32
            v_readfirstlane_b32 s56, v34
            v_readfirstlane_b32 s57, v35
            s_mov_b32 s55, s70""")
        drip = []
        def wdrip():
            w = e.w1_pack_issue(); drip.extend(w[k:k + 4] for k in range(0, 16, 4))
        if e.o.get("wl", 1) == 1: wdrip()
        def pub():
            if e.o.get("wl", 1) == 2: wdrip()
            return e.ln_publish()
        def gather():
            a, b = e.gather(); drip.extend(b)
            for k, i in enumerate(e.table_loads(range(9, 13))): drip[-4 + k] = drip[-4 + k][:3] + [i] + drip[-4 + k][3:]
            return a
        def pack():
            drip.extend([i] for i in e.w1_pack_stores())
            return e.w1_pack_perm() + e.stamp(9)
        hooks = {e.o.get("pub", 9): pub,
                 e.o.get("p1i", 22): lambda: e.poll_issue(e.vPOLL, 18),
                 e.o.get("pk", 20): pack,
                 e.o.get("p1c", 28): gather,
                 e.o.get("pw", 35): lambda: e.w1_publish(163) + e.stamp(12)}
        fix, e.late = e.conv_fix()
        hooks[e.o.get("fix", 6)] = lambda: fix
        assert len(hooks) == 6 and e.o.get("pk", 20) < e.o.get("p1c", 28)
        xrd = lambda: mk([f"ds_read_b128 v[{64+8*ks}:{67+8*ks}], v{e.vKTX} offset:{32*ks + 32*KTS}" for ks in range(8)])
        yrd = lambda: mk([f"ds_read_b128 v[{68+8*ks}:{71+8*ks}], v{e.vKTY} offset:{32*ks}" for ks in range(8)])
        mfs = lambda j: [I(f"v_mfma_f32_32x32x16_bf16 v[128:143], v[{64+8*ks}:{67+8*ks}], v[{68+8*ks}:{71+8*ks}], " + ("0" if j == 0 and ks == 0 else "v[128:143]")) for ks in range(8)]
        n, mf, xr, w1 = 0, [], [], e.w1_loads()
        e.w1_early = 0
        for j in range(3):
            e(e.kgen_setup(j))
            pend, yr = [], yrd()
            tb, ny = e.kgen_tables()
            for b, (mul, cvt, st) in enumerate(tb):
                e(mul)
                for _ in range(-(-len(mf) // (ny + 1 - b)) if b <= ny else 0): e(mf.pop(0))
                e(pend)
                for _ in range(min(len(xr), -(-8 // ny))): e(xr.pop(0))
                if b >= ny:
                    assert not mf and not xr
                    for _ in range(-(-len(yr) // (len(tb) - b))): e(yr.pop(0))
                if drip: e(drip.pop(0))
                if n in hooks: e(hooks[n]())
                e(cvt)
                pend = st; n += 1
            e(pend)
            xr, mf = xrd(), mfs(j)
            for _ in range(2 if j < 2 else 8): e(xr.pop(0))
        e(f"ds_write_b128 v{e.vZB}, v[190:193]")
        assert not drip
        e(e.stamp(11))
        fwi = mk(f"s_mov_b32 s70, {FW - F1}") + e.poll_issue(e.vPOLL, 234, "s70")
        if e.o.get("fwi", 10) == 0: e(fwi)
        e(e.late[:16])
        for k, m in enumerate(mf):
            e(m); e(e.late[16 + 4 * k: 20 + 4 * k])
        assert len(e.late) <= 48
        R = 128
        e(f"""v_cmp_eq_u32 vcc, 0, v1
            s_mov_b32 s71, 0xffff
            v_cndmask_b32 v33, 0, v33, vcc
            v_add_f32 v{R}, v{R}, v33
            v_cvt_pk_bf16_f32 v20, v{R}, v{R+1}
            v_cvt_pk_bf16_f32 v21, v{R+2}, v{R+3}
            ds_write_b64 v{e.vKNW}, v[20:21] offset:{KN + 16}""")
        e(e.w4_reads(0))
        e(f"""v_cvt_pk_bf16_f32 v22, v{R+4}, v{R+4}
            v_cvt_pk_bf16_f32 v23, v{R+5}, v{R+6}
            v_cvt_pk_bf16_f32 v24, v{R+6}, v{R+6}
            v_cvt_pk_bf16_f32 v25, v{R+6}, 0
            v_cvt_pk_bf16_f32 v26, 0, v{R+9}
            v_cvt_pk_bf16_f32 v27, v{R+9}, 0
            v_cvt_pk_bf16_f32 v28, v{R+9}, v{R+8}
            v_cvt_pk_bf16_f32 v29, v{R+10}, v{R+7}
            ds_write_b64 v{e.vKNW}, v[22:23] offset:{KN + 16 + 512}
            ds_write_b32 v{e.vK2W}, v28 offset:{K2 + 508}
            ds_write_b16 v{e.vK3W}, v29 offset:{K3 + 254}
            ds_write_b16_d16_hi v{e.vK3W}, v29 offset:{K3 + 190}
            s_mov_b32 exec_lo, 0
            s_mov_b32 exec_hi, 0x80000000
            ds_write_b64 v{e.vKNW}, v[24:25] offset:{KN + 16 + 1024 - 504}
            ds_write2_b32 v{e.vK3W}, v26, v27 offset0:0 offset1:1
            s_mov_b64 exec, -1""".replace(f"ds_write2_b32 v{e.vK3W}, v26, v27 offset0:0 offset1:1", f"ds_write_b32 v{e.vKNW}, v26 offset:{KN + 16 + 1044 - 504}\nds_write_b32 v{e.vKNW}, v27 offset:{KN + 16 + 1048 - 504}"))
        if e.o.get("pw", 35) == 99: e(e.w1_publish(163) + e.stamp(12))
        e(e.w4_build(0))
        if e.o.get("fwi", 10) == 1: e(fwi)
        e.fwi = fwi
        e(self.stamp(5))

    W4S, W4O = 92, 128
    def w4_reads(self, rnd):
        e = self
        a, off = (e.vW4S, KN + 8 + 512 * rnd) if rnd < 2 else (e.vW4S3, KN)
        r = e.W4S + 4 * (rnd & 1)
        return mk(f"ds_read_b64 v[{r}:{r+1}], v{a} offset:{off}\nds_read_b64 v[{r+2}:{r+3}], v{a} offset:{off + 8}", tag=f"w4r{rnd}")
    def w4_build(self, rnd):
        e = self
        p0, p1, o0, o1 = (e.W4S + 4 * (rnd & 1) + i for i in range(4))
        d = e.W4O + 8 * (rnd & 1)
        a, off = (e.vW4D, W4 + 128 + 1024 * rnd) if rnd < 2 else (e.vW4D3, W4)
        return mk(f"""v_bfi_b32 v{d}, s71, v{o0}, v{p1}
            v_bfi_b32 v{d+1}, s71, v{p1}, v{p0}
            v_alignbit_b32 v{d+2}, v{o0}, v{o0}, 16
            v_alignbit_b32 v{d+3}, v{p1}, v{p1}, 16
            v_bfi_b32 v{d+4}, s71, v{o1}, v{o0}
            v_mov_b32 v{d+5}, v{d}
            v_alignbit_b32 v{d+6}, v{o1}, v{o1}, 16
            v_mov_b32 v{d+7}, v{d+2}
            ds_write_b128 v{a}, v[{d}:{d+3}] offset:{off}
            ds_write_b128 v{a}, v[{d+4}:{d+7}] offset:{off + 16}""")

    def gather(self):
        e = self
        out = e.stamp(10) + e.poll_check(e.vPOLL, 18) + e.stamp(4)
        items = []
        for lds, va in ((U0 + 4096, e.vDMA), (X0, 176)):
            for k in range(4):
                items.append(mk(f"s_add_u32 m0, s59, {lds + 1024 * k}") + mk(f"global_load_lds_dwordx4 v{va}, s[34:35] sc1", tag="u") +
                             mk("s_mov_b32 m0, s70") + (mk(f"v_add_u32 v{va}, {4 * UP}, v{va}") if k < 3 else []))
        return out, items

    def w1_loads(self):
        out = []
        for n in range(60):
            gq, k = n // 15, n % 15
            b = 4 + 4 * gq + 2 * (k // 8)
            out.append(I(f"global_load_dwordx4 a[{4*n}:{4*n+3}], v{self.vL16}, s[{b}:{b+1}] offset:{1024 * (k % 8) - 4096} sc1", tag="w1"))
        return out

    def ffn_ids(self):
        return mk(f"""s_and_b32 s62, s{sCLS}, 1
            s_lshl_b32 s62, s62, 3
            s_lshr_b32 s48, s{sIDX}, 2
            s_add_u32 s62, s62, s48
            s_lshr_b32 s63, s{sCLS}, 1
            s_and_b32 s48, s{sIDX}, 3
            s_lshl2_add_u32 s63, s63, s48
            s_lshl2_add_u32 s60, s63, s{sW}
            s_mul_i32 s60, s60, 61440
            s_add_u32 s60, s60, {W1P + 4096}
            s_add_u32 s39, s{sW}, {"s62" if self.o.get("rot", 1) else 0}
            s_and_b32 s39, s39, 3""") + [i for gq in range(4) for i in mk(f"""s_add_u32 s48, s39, {gq}
            s_and_b32 s48, s48, 3
            s_mul_i32 s48, s48, 15360
            s_add_u32 s48, s48, s60
            s_add_u32 s{4+4*gq}, s34, s48
            s_addc_u32 s{5+4*gq}, s35, 0
            s_add_u32 s{6+4*gq}, s{4+4*gq}, 8192
            s_addc_u32 s{7+4*gq}, s{5+4*gq}, 0""")]

    def fw_poll_addr(self, va):
        return mk(f"""s_lshl_b32 s48, s{sCLS}, 12
            s_add_u32 s48, s48, {FW + 160 * 16}
            v_lshl_add_u32 v{va}, v1, 4, s48
            v_add_u32 v{va+1}, 512, v{va}""")

    def conv(self):
        e = self; o = e.o
        ACC = lambda t, mt: 144 + 8 * t + 4 * mt
        BR, AR, XB, XD, XC, K2F, K3F, AX, XU = 2, 50, 100, 108, 124, 68, 128, 100, 180
        main = []
        def mf(acc, A, B, need, zero=False):
            main.append(I(f"v_mfma_f32_16x16x32_bf16 v[{acc}:{acc+3}], v[{A}:{A+3}], v[{B}:{B+3}], " + ("0" if zero else f"v[{acc}:{acc+3}]"), need=need))
        def rd(txt, reg, n, tag, grp):
            return I(txt, tag=grp, put={("v", reg + i): tag for i in range(n)})
        def nd(*items): return {("v", reg + i): tag for reg, n, tag in items for i in range(n)}
        start, reads, pos = [], [], {}
        boxes = [(T, b) for T in range(6) for b in range(4) if not (b >= 2 and T >= 4)]
        arr = (A5, A3, A9, A7)
        nbox, box_at = 0, []
        for s, j in enumerate(list(range(2, 16)) + [0, 1]):
            grp = f"s{s}"
            start.append(len(main)); R = []
            b0 = BR + 16 * (s % 3)
            steps = [(0, 4 * j, (0, 1))]
            if j == 0: steps += [(1, 64, (0, 1)), (2, 76, (0, 1))]
            if j == 1: steps += [(1, 68, (0,)), (2, 80, (0,))]
            for i in range(4):
                R.append(rd(f"ds_read_b128 v[{b0+4*i}:{b0+4*i+3}], v{e.vUB + (j & 7)} offset:{4096 * i + 2048 - 2048 * (j >> 3)}", b0 + 4 * i, 4, ("B", j, i), grp))
            for iF, o0, mts in steps:
                a0 = AR + 6 * (s % 3) if iF == 0 else AX - 6 + 6 * iF + 12 * j
                base = W4 + 128 + 32 * o0
                for k, off in ((0, base + W4P), (2, base), (4, base + W4P - 32)):
                    if k == 0 and mts == (0,): continue
                    R.insert(0 if iF == 0 else len(R), rd(f"ds_read_b64 v[{a0+k}:{a0+k+1}], v{e.vAB} offset:{off}", a0 + k, 2, ("A", j, iF, k), grp))
                for t in range(iF, 4):
                    for mt in mts:
                        A = a0 + 2 - 2 * mt
                        pos.setdefault((t, mt), []).append(len(main))
                        mf(ACC(t, mt), A, b0 + 4 * (t - iF), nd((A, 2, ("A", j, iF, 2 - 2 * mt)), (A + 2, 2, ("A", j, iF, 4 - 2 * mt)), (b0 + 4 * (t - iF), 4, ("B", j, t - iF))))
            for _ in range(min(2, 20 - nbox)):
                T, b = boxes[nbox]
                xb = XB + 4 * (T & 1); xd = XD + 4 * (nbox & 3)
                if b == 0:
                    R.append(rd(f"ds_read_b128 v[{xb}:{xb+3}], v{e.vBB} offset:{2048 * T}", xb, 4, ("XB", T), grp if T < 5 else "xb5"))
                mf(xd, e.vBAND + 4 * b, xb, nd((xb, 4, ("XB", T))), zero=True)
                xc = XC + 2 * (nbox & 1)
                main[-1].put = nd((xd, 4, ("XD", nbox)))
                box_at.append((len(main) - 1, [
                    I(f"v_cvt_pk_bf16_f32 v{xc}, v{xd}, v{xd+1}", need=nd((xd, 2, ("XD", nbox))), put=nd((xc, 1, ("XC", nbox)))),
                    I(f"v_cvt_pk_bf16_f32 v{xc+1}, v{xd+2}, v{xd+3}", need=nd((xd + 2, 2, ("XD", nbox))), put=nd((xc + 1, 1, ("XC", nbox)))),
                    I(f"ds_write_b64 v{e.vBW}, v[{xc}:{xc+1}] offset:{arr[b] + 128 * T}", need=nd((xc, 2, ("XC", nbox))))]))
                nbox += 1
            reads.append(R)
        far = [("2", 0), ("2", 2), ("3", 0), ("2", 4), ("2", 6), ("2", 8), ("2", 10), ("3", 2)]
        kreads = []
        for phi in range(1, 9):
            kreads.append(rd(f"ds_read_b128 v[{K2F+4*(phi-1)}:{K2F+4*(phi-1)+3}], v{e.vK2A} offset:{K2 + 752 - 64 * phi}", K2F + 4 * (phi - 1), 4, ("K2", phi), None))
        for phi in range(3, 7):
            for k in range(2):
                r_ = K3F + 4 * (phi - 3) + 2 * k
                kreads.append(rd(f"ds_read_b64 v[{r_}:{r_+1}], v{e.vK3A} offset:{K3 + 504 - 64 * phi + 8 * k}", r_, 2, ("K3", phi), None))
        for s, (reg, k0) in enumerate(far, 16):
            start.append(len(main)); R = []
            b0 = BR + 16 * (s % 3)
            for kk in range(2):
                ks = k0 + kk
                for mt in range(2):
                    a0 = b0 + 8 * kk + 4 * mt
                    va, st, hf = (e.vR2 + mt, 64, 8) if reg == "2" else (e.vR3 + mt, 128, 16)
                    for k in range(2):
                        R.append(rd(f"ds_read_b64_tr_b16 v[{a0+2*k}:{a0+2*k+1}], v{va} offset:{st * ks + hf * k}", a0 + 2 * k, 2, ("F", reg, ks, mt), f"s{s}"))
                    for t in range(1, 4):
                        phi = 4 * t - ks if reg == "2" else 2 * t - ks
                        if (1 <= phi <= 8 if reg == "2" else 3 <= phi <= 6):
                            kf = K2F + 4 * (phi - 1) if reg == "2" else K3F + 4 * (phi - 3)
                            pos[t, mt].append(len(main))
                            mf(ACC(t, mt), a0, kf, nd((a0, 4, ("F", reg, ks, mt)), (kf, 4, ("K" + reg, phi))))
            reads.append(R)
        ns = len(reads); start.append(len(main))
        xb5 = [r for r in reads[9] if r.tag == "xb5"]; reads[9] = [r for r in reads[9] if r.tag != "xb5"]
        g = Sched(main)
        SO = X0 - U0 - 2048
        g.pre = [I(f"ds_read_b128 v[{ACC(t, mt)}:{ACC(t, mt)+3}], v{e.vST + 2 + mt} offset:{SO + 4096 * t}", tag="s0") for t in range(4) for mt in range(2)]
        g.pre = reads[0] + g.pre + reads[1] + e.w4_reads(1) + e.w4_reads(2) + mk("@lgkm s0")
        w41 = g.add(e.w4_build(1), 2, start[3] - 1, prio=1)
        w42 = g.add(e.w4_build(2), 2, start[9], after=[(w41[-1], 0)])
        for s in range(ns - 2):
            g.add(reads[s + 2], start[s], start[s + 1] + (2 if s < 19 else 0), prio=2, pace=True)
            g.add(mk(f"@lgkm s{s+1}"), start[s + 1] - 1, start[s + 1] - 1, prio=3)
        g.add(mk(f"@lgkm s{ns-1}"), start[ns - 1] - 1, start[ns - 1] - 1, prio=3)
        g.add(xb5, start[8], start[8] + 3, prio=2)
        prev = [None, None]
        for n, (k, ins) in enumerate(box_at):
            prev[n & 1] = g.add(ins, k + 3, k + 14, after=[(prev[n & 1], 0)] if prev[n & 1] else None, prio=1)[-1]
        g.add(kreads, start[10], start[15], after=[(w42[-1], 0)])
        last = None
        for t in range(4):
            s = o.get("xs", 7) + 2 * t
            r = g.add([I(f"ds_read_b128 v[{XU}:{XU+3}], v{e.vUB} offset:{2048 + 4096 * t}", tag=f"xr{t}")] +
                      [I(f"ds_read_b128 v[{XU+4+4*mt}:{XU+7+4*mt}], v{e.vST + mt} offset:{SO + 4096 * t}", tag=f"xr{t}") for mt in range(2)],
                      0, pos[t, 0][s - 1] - 6, after=[(last, 0)] if last else None, prio=1)
            for mt in range(2):
                p = pos[t, mt][s - 1 + mt]; q = pos[t, mt][s + mt]
                un = g.add(mk(([f"@lgkm xr{t}"] if mt == 0 else []) + [f"v_lshlrev_b32 v{XU+12+2*k}, 16, v{XU+2*mt+k}\nv_and_b32 v{XU+13+2*k}, 0xffff0000, v{XU+2*mt+k}" for k in range(2)]),
                           0, p + 2, after=[(r[-1], 5)] if mt == 0 else [(last, 0)])
                last = g.add(mk([f"v_fmac_f32 v{ACC(t, mt)+k}, v{XU+4+4*mt+k}, v{XU+12+k}" for k in range(4)]), p + 3, q - 2, after=[(un[-1], 0)], prio=2)[-1]
        def hstore(t):
            oo = XU + 4 * t
            return mk([f"s_mov_b32 s68, {HT + 16 * 40960 * t}"] + [f"v_cvt_pk_bf16_f32 v{oo+k}, v{ACC(t, k >> 1) + 2 * (k & 1)}, v{ACC(t, k >> 1) + 2 * (k & 1) + 1}" for k in range(4)]) + \
                mk(f"buffer_store_dwordx4 v[{oo}:{oo+3}], v{e.vHST}, {SRD}, s68 offen sc1", tag="h01" if t < 2 else "h23")
        for t in range(3):
            p = max(pos[t, 0][-1], pos[t, 1][-1])
            last = g.add(hstore(t), p + 3, p + 8, after=[(last, 0)], prio=2)[-1]
        w1 = e.w1_loads(); n1 = o.get("w1n", 34)
        fwc = o.get("fwc", 40)
        chk = e.poll_check(e.vPOLL, 234, "s70")
        if o.get("fwi", 10) > 1: g.add(e.fwi, o.get("fwi", 10), o.get("fwi", 10) + 2, prio=2)
        if fwc >= 0:
            c = g.add([chk[0], chk[1:], I("s_barrier")], fwc, fwc + 4, prio=2)
        ids, blk = e.ffn_ids(), []
        for i in ids:
            if i.mn == "s_addc_u32": blk[-1] = [blk[-1], i]
            else: blk.append(i)
        sid = g.add(blk[:18], 0, fwc + 4)
        sid2 = g.add(blk[18:], 0, fwc + 30, after=[(sid[-1], 0)])
        wl = g.add(w1[:n1], fwc + 5, start[o.get("w1e", 22)], pace=True, win=3, after=[(c[-1], 0), (sid[-1], 1)])
        wl[15]["after"] = [(sid2[-1], 1)]
        if fwc < 0: e(chk)
        e("@vm u\ns_barrier")
        e(e.stamp(6))
        e.pre_conv = list(e.p); e.conv_stream = g.run(); e.conv_steps = (main, start)
        e(e.conv_stream)
        e(e.stamp(7))
        e(hstore(3))
        e(f"""v_cmp_eq_u32 vcc, 0, v{e.vSIG}
            v_mov_b32 v198, 0x40000000
            s_add_u32 s48, s69, {F2}
            v_cndmask_b32 v198, v198, v{e.vSIG}, vcc
            @vm h01
            s_barrier
            buffer_store_dwordx2 v[{e.vTAG}:{e.vTAG+1}], v199, {SRD}, s48 offen sc1""")
        e(e.stamp(8))
        if e.stop == "conv": return
        import gen_ffn as F
        sa, sb = F.setup(e)
        e(sa)
        g = Sched(F.colsums(), dense=True)
        g.add(sb, 0, 50)
        wl = g.add(w1[n1:], 0, n1 - 4, pace=True, prio=1)
        g.add(mk(f"""s_add_u32 s48, s69, {F2B}
            @vm h23
            s_barrier
            buffer_store_dwordx2 v[{e.vTAG}:{e.vTAG+1}], v{e.vSIG}, {SRD}, s48 offen sc1
            buffer_store_dword v{e.vTAG}, v198, {SRD}, 0 offen sc1"""), o.get("sgb", 16), o.get("sgb", 16) + 6, prio=2)
        g.add(e.poll_issue(F.vPF, F.PD), o.get("f2i", 24), o.get("f2i", 24), prio=2)
        st = g.run()
        k = [n for n, i in enumerate(st) if i.kind == "mfma"][o.get("f2c", 52)]
        e(st[:k]); e(e.stamp(13))
        e(e.poll_check(F.vPF, F.PD)); e(e.stamp(1) if o.get("fst") else [])
        e(F.chunk(0)); e(st[k:])

    def w1_pack_loads(self):
        out = mk(f"""s_lshl2_add_u32 s71, s2, s{sW}
            s_min_u32 s71, s71, 959
            s_mul_i32 s72, s71, 5462
            s_lshr_b32 s72, s72, 16
            s_mul_i32 s48, s72, 12
            s_sub_u32 s71, s71, s48
            s_mul_i32 s48, s72, {8 * 3072}
            s_lshl_b32 s49, s71, 8
            s_add_u32 s48, s48, s49
            s_add_u32 s48, s48, 3072
            v_lshl_add_u32 v196, v6, 2, s48
            v_mov_b32 v197, 0
            v_lshl_add_u64 v[194:195], v[196:197], 0, s[26:27]
            s_mov_b32 exec_hi, 0
            v_lshl_add_u64 v[194:195], v[196:197], 0, s[24:25]
            s_mov_b32 exec_hi, -1
            s_mov_b32 s48, 9216
            s_mov_b32 s49, 0
            v_lshl_add_u64 v[196:197], v[194:195], 0, s[48:49]
            v_lshl_add_u64 v[198:199], v[196:197], 0, s[48:49]""")
        return out
    def w1_pack_issue(self):
        out = []
        for j in range(8):
            for hf in range(2):
                a = 194 + 2 * (j // 3)
                out += mk(f"global_load_dword v{236+8*hf+j}, v[{a}:{a+1}], off offset:{3072 * (j % 3 - 1) + 128 * hf}")
        return out
    def w1_pack_addr(self):
        out = mk(f"""s_lshl_b32 s48, s71, 4
            v_bfe_u32 v160, v1, 3, 2
            v_lshl_add_u32 v160, v160, 1, s48
            s_lshr_b32 s48, s72, 2
            s_mul_i32 s48, s48, 3072
            s_and_b32 s49, s72, 3
            s_lshl_b32 s49, s49, 8
            s_add_u32 s48, s48, s49
            s_add_u32 s48, s48, {W1P}
            v_and_b32 v161, 1, v1
            v_lshl_add_u32 v161, v161, 4, s48
            v_bfe_u32 v162, v1, 1, 2
            v_lshl_add_u32 v161, v162, 6, v161
            v_and_b32 v162, 32, v1
            v_add_u32 v161, v161, v162
            s_mov_b32 s49, 57
            s_mov_b32 s72, 0x05040100
            s_mov_b32 s73, 0x07060302""")
        for t in range(4):
            out += mk(f"""v_mul_u32_u24 v162, 21846, v160
                v_lshrrev_b32 v162, 16, v162
                v_mad_u32_u24 v162, v162, s49, v160
                v_lshl_add_u32 v{164+t}, v162, 10, v161""")
            if t < 3: out += mk(f"v_add_u32 v160, {7 if t == 1 else 1}, v160")
        return out
    def w1_pack_perm(self):
        return mk([f"v_perm_b32 v{2+4*t+jj}, v{236+8*(t>>1)+2*jj+1}, v{236+8*(t>>1)+2*jj}, s{72+(t&1)}" for t in range(4) for jj in range(4)])
    def w1_pack_stores(self):
        return mk([f"global_store_dwordx4 v{164+t}, v[{2+4*t}:{5+4*t}], s[34:35] sc1" for t in range(4)], tag="w1p")
    def w1_pack(self):
        return self.w1_pack_perm() + self.w1_pack_stores() + self.stamp(9)
    def w1_publish(self, va=None):
        return mk("@vm w1p\ns_barrier") + self.signal_all(FW, va)

    def w2_consts(self):
        e = self
        e(f"""s_sub_u32 s50, s2, 160
            v_lshlrev_b32 v{e.vL16}, 4, v1
            s_lshr_b32 s55, s50, 1
            s_and_b32 s56, s50, 1
            s_mul_i32 s48, s55, {32 * 1280}
            s_mul_i32 s49, s56, 640
            s_add_u32 s48, s48, s49
            s_mul_i32 s49, s{sW}, {8 * 1280}
            s_add_u32 s48, s48, s49
            s_lshl2_add_u32 s56, s56, s{sW}
            s_mul_i32 s56, s56, 48
            s_add_u32 s55, s55, s56
            s_mul_i32 s56, s{sW}, 5120""")
        for n in range(5):
            e(f"""v_add_u32 v20, {64 * n}, v1
                v_mul_u32_u24 v21, 1639, v20
                v_lshrrev_b32 v21, 16, v21
                v_mul_u32_u24 v21, 640, v21
                v_lshl_add_u32 v21, v20, 4, v21
                v_add_u32 v{24+n}, s48, v21""")
        e(f"""v_bfe_u32 v20, v1, 2, 2
            v_bfe_u32 v21, v1, 4, 1
            v_lshl_add_u32 v20, v20, 1, v21
            v_lshrrev_b32 v21, 5, v1
            v_lshl_add_u32 v20, v21, 4, v20
            v_mul_u32_u24 v20, 640, v20
            v_and_b32 v21, 3, v1
            v_lshl_add_u32 v20, v21, 3, v20
            s_mul_i32 s48, s{sW}, 160
            v_add_u32 v20, s48, v20""")

    def helper_main(self):
        e = self
        wl, w2l = e.o.get("wl", 1), e.o.get("w2l", 3)
        dma = [i for n in range(5) for i in mk(f"s_add_u32 m0, s56, {1024 * n}") + mk(f"global_load_lds_dwordx4 v{24+n}, s[28:29]", tag="w2l")]
        e.x_loads(); e.w2_consts()
        if w2l == 0: e(dma)
        e(e.w1_pack_loads()); e.ln_consts()
        ln = e.ln1()
        e(ln[:20])
        if wl == 0: e(e.w1_pack_issue())
        if w2l == 1: e(dma)
        e(ln[20:])
        if wl == 1: e(e.w1_pack_issue())
        e(e.ln_publish())
        if wl == 2: e(e.w1_pack_issue())
        if w2l == 2: e(dma)
        if e.o.get("hd", 1): e("s_waitcnt vmcnt(0)")
        e(e.w1_pack_addr()); e(e.w1_pack_perm())
        e(e.ffn_ids())
        e(f"""s_lshl_b32 s48, s{sCLS}, 12
            s_add_u32 s48, s48, {FW}
            v_lshl_add_u32 v{e.vPOLL}, v0, 4, s48
            s_mul_i32 s58, s55, 5120
            s_add_u32 s58, s58, {W2P}
            s_add_u32 s59, s58, 4096""")
        e(e.w1_pack_stores()); e(e.stamp(9))
        w2s = mk([f"buffer_store_dwordx4 v[{32+4*t}:{35+4*t}], v{e.vL16}, {SRD}, s{58 + t // 4} offen offset:{1024 * (t & 3)} sc1" for t in range(5)], tag="w2p")
        e(e.w1_publish())
        e(e.stamp(4))
        if w2l == 3: e(dma); e("@vm w2l")
        e(e.stamp(10))
        e(e.hint_wait(FW))
        e(e.poll_issue(e.vPOLL, 192))
        for t in range(5):
            e(f"ds_read_b64_tr_b16 v[{32+4*t}:{33+4*t}], v20 offset:{32*t}\nds_read_b64_tr_b16 v[{34+4*t}:{35+4*t}], v20 offset:{32*t + 8*640}")
        e(e.poll_check(e.vPOLL, 192, slp=8))
        e("s_barrier")
        e(e.stamp(6))
        w1 = e.w1_loads(); a, b = e.o.get("h1", 0), e.o.get("h2", 20)
        e(w1[:a]); e(w2s); e(w1[a:b])
        e("@vm w2p\ns_barrier"); e(e.signal_all(F2B))
        e(e.stamp(5))
        e(w1[b:])
        if e.stop == "conv": return
        import gen_ffn as F
        sa, sb = F.setup(e)
        e(sa); e(sb); e(F.colsums())
        e(e.stamp(7))
        e(e.hint_wait(F2))
        e(e.stamp(13))
        e(e.poll_issue(F.vPF, F.PD)); e(e.poll_check(F.vPF, F.PD)); e(e.stamp(1) if e.o.get("fst") else [])
        e(F.chunk(0))

    def finish_stamps(self):
        e = self
        if not e.stamps: return
        if e.o.get("nost"): e("s_waitcnt vmcnt(0)\ns_memrealtime s[100:101]")
        e(f"""s_waitcnt lgkmcnt(0)
            s_lshl2_add_u32 s48, s2, s{sW}
            s_lshl_b32 s48, s48, 6
            s_add_u32 s48, s48, {DBG}
            v_mov_b32 v2, s48""")
        for k in range(14):
            e(f"v_mov_b32 v3, s{74 + 2 * k}\nbuffer_store_dword v3, v2, {SRD}, 0 offen offset:{4 * k}")

    def build(self):
        e = self
        e.prologue()
        e(f"s_cmp_ge_u32 s{sIDX}, 20\ns_cbranch_scc1 L_helper")
        head = list(e.p)
        e.x_loads(); e.conv_param_loads(); e(e.w1_pack_loads()); e.ln_consts(); e(e.w1_pack_addr()); e(e.hint_setup(163, 0)); e.conv_consts_a()
        tl = e.table_loads([6, 2, 8, 0, 1, 3, 4, 5, 7])
        ln = e.ln1()
        k = e.o.get("tbl", 20)
        e(ln[:k]); e(tl)
        if e.o.get("wl", 1) == 0: e(e.w1_pack_issue())
        e(ln[k:])
        e.kgen(); e.conv()
        e("s_branch L_join")
        a, sa = finalize(e.p)
        e.p = list(head); e("L_helper:")
        e.helper_main()
        b, sb = finalize(e.p)
        k = next(n for n, i in enumerate(b) if i.text == "L_helper:")
        e.p = []
        e("L_join:")
        if e.stop != "conv":
            import gen_ffn
            e.in_ffn = True
            gen_ffn.ffn(e)
        e.finish_stamps()
        c, sc = finalize(e.p)
        self.stats = (sa, sb, sc)
        allp = a + b[k:] + c
        if e.o.get("al", 0): self.stats += (align8(allp),)
        body = "\n".join(("" if i.kind == "meta" else "    ") + i.text for i in allp if i.kind != "pseudo")
        return f"""; @launch grid=(256,1,1) block=(256,1,1) lds={LDS_BYTES}
; One persistent workgroup per CU. Hand-offs between workgroups go through write-through stores into d_ws and
.amdgcn_target "amdgcn-amd-amdhsa--gfx950"
.text
.globl {NAME}_kernel
.p2align 8
.type {NAME}_kernel,@function
{NAME}_kernel:
{body}
L_end:
    s_endpgm
{chr(10).join(self.cold)}
.p2align 7
L_table:
{self.lane_table()}
L_code_end:
.section .rodata,"a"
.p2align 6
.amdhsa_kernel {NAME}_kernel
  .amdhsa_next_free_vgpr 512
  .amdhsa_next_free_sgpr 102
  .amdhsa_accum_offset 256
  .amdhsa_group_segment_fixed_size 0
  .amdhsa_kernarg_size 128
  .amdhsa_user_sgpr_count 2
  .amdhsa_user_sgpr_kernarg_segment_ptr 1
  .amdhsa_system_sgpr_workgroup_id_x 1
.end_amdhsa_kernel
"""

if __name__ == "__main__":
    opt = {a.split("=")[0]: int(a.split("=")[1]) for a in sys.argv[4:]}
    k = K(stop=sys.argv[2] if len(sys.argv) > 2 and sys.argv[2] != "-" else None, stamps=len(sys.argv) > 3 and sys.argv[3] == "stamps", opt=opt)
    open(sys.argv[1], "w").write(k.build())
    print(k.stats, getattr(k, 'models', None))
```

```python
import sys, gen as G
opt0 = {a.split("=")[0]: int(a.split("=")[1]) for a in sys.argv[2:]}
for spec in sys.argv[1].split(","):
    fst = spec.startswith("f"); k = int(spec.lstrip("f"))
    opt = dict(opt0, nost=1, st=k, fst=int(fst))
    kk = G.K(stamps=True, opt=opt); kk.finish_stamps = lambda: None
    s = kk.build()
    r = 74 + 2 * k
    s = s.replace("L_end:\n", f"""    s_waitcnt vmcnt(0) lgkmcnt(0)
    s_load_dwordx2 s[4:5], s[0:1], 112
    s_cmp_lt_u32 s2, 160
    s_cselect_b32 s6, s{r}, s74
    v_mov_b32 v2, 0
    v_mov_b32 v3, s6
    s_waitcnt lgkmcnt(0)
    s_mov_b64 exec, 1
    global_atomic_umax v2, v3, s[4:5] sc1
    s_mov_b64 exec, -1
L_diag0:
    s_memrealtime s[8:9]
    s_waitcnt lgkmcnt(0)
    s_sub_u32 s8, s8, s74
    s_cmp_lt_u32 s8, 4400
    s_cbranch_scc1 L_diag0
    global_load_dword v3, v2, s[4:5] sc1
    s_waitcnt vmcnt(0)
    v_readfirstlane_b32 s6, v3
    s_nop 3
L_diag:
    s_memrealtime s[8:9]
    s_waitcnt lgkmcnt(0)
    s_sub_u32 s8, s8, s6
    s_cmp_lt_u32 s8, 5000
    s_cbranch_scc1 L_diag
L_end:
""")
    open(f"hd_{spec}.s", "w").write(s)
```

```python
import struct, math, sys
from asmlib import I, mk, finalize, Gaps, Sched, model_cycles, align8

NAME = "sequential_preLN__ssm_conv_s4__geglu_ffn__prompt"
def fx(x): return hex(struct.unpack("<I", struct.pack("<f", x))[0])
LOG2E = math.log2(math.e)

EPOCH, F1, FW, F2, F2B, F3, DBG = 0, 0x10000, 0x40000, 0x70000, 0xa0000, 4 << 20, 0xe0000
F2C = (4 << 20) + 0x90000
HOFF = 0x20000
UP = 161 * 256
UT, XT, HT, W1P, W2P, ACT, WS_SIZE = 1 << 20, 4 << 20, 7 << 20, 10 << 20, 14 << 20, 16 << 20, 23 << 20
U0, X0, CH0, CHS = 0, 20480, 36864, 21760
PS, A5, A3, A9, A7 = 832, 0, 3328, 6656, 9984 + 64
KTS = 272
KN = 13376; W4 = 55 * KTS; W4P = 2832; K2 = W4 + 2 * W4P; K3 = K2 + 752
LNU = CH0 + 4 * CHS; LNS = 1344
SLOT = 40960
STP = 3 * SLOT
RES = STP + 2048
RST = 160 * 1024 - 4 * 6144
PART = 0
LDS_BYTES = 160 * 1024
assert LNU + 10752 <= LDS_BYTES and RES + 4 * 2816 <= RST

sW, sCLS, sIDX = 36, 37, 38
SRD = "s[40:43]"; TAG = "s[44:45]"; SRD2 = "s[64:67]"
SPIN = 20000

class K:
    def __init__(self, stop=None, stamps=False, opt=None):
        self.p = []; self.stop = stop; self.stamps = stamps; self.nlab = 0
        self.o = dict(opt or {}); self.in_ffn = self.in_ln = False; self.cold = []
    def __call__(self, x, **kw): self.p += mk(x, **kw)
    def lab(self, s):
        self.nlab += 1; return f"L_{s}_{self.nlab}"
    def stamp(self, k):
        if self.o.get("nost") and k and k != self.o.get("st"): return []
        if self.o.get("fst") and not self.in_ffn and (k not in (0, 1, 6, 7, 8, 13) or (k == 1 and self.in_ln)): return []
        return mk(f"s_memrealtime s[{74 + 2 * k}:{75 + 2 * k}]") if self.stamps else []

    vSIG, vTAG = 177, 178
    def signal_setup(self):
        return mk(f"""s_lshl_b32 s48, s2, 6
            v_lshrrev_b32 v{self.vSIG}, 3, v0
            v_lshl_add_u32 v{self.vSIG}, v{self.vSIG}, 14, s48
            v_and_b32 v{self.vTAG}, 7, v0
            v_lshl_add_u32 v{self.vSIG}, v{self.vTAG}, 3, v{self.vSIG}
            s_min_u32 s48, s{sW}, 1
            s_lshl_b32 s48, s48, 30
            v_add_u32 v{self.vSIG}, s48, v{self.vSIG}""")
    def prewarm(self):
        if not self.o.get("pwm", 1): return []
        return mk(f"""v_lshrrev_b32 v174, 3, v1
            s_lshl_b32 s48, s2, 6
            v_lshl_add_u32 v174, v174, 14, s48
            v_and_b32 v175, 7, v1
            v_lshl_add_u32 v174, v175, 3, v174
            s_mul_i32 s48, s{sW}, {FW - F1}
            s_add_u32 s48, s48, {F1}
            buffer_store_dwordx2 v[2:3], v174, {SRD}, s48 offen sc1
            s_mov_b32 s48, {F2C}
            buffer_store_dwordx2 v[2:3], v{self.vSIG}, {SRD}, s48 offen sc1""")
    def extra_lanes(self, dst, code):
        return mk(code + f"""
            v_lshrrev_b32 v{dst}, 3, v0
            v_cmp_eq_u32 vcc, 8, v{dst}
            v_lshl_add_u32 v{dst}, v1, 3, s48
            v_cndmask_b32 v{dst}, v{self.vSIG}, v{dst}, vcc""")
    def hint_setup(self, dst, sub):
        return self.extra_lanes(dst, f"s_lshl_b32 s48, s2, 7\ns_add_u32 s48, s48, {HOFF}\ns_sub_u32 s48, s48, {sub}")
    def hint_wait(self, region):
        L = self.lab("hint")
        return mk(f"""s_sub_u32 s48, s2, 160
            s_lshl_b32 s48, s48, 7
            s_add_u32 s48, s48, {region + HOFF}
            v_mov_b32 v196, s48
            s_cmp_lg_u32 s{sW}, 0
            s_cbranch_scc1 {L}""") + self.poll_issue(196, 192) + self.poll_check(196, 192, slp=4) + mk(f"{L}:\ns_barrier")
    def signal_all(self, region, va=None):
        return mk(f"s_mov_b32 s48, {region}\nbuffer_store_dwordx2 v[{self.vTAG}:{self.vTAG+1}], v{va or self.vSIG}, {SRD}, s48 offen sc1")
    def poll_issue(self, va, vd, so="0"):
        return mk(f"buffer_load_dwordx2 v[{vd}:{vd+1}], v{va}, {SRD}, {so} offen sc1")
    def poll_check(self, va, vd, so="0", slp=2):
        A, B = self.lab("retry"), self.lab("seen")
        self.cold.append(f"""{A}:
    s_mov_b32 s49, 0
{A}_l:
    s_mov_b64 exec, vcc
    s_sleep {slp}
    buffer_load_dwordx2 v[{vd}:{vd+1}], v{va}, {SRD}, {so} offen sc1
    s_add_u32 s49, s49, 1
    s_waitcnt vmcnt(0)
    v_cmp_ne_u64 vcc, {TAG}, v[{vd}:{vd+1}]
    s_mov_b64 exec, -1
    s_cmp_ge_u32 s49, {SPIN}
    s_cbranch_scc1 {B}
    s_nop 1
    s_cbranch_vccnz {A}_l
    s_branch {B}""")
        br = I(f"s_cbranch_vccnz {A}")
        br.uses |= {("v", va), ("v", vd), ("v", vd + 1)} | ({("s", int(so[1:]))} if so != "0" else set())
        return mk(f"v_cmp_ne_u64 vcc, {TAG}, v[{vd}:{vd+1}]") + [br] + mk(f"{B}:")

    def prologue(self):
        e = self
        e(f"s_cmp_ge_u32 s2, 256\ns_cbranch_scc1 L_end")
        e(self.stamp(0))
        e(f"""s_load_dwordx16 s[4:19], s[0:1], 0
            s_load_dwordx16 s[20:35], s[0:1], 64
            s_getpc_b64 s[46:47]
            L_pc:
            v_and_b32 v1, 63, v0
            v_lshrrev_b32 v2, 6, v0
            s_lshr_b32 s{sIDX}, s2, 3
            v_readfirstlane_b32 s{sW}, v2
            s_mul_i32 s48, s{sIDX}, 14
            v_min_u32 v3, 13, v0
            v_add_u32 v3, s48, v3
            v_lshlrev_b32 v3, 7, v3
            v_min_u32 v3, L_code_end-{NAME}_kernel-64, v3
            global_load_dword v4, v3, s[46:47]
            s_and_b32 s{sCLS}, s2, 7
            v_lshrrev_b32 v5, 5, v0
            v_and_b32 v6, 31, v0
            s_lshl_b32 s48, s2, 3
            v_add_u32 v7, s48, v5
            v_mul_u32_u24 v7, 1280, v7
            v_lshl_add_u32 v2, v6, 2, v7
            v_lshl_add_u32 v7, v6, 4, v7""")

    def x_loads(self):
        self(f"""global_load_dwordx4 v[10:13], v7, s[4:5]
            global_load_dwordx4 v[14:17], v7, s[4:5] offset:512
            global_load_dword v18, v2, s[4:5] offset:1024
            global_load_dword v19, v2, s[4:5] offset:1152
            s_mov_b32 s40, s34
            s_mov_b32 s41, s35
            s_mov_b32 s42, {WS_SIZE}
            s_mov_b32 s43, 0x20000
            v_mov_b32 v8, {EPOCH}
            buffer_load_dword v9, v8, {SRD}, 0 offen sc1""")

    def pretouch(self):
        if not self.o.get("pt", 0): return
        self(f"""v_min_u32 v172, 22, v1
            v_lshlrev_b32 v172, 20, v172
            v_add_u32 v172, {0xffc00}, v172
            v_mov_b32 v173, 0
            global_load_dword v172, v172, s[34:35]
            global_load_dword v171, v173, s[30:31]
            global_load_dword v170, v173, s[24:25]
            global_load_dword v169, v173, s[26:27]
            global_load_dword v168, v173, s[28:29]""")

    def conv_param_loads(self):
        e = self
        e(f"""s_mul_i32 s50, s{sCLS}, 80
            s_lshl2_add_u32 s50, s{sIDX}, s50
            s_add_u32 s50, s50, s{sW}
            s_mul_i32 s48, s50, 384
            v_lshl_add_u32 v34, v1, 2, s48
            v_lshl_add_u32 v35, v1, 1, s48
            s_lshl_b32 s48, s50, 1
            v_mov_b32 v36, s48
            global_load_ushort v32, v36, s[18:19]""")
        for a in range(6):
            e(f"global_load_dword v{20+a}, v34, s[{6+2*a}:{7+2*a}]")
        for a in range(6):
            e(f"global_load_ushort v{26+a}, v35, s[{6+2*a}:{7+2*a}] offset:256")
        e("global_load_ushort v33, v36, s[20:21]")

    def ln_consts(self):
        self(f"""v_mul_u32_u24 v141, {LNS}, v5
            v_add_u32 v141, {LNU}, v141
            v_lshl_add_u32 v140, v6, 2, v141
            v_add_u32 v140, 1024, v140
            v_lshl_add_u32 v141, v6, 4, v141
            v_and_b32 v143, 3, v5
            v_mul_u32_u24 v143, {2 * LNS}, v143
            v_add_u32 v143, {LNU + 1280}, v143
            v_mov_b32 v2, 0
            v_mov_b32 v3, 0
            ds_write_b64 v143, v[2:3]
            v_lshrrev_b32 v139, 2, v5
            v_lshl_add_u32 v143, v139, 1, v143
            v_bfe_u32 v142, v1, 2, 2
            v_mul_u32_u24 v142, {LNS}, v142
            v_lshrrev_b32 v139, 4, v1
            v_lshl_add_u32 v142, v139, 5, v142
            v_and_b32 v139, 3, v1
            v_lshl_add_u32 v142, v139, 3, v142
            s_lshl_b32 s48, s{sW}, 7
            s_add_u32 s48, s48, {LNU}
            v_add_u32 v142, s48, v142
            s_lshr_b32 s51, s2, 2
            s_and_b32 s48, s51, 7
            s_lshl_b32 s49, s2, 1
            s_and_b32 s49, s49, 4
            s_xor_b32 s48, s48, s49
            v_xor_b32 v139, s48, v139
            v_lshrrev_b32 v8, 2, v1
            v_lshlrev_b32 v8, 8, v8
            v_lshl_add_u32 v8, v139, 4, v8
            v_cmp_gt_u32 vcc, 132, v0
            v_mov_b32 v37, 0x40000000
            s_mul_i32 s51, s51, {UP}
            s_and_b32 s48, s2, 1
            v_cndmask_b32 v37, v37, v8, vcc
            s_lshl_b32 s48, s48, 7
            s_add_u32 s51, s51, s48
            s_lshl_b32 s48, s{sW}, 12
            s_add_u32 s51, s51, s48
            s_add_u32 s51, s51, {UT}
            s_add_u32 s52, s51, 16384
            s_add_u32 s53, s51, 32768
            s_mov_b32 s54, 0x3f803f80""")
        self(self.signal_setup()); self(self.prewarm())

    def ln1(self):
        keep, self.p, self.in_ln = self.p, [], True
        e = self
        for i in range(10):
            e(f"v_dot2c_f32_bf16 v2, s54, v{10+i}\nv_dot2c_f32_bf16 v3, v{10+i}, v{10+i}")
        e(self.stamp(1))
        un = [f"v_lshlrev_b32 v{80+2*i}, 16, v{10+i}" for i in range(10)] + [f"v_and_b32 v{81+2*i}, 0xffff0000, v{10+i}" for i in range(10)]
        e(un.pop()); e(un.pop()); e(un.pop())
        for m in ("quad_perm:[1,0,3,2]", "quad_perm:[2,3,0,1]", "row_half_mirror", "row_mirror"):
            e(f"v_add_f32_dpp v2, v2, v2 {m} row_mask:0xf bank_mask:0xf\nv_add_f32_dpp v3, v3, v3 {m} row_mask:0xf bank_mask:0xf")
            e(un.pop())
        e("v_mov_b32 v4, v2\nv_mov_b32 v5, v3"); e(un.pop()); e(un.pop())
        e("v_permlane16_swap_b32 v4, v2\nv_permlane16_swap_b32 v5, v3")
        e(f"""v_add_f32 v2, v2, v4
            v_add_f32 v3, v3, v5
            v_mul_f32 v2, {fx(1/640)}, v2
            v_mul_f32 v3, {fx(1/640)}, v3
            v_fma_f32 v3, -v2, v2, v3
            v_max_f32 v3, 0, v3
            v_cvt_pk_bf16_f32 v2, v2, v3
            v_and_b32 v3, 0xffff0000, v2
            v_add_f32 v3, {fx(1e-5)}, v3
            v_cvt_pk_bf16_f32 v3, v3, v3
            v_lshlrev_b32 v3, 16, v3
            v_sqrt_f32 v3, v3
            v_lshlrev_b32 v2, 16, v2
            v_cvt_pk_bf16_f32 v3, v3, v3
            v_lshlrev_b32 v3, 16, v3
            v_rcp_f32 v4, v3""")
        e(un)
        e("v_mul_f32_e64 v6, -v2, v4")
        for i in range(10):
            e(f"v_pk_fma_f32 v[{80+2*i}:{81+2*i}], v[{80+2*i}:{81+2*i}], v[4:5], v[6:7] op_sel_hi:[1,0,0]")
        for i in range(10):
            e(f"v_cvt_pk_bf16_f32 v{128+i}, v{80+2*i}, v{81+2*i}")
        e("ds_write_b128 v141, v[128:131]\nds_write_b128 v141, v[132:135] offset:512\nds_write2_b32 v140, v136, v137 offset1:32")
        e(f"ds_write_b16_d16_hi v143, v3 offset:{LNS}\nds_write_b16_d16_hi v143, v2 offset:{LNS + 4}")
        e("s_waitcnt lgkmcnt(0)\ns_barrier")
        for k in range(3):
            e(f"""ds_read_b64_tr_b16 v[{100+4*k}:{101+4*k}], v142 offset:{512*k}
                ds_read_b64_tr_b16 v[{102+4*k}:{103+4*k}], v142 offset:{512*k + 4*LNS}""")
        e(f"""v_readfirstlane_b32 s44, v9
            s_add_u32 s44, s44, 1
            s_xor_b32 s45, s44, 0x5bd1e995
            v_mov_b32 v{e.vTAG}, s44
            v_mov_b32 v{e.vTAG+1}, s45""")
        for k in range(3):
            e(f"buffer_store_dwordx4 v[{100+4*k}:{103+4*k}], v{8 if k < 2 else 37}, {SRD}, s{51+k} offen sc1", tag="ln")
        e(self.stamp(2))
        out, self.p, self.in_ln = self.p, keep, False
        return out

    def ln_publish(self):
        return mk("@vm ln\ns_barrier") + self.signal_all(F1) + self.stamp(3)

    TB0 = 200
    vUB, vBB, vHST, vDMA, vPOLL, vST = 200, 208, 209, 210, 211, 212
    vAB, vBW, vR2, vR3, vK2A, vK3A = 216, 217, 218, 220, 222, 223
    vKTX, vKTY, vKNW, vK2W, vK3W, vW4S, vW4D, vW4S3, vW4D3, vZB = range(224, 234)
    vBAND, vL16 = 236, 252

    def lane_table(self):
        e = self
        tab = {r: [0] * 64 for r in range(200, 252)}
        ua = lambda ap, hh, s: 256 * ap + 128 * (hh & 1) + 16 * ((4 * (hh >> 1) + s) ^ (ap & 7))
        for l in range(64):
            col, h, q, r, c, h2 = l & 15, l >> 4, (l >> 2) & 3, l & 3, l & 31, l >> 5
            for j in range(8): tab[e.vUB + j][l] = U0 + 2048 + ua(col - j, h, 0)
            o8 = 2 * col - 1 + h
            tab[e.vBB][l] = U0 + 4096 + ua(o8 >> 2, o8 & 3, 0)
            tab[e.vHST][l] = 40960 * col + 16 * h
            tab[e.vDMA][l] = UT + 40960 + UP * h + 16 * col
            tab[e.vPOLL][l] = F1 + 64 * l
            for s in range(4): tab[e.vST + s][l] = U0 + 2048 + ua(col, h, s)
            tab[e.vAB][l] = 32 * (q - h) + 8 * r
            tab[e.vBW][l] = PS * ((h + 3) & 3) + 8 * (col + ((h + 7) >> 2))
            for mt in range(2):
                v = 2 * r + mt + q
                tab[e.vR2 + mt][l] = (A3 if q & 1 else A5) + PS * (v & 3) + 8 * ((v >> 2) + 2 * h)
                v = 2 * r + mt + 2 * q
                tab[e.vR3 + mt][l] = (A7 if q & 1 else A9) + PS * (v & 3) + 8 * ((v >> 2) + 4 * h)
            tab[e.vK2A][l] = 16 * (h - col); tab[e.vK3A][l] = 8 * (2 * h - col)
            tab[e.vKTX][l] = KTS * (c - 16 if c > 22 else c) + 16 * h2
            tab[e.vKTY][l] = KTS * c + 16 * h2
            tab[e.vKNW][l] = 8 * (2 * c + h2)
            tab[e.vK2W][l] = -(128 * h2 + 4 * c); tab[e.vK3W][l] = -(128 * h2 + 2 * c)
            tab[e.vW4S][l] = 8 * l
            tab[e.vW4D][l] = W4P * (l & 1) + 32 * (l >> 1)
            tab[e.vW4S3][l] = {0: 1032, 1: 1040, 24: 1048, 25: 1056}.get(l, 0)
            tab[e.vW4D3][l] = tab[e.vW4D][l] + 2176 if l < 40 else 0
            tab[e.vZB][l] = {16: KN, 17: KN + 1040, 18: KN + 1056}.get(l, (A5, A3, A9, A7)[q] + PS * r)
            for rr in range(e.vAB, e.vZB + 1): tab[rr][l] += CH0
            for b, w in enumerate((2, 1, 4, 3)):
                for m in range(4):
                    on = lambda k: 0x3F80 if abs(8 * h + k - 4 - col) <= w else 0
                    tab[e.vBAND + 4 * b + m][l] = on(2 * m) | on(2 * m + 1) << 16
        words = [tab[200 + 4 * k + i][l] for k in range(13) for l in range(64) for i in range(4)]
        return "\n".join(".long " + ",".join(hex(x) if x > 99999 else str(x) for x in words[n:n + 16]) for n in range(0, len(words), 16))
    def table_loads(self, ks):
        return [I(f"global_load_dwordx4 v[{200+4*k}:{203+4*k}], v{254 + (k >= 8)}, s[46:47] offset:{1024 * (k % 8) - 4096}") for k in ks]

    def conv_consts_a(self):
        e = self
        e(f"""s_mul_i32 s70, s{sW}, {CHS}
            v_lshlrev_b32 v{e.vL16}, 4, v1
            v_add_u32 v254, L_table-L_pc+4096, v{e.vL16}
            v_add_u32 v255, 8192, v254
            v_mov_b32 v190, 0
            v_mov_b32 v191, 0
            v_mov_b32 v192, 0
            v_mov_b32 v193, 0
            v_lshlrev_b32 v186, 4, v0
            v_add_u32 v187, s70, v{e.vL16}
            v_mov_b32 v188, 0x3f80
            s_mov_b32 m0, s70
            ds_write_b128 v186, v[190:193] offset:{U0}
            ds_write_b128 v187, v[190:193] offset:{CH0 + W4}
            ds_write_b128 v187, v[190:193] offset:{CH0 + W4 + W4P}
            ds_write_b128 v187, v[190:193] offset:{CH0 + K2}
            ds_write_b128 v187, v[190:193] offset:{CH0 + K2 + 112}
            ds_write_addtid_b32 v188 offset:{CH0}
            s_lshl_b32 s59, s{sW}, 12""")
    def conv_fix(self):
        e = self
        a = mk(f"""v_add_u32 v{e.vKTX}, s70, v{e.vKTX}
            v_add_u32 v{e.vKTY}, s70, v{e.vKTY}
            s_lshl_b32 s48, s{sCLS}, 14
            s_lshl_b32 s49, s{sW}, 12
            s_add_u32 s48, s48, s49
            v_add_u32 v{e.vPOLL}, s48, v{e.vPOLL}
            s_mul_i32 s49, s{sW}, {16 * UP}
            v_add_u32 v176, s49, v{e.vDMA}
            s_lshr_b32 s48, s50, 2
            s_sub_u32 s48, 160, s48
            s_lshl_b32 s48, s48, 8
            v_subrev_u32 v{e.vDMA}, s48, v176
            v_add_u32 v{e.vZB}, s70, v{e.vZB}""")
        b = mk([f"v_add_u32 v{r}, s55, v{r}" for r in list(range(e.vKNW, e.vZB)) + list(range(e.vAB, e.vKTX))])
        b += mk(f"s_lshl_b32 s68, s{sW}, 4") + mk([f"v_xor_b32 v{r}, s68, v{r}" for r in range(e.vUB, e.vBB + 1)])
        b += mk(f"""s_lshl_b32 s68, s50, 2
            s_and_b32 s68, s68, 32
            v_xor_b32 v{e.vHST}, s68, v{e.vHST}
            s_lshl_b32 s68, s50, 6
            v_add_u32 v{e.vHST}, s68, v{e.vHST}
            s_mul_i32 s69, s{sIDX}, {-7 * 64}
            s_mul_i32 s48, s{sCLS}, {19 * 64}
            s_add_u32 s69, s69, s48""") + e.hint_setup(199, "s69")
        b += mk(f"s_add_u32 s48, s69, {F2B}\nv_add_u32 v{e.vSIG}, s48, v{e.vSIG}") + e.extra_lanes(198, f"s_min_u32 s48, s2, 1\ns_lshl_b32 s48, s48, 30")
        return a, b

    @staticmethod
    def cmul(d, z, w, t):
        return [f"v_pk_mul_f32 v[{t}:{t+1}], v[{z}:{z+1}], v[{w}:{w+1}] op_sel:[1,1] op_sel_hi:[1,0] neg_lo:[1,0]",
                f"v_pk_fma_f32 v[{d}:{d+1}], v[{z}:{z+1}], v[{w}:{w+1}], v[{t}:{t+1}] op_sel_hi:[0,1,1]"]

    def kgen_setup(self, j):
        out = []
        for a in range(6):
            src = 20 + a if j < 2 else 26 + a
            out.append(f"v_and_b32 v{146+a}, 0xffff0000, v{src}" if j == 1 else f"v_lshlrev_b32 v{146+a}, 16, v{src}")
        out += f"""v_mul_f32 v146, s56, v146
            v_mul_f32 v147, s57, v147
            v_mul_f32 v148, s58, v148
            v_mul_f32 v149, s58, v149
            v_mul_f32 v152, 0x41000000, v146
            v_mul_f32 v153, 0xc1000000, v147
            v_mul_f32 v154, 0x43800000, v146
            v_mul_f32 v155, 0x43800000, v147
            v_fract_f32 v147, v147
            v_fract_f32 v153, v153
            v_fract_f32 v155, v155
            v_exp_f32 v146, v146
            v_mul_f32 v44, v150, v148
            v_cos_f32 v38, v147
            v_mul_f32 v45, v150, v149
            v_sin_f32 v39, v147
            v_fma_f32 v44, -v151, v149, v44
            v_exp_f32 v152, v152
            v_fmac_f32 v45, v151, v148
            v_cos_f32 v40, v153
            v_mul_f32 v38, v146, v38
            v_sin_f32 v41, v153
            v_mul_f32 v39, v146, v39
            v_exp_f32 v154, v154
            v_mul_f32 v40, v152, v40
            v_cos_f32 v42, v155
            v_mul_f32 v41, v152, v41
            v_sin_f32 v43, v155
            v_mul_f32 v42, v154, v42
            v_mul_f32 v43, v154, v43""".split("\n")
        return mk(out)

    def kgen_tables(self):
        e = self
        W1, W8, W256 = 38, 40, 42
        rows = [0, 1, 2, 3, 4, 5, 6, 7, 256, 258, 260, 1288, 260, 262, 264, 1800, 516, 520, 1032, None, 772, 776, 1544]
        xs = [(("x", 0), None, None)] + [(("x", x), ("x", x - 1), "w1") for x in range(1, 9)] + [(("x", x), ("x", x - 256), "w256") for x in (256, 258, 260, 262, 264, 516, 520, 772, 776, 1032, 1288, 1544, 1800)]
        ys = [(("y", 1), None, None)] + [(("y", c), ("y", c - 1), "w8") for c in range(2, 32)]
        ny, nx = e.o.get("ky", 8), e.o.get("kx", 5)
        batches = [ys[len(ys) * k // ny: len(ys) * (k + 1) // ny] for k in range(ny)] + [xs[len(xs) * k // nx: len(xs) * (k + 1) // nx] for k in range(nx)]
        last = {}
        for b, its in enumerate(batches):
            for d, s, w in its:
                last[d] = max(last.get(d, b), b)
                if s: last[s] = b
        reg = {"w1": W1, "w8": W8, "w256": W256, ("y", 1): W8, ("x", 0): 44}
        free = [46, 48, 50, 52, 54, 56, 62, 168, 170, 172, 174, 144]
        out = []
        for b, its in enumerate(batches):
            mul, cvt, st = [], [], []
            for k, (d, s, w) in enumerate(its):
                if s:
                    reg[d] = free.pop(0)
                    mul += e.cmul(reg[d], reg[s], reg[w], 58 + 2 * (k & 1))
                if d != ("x", 8):
                    o = 156 + len(cvt)
                    cvt.append(f"v_cvt_pk_bf16_f32 v{o}, v{reg[d]}, v{reg[d]+1}")
                    for r in ([d[1]] if d[0] == "y" else [32 + n for n, x in enumerate(rows) if x == d[1]]):
                        st.append(f"ds_write_addtid_b32 v{o} offset:{CH0 + KTS * r}")
            for d in [d for d, l in last.items() if l == b and d not in (("y", 1), ("x", 0))]: free.append(reg[d])
            out.append((mk(mul), mk(cvt), mk(st)))
        return out, ny

    def kgen(self):
        e = self
        e(f"""v_lshlrev_b32 v32, 16, v32""")
        e(f"""
            v_mul_f32 v32, {fx(LOG2E)}, v32
            v_exp_f32 v32, v32
            v_lshlrev_b32 v33, 16, v33
            v_cvt_pk_bf16_f32 v32, v32, v32
            v_lshlrev_b32 v32, 16, v32
            v_mul_f32 v34, {fx(LOG2E)}, v32
            v_mul_f32 v35, 0.15915494, v32
            v_readfirstlane_b32 s58, v32
            v_readfirstlane_b32 s56, v34
            v_readfirstlane_b32 s57, v35
            s_mov_b32 s55, s70""")
        drip = []
        def wdrip():
            w = e.w1_pack_issue(); drip.extend(w[k:k + 4] for k in range(0, 16, 4))
        if e.o.get("wl", 1) == 1: wdrip()
        def pub():
            if e.o.get("wl", 1) == 2: wdrip()
            return e.ln_publish()
        def gather():
            a, b = e.gather(); drip.extend(b)
            for k, i in enumerate(e.table_loads(range(9, 13))): drip[-4 + k] = drip[-4 + k][:3] + [i] + drip[-4 + k][3:]
            return a
        def pack():
            drip.extend([i] for i in e.w1_pack_stores())
            return e.w1_pack_perm() + e.stamp(9)
        hooks = {e.o.get("pub", 9): pub,
                 e.o.get("p1i", 24): lambda: e.poll_issue(e.vPOLL, 18),
                 e.o.get("pk", 17): pack,
                 e.o.get("p1c", 30): gather,
                 e.o.get("pw", 32): lambda: e.w1_publish(163) + e.stamp(12)}
        fix, e.late = e.conv_fix()
        hooks[e.o.get("fix", 6)] = lambda: fix
        assert len(hooks) == 6 and e.o.get("pk", 17) < e.o.get("p1c", 30)
        xrd = lambda: mk([f"ds_read_b128 v[{64+8*ks}:{67+8*ks}], v{e.vKTX} offset:{32*ks + 32*KTS}" for ks in range(8)])
        yrd = lambda: mk([f"ds_read_b128 v[{68+8*ks}:{71+8*ks}], v{e.vKTY} offset:{32*ks}" for ks in range(8)])
        mfs = lambda j: [I(f"v_mfma_f32_32x32x16_bf16 v[128:143], v[{64+8*ks}:{67+8*ks}], v[{68+8*ks}:{71+8*ks}], " + ("0" if j == 0 and ks == 0 else "v[128:143]")) for ks in range(8)]
        n, mf, xr, w1 = 0, [], [], e.w1_loads()
        e.w1_early = 0
        for j in range(3):
            e(e.kgen_setup(j))
            pend, yr = [], yrd()
            tb, ny = e.kgen_tables()
            for b, (mul, cvt, st) in enumerate(tb):
                e(mul)
                for _ in range(-(-len(mf) // (ny + 1 - b)) if b <= ny else 0): e(mf.pop(0))
                e(pend)
                for _ in range(min(len(xr), -(-8 // ny))): e(xr.pop(0))
                if b >= ny:
                    assert not mf and not xr
                    for _ in range(-(-len(yr) // (len(tb) - b))): e(yr.pop(0))
                if drip: e(drip.pop(0))
                if n in hooks: e(hooks[n]())
                e(cvt)
                pend = st; n += 1
            e(pend)
            xr, mf = xrd(), mfs(j)
            for _ in range(2 if j < 2 else 8): e(xr.pop(0))
        e(f"ds_write_b128 v{e.vZB}, v[190:193]")
        assert not drip
        e(e.stamp(11))
        fwi = mk(f"s_mov_b32 s70, {FW - F1}") + e.poll_issue(e.vPOLL, 234, "s70")
        if e.o.get("fwi", 1) == 0: e(fwi)
        e(e.late[:16])
        for k, m in enumerate(mf):
            e(m); e(e.late[16 + 5 * k: 21 + 5 * k])
        assert len(e.late) <= 56
        R = 128
        e(f"""v_cmp_eq_u32 vcc, 0, v1
            s_mov_b32 s71, 0xffff
            v_cndmask_b32 v33, 0, v33, vcc
            v_add_f32 v{R}, v{R}, v33
            v_cvt_pk_bf16_f32 v20, v{R}, v{R+1}
            v_cvt_pk_bf16_f32 v21, v{R+2}, v{R+3}
            ds_write_b64 v{e.vKNW}, v[20:21] offset:{KN + 16}""")
        e(e.w4_reads(0))
        e(f"""v_cvt_pk_bf16_f32 v22, v{R+4}, v{R+4}
            v_cvt_pk_bf16_f32 v23, v{R+5}, v{R+6}
            v_cvt_pk_bf16_f32 v24, v{R+6}, v{R+6}
            v_cvt_pk_bf16_f32 v25, v{R+6}, 0
            v_cvt_pk_bf16_f32 v26, 0, v{R+9}
            v_cvt_pk_bf16_f32 v27, v{R+9}, 0
            v_cvt_pk_bf16_f32 v28, v{R+9}, v{R+8}
            v_cvt_pk_bf16_f32 v29, v{R+10}, v{R+7}
            ds_write_b64 v{e.vKNW}, v[22:23] offset:{KN + 16 + 512}
            ds_write_b32 v{e.vK2W}, v28 offset:{K2 + 508}
            ds_write_b16 v{e.vK3W}, v29 offset:{K3 + 254}
            ds_write_b16_d16_hi v{e.vK3W}, v29 offset:{K3 + 190}
            s_mov_b32 exec_lo, 0
            s_mov_b32 exec_hi, 0x80000000
            ds_write_b64 v{e.vKNW}, v[24:25] offset:{KN + 16 + 1024 - 504}
            ds_write2_b32 v{e.vK3W}, v26, v27 offset0:0 offset1:1
            s_mov_b64 exec, -1""".replace(f"ds_write2_b32 v{e.vK3W}, v26, v27 offset0:0 offset1:1", f"ds_write_b32 v{e.vKNW}, v26 offset:{KN + 16 + 1044 - 504}\nds_write_b32 v{e.vKNW}, v27 offset:{KN + 16 + 1048 - 504}"))
        if e.o.get("pw", 32) == 99: e(e.w1_publish(163) + e.stamp(12))
        e(e.w4_build(0))
        if e.o.get("fwi", 1) == 1: e(fwi)
        e.fwi = fwi
        e(self.stamp(5))

    W4S, W4O = 92, 128
    def w4_reads(self, rnd):
        e = self
        a, off = (e.vW4S, KN + 8 + 512 * rnd) if rnd < 2 else (e.vW4S3, KN)
        r = e.W4S + 4 * (rnd & 1)
        return mk(f"ds_read_b64 v[{r}:{r+1}], v{a} offset:{off}\nds_read_b64 v[{r+2}:{r+3}], v{a} offset:{off + 8}", tag=f"w4r{rnd}")
    def w4_build(self, rnd):
        e = self
        p0, p1, o0, o1 = (e.W4S + 4 * (rnd & 1) + i for i in range(4))
        d = e.W4O
        a, off = (e.vW4D, W4 + 128 + 1024 * rnd) if rnd < 2 else (e.vW4D3, W4)
        return mk(f"""v_bfi_b32 v{d}, s71, v{o0}, v{p1}
            v_bfi_b32 v{d+1}, s71, v{p1}, v{p0}
            v_alignbit_b32 v{d+2}, v{o0}, v{o0}, 16
            v_alignbit_b32 v{d+3}, v{p1}, v{p1}, 16
            v_bfi_b32 v{d+4}, s71, v{o1}, v{o0}
            v_mov_b32 v{d+5}, v{d}
            v_alignbit_b32 v{d+6}, v{o1}, v{o1}, 16
            v_mov_b32 v{d+7}, v{d+2}
            ds_write_b128 v{a}, v[{d}:{d+3}] offset:{off}
            ds_write_b128 v{a}, v[{d+4}:{d+7}] offset:{off + 16}""")

    def gather(self):
        e = self
        out = e.stamp(10) + e.poll_check(e.vPOLL, 18) + e.stamp(4)
        items = []
        for lds, va in ((U0 + 4096, e.vDMA), (X0, 176)):
            for k in range(4):
                items.append(mk(f"s_add_u32 m0, s59, {lds + 1024 * k}") + mk(f"global_load_lds_dwordx4 v{va}, s[34:35] sc1", tag="u") +
                             mk("s_mov_b32 m0, s70") + (mk(f"v_add_u32 v{va}, {4 * UP}, v{va}") if k < 3 else []))
        return out, items

    def w1_loads(self):
        out = []
        for n in range(60):
            gq, k = n // 15, n % 15
            b = 4 + 4 * gq + 2 * (k // 8)
            out.append(I(f"global_load_dwordx4 a[{4*n}:{4*n+3}], v{self.vL16}, s[{b}:{b+1}] offset:{1024 * (k % 8) - 4096} sc1", tag="w1"))
        return out

    def ffn_ids(self):
        return mk(f"""s_and_b32 s62, s{sCLS}, 1
            s_lshl_b32 s62, s62, 3
            s_lshr_b32 s48, s{sIDX}, 2
            s_add_u32 s62, s62, s48
            s_lshr_b32 s63, s{sCLS}, 1
            s_and_b32 s48, s{sIDX}, 3
            s_lshl2_add_u32 s63, s63, s48
            s_lshl2_add_u32 s60, s63, s{sW}
            s_mul_i32 s60, s60, 61440
            s_add_u32 s60, s60, {W1P + 4096}
            s_add_u32 s39, s{sW}, {"s62" if self.o.get("rot", 0) else 0}
            s_and_b32 s39, s39, 3""") + [i for gq in range(4) for i in mk(f"""s_add_u32 s48, s39, {gq}
            s_and_b32 s48, s48, 3
            s_mul_i32 s48, s48, 15360
            s_add_u32 s48, s48, s60
            s_add_u32 s{4+4*gq}, s34, s48
            s_addc_u32 s{5+4*gq}, s35, 0
            s_add_u32 s{6+4*gq}, s{4+4*gq}, 8192
            s_addc_u32 s{7+4*gq}, s{5+4*gq}, 0""")]

    def fw_poll_addr(self, va):
        return mk(f"""s_lshl_b32 s48, s{sCLS}, 12
            s_add_u32 s48, s48, {FW + 160 * 16}
            v_lshl_add_u32 v{va}, v1, 4, s48
            v_add_u32 v{va+1}, 512, v{va}""")

    def conv(self):
        e = self; o = e.o
        ACC = lambda t, mt: 144 + 8 * t + 4 * mt
        BR, AR, XB, XD, XC, K2F, K3F, AX, XU = 2, 50, 100, 108, 124, 68, 128, 100, 180
        main = []
        def mf(acc, A, B, need, zero=False):
            main.append(I(f"v_mfma_f32_16x16x32_bf16 v[{acc}:{acc+3}], v[{A}:{A+3}], v[{B}:{B+3}], " + ("0" if zero else f"v[{acc}:{acc+3}]"), need=need))
        def rd(txt, reg, n, tag, grp):
            return I(txt, tag=grp, put={("v", reg + i): tag for i in range(n)})
        def nd(*items): return {("v", reg + i): tag for reg, n, tag in items for i in range(n)}
        start, reads, pos = [], [], {}
        boxes = [(T, b) for T in range(6) for b in range(4) if not (b >= 2 and T >= 4)]
        arr = (A5, A3, A9, A7)
        nbox, box_at = 0, []
        early = o.get("t0e", 1)
        J = list(range(4, 16)) + [2, 3, 0, 1] if early else list(range(2, 16)) + [0, 1]
        J2 = [0, 1, 2, 3, 12, 13, 14, 15]
        for s, j in enumerate(J):
            grp = f"s{s}"
            start.append(len(main)); R = []
            b0 = BR + 16 * (s % 3)
            steps = [(0, 4 * j, (0, 1))]
            if j == 0: steps += [(1, 64, (0, 1)), (2, 76, (0, 1))]
            if j == 1: steps += [(1, 68, (0,)), (2, 80, (0,))]
            def bread(reg, jj, i):
                return rd(f"ds_read_b128 v[{reg}:{reg+3}], v{e.vUB + (jj & 7)} offset:{4096 * i + 2048 - 2048 * (jj >> 3)}", reg, 4, ("B", jj, i), grp)
            def areads(a0, o0, jj, iF, mts):
                base = W4 + 128 + 32 * o0
                return [rd(f"ds_read_b64 v[{a0+k}:{a0+k+1}], v{e.vAB} offset:{off}", a0 + k, 2, ("A", jj, iF, k), grp)
                        for k, off in ((0, base + W4P), (2, base), (4, base + W4P - 32)) if not (k == 0 and mts == (0,))]
            def mm(t, mt, a0, jj, iF, breg):
                A = a0 + 2 - 2 * mt
                pos.setdefault((t, mt), []).append(len(main))
                mf(ACC(t, mt), A, breg, nd((A, 2, ("A", jj, iF, 2 - 2 * mt)), (A + 2, 2, ("A", jj, iF, 4 - 2 * mt)), (breg, 4, ("B", jj, t - iF))))
            skip0 = early and s >= 8
            for i in range(4):
                if i or not skip0 or j < 2: R.append(bread(b0 + 4 * i, j, i))
            for iF, o0, mts in steps:
                a0 = AR + 6 * (s % 3) if iF == 0 else AX - 6 + 6 * iF + 12 * j
                ar = areads(a0, o0, j, iF, mts)
                R = ar + R if iF == 0 else R + ar
                for t in range(iF, 4):
                    if t == 0 and skip0: continue
                    for mt in mts: mm(t, mt, a0, j, iF, b0 + 4 * (t - iF))
                    if t == 0 and early:
                        a2, b2 = 68 + 6 * (s % 3), (86, 136, 140)[s % 3]
                        R = R[:4] + areads(a2, 4 * J2[s], J2[s], 0, (0, 1)) + [bread(b2, J2[s], 0)] + R[4:]
                        for mt in range(2): mm(0, mt, a2, J2[s], 0, b2)
            for _ in range(min(2, 20 - nbox)):
                T, b = boxes[nbox]
                xb = XB + 4 * (T & 1); xd = XD + 4 * (nbox & 3)
                if b == 0:
                    R.append(rd(f"ds_read_b128 v[{xb}:{xb+3}], v{e.vBB} offset:{2048 * T}", xb, 4, ("XB", T), grp if T < 5 else "xb5"))
                mf(xd, e.vBAND + 4 * b, xb, nd((xb, 4, ("XB", T))), zero=True)
                xc = XC + 2 * (nbox & 1)
                main[-1].put = nd((xd, 4, ("XD", nbox)))
                box_at.append((len(main) - 1, [
                    I(f"v_cvt_pk_bf16_f32 v{xc}, v{xd}, v{xd+1}", need=nd((xd, 2, ("XD", nbox))), put=nd((xc, 1, ("XC", nbox)))),
                    I(f"v_cvt_pk_bf16_f32 v{xc+1}, v{xd+2}, v{xd+3}", need=nd((xd + 2, 2, ("XD", nbox))), put=nd((xc + 1, 1, ("XC", nbox)))),
                    I(f"ds_write_b64 v{e.vBW}, v[{xc}:{xc+1}] offset:{arr[b] + 128 * T}", need=nd((xc, 2, ("XC", nbox))))]))
                nbox += 1
            reads.append(R)
        far = [("2", 0), ("2", 2), ("3", 0), ("2", 4), ("2", 6), ("2", 8), ("2", 10), ("3", 2)]
        kreads = []
        for phi in range(1, 9):
            kreads.append(rd(f"ds_read_b128 v[{K2F+4*(phi-1)}:{K2F+4*(phi-1)+3}], v{e.vK2A} offset:{K2 + 752 - 64 * phi}", K2F + 4 * (phi - 1), 4, ("K2", phi), None))
        for phi in range(3, 7):
            for k in range(2):
                r_ = K3F + 4 * (phi - 3) + 2 * k
                kreads.append(rd(f"ds_read_b64 v[{r_}:{r_+1}], v{e.vK3A} offset:{K3 + 504 - 64 * phi + 8 * k}", r_, 2, ("K3", phi), None))
        for s, (reg, k0) in enumerate(far, 16):
            start.append(len(main)); R = []
            b0 = BR + 16 * (s % 3)
            for kk in range(2):
                ks = k0 + kk
                for mt in range(2):
                    a0 = b0 + 8 * kk + 4 * mt
                    va, st, hf = (e.vR2 + mt, 64, 8) if reg == "2" else (e.vR3 + mt, 128, 16)
                    for k in range(2):
                        R.append(rd(f"ds_read_b64_tr_b16 v[{a0+2*k}:{a0+2*k+1}], v{va} offset:{st * ks + hf * k}", a0 + 2 * k, 2, ("F", reg, ks, mt), f"s{s}"))
                    for t in range(1, 4):
                        phi = 4 * t - ks if reg == "2" else 2 * t - ks
                        if (1 <= phi <= 8 if reg == "2" else 3 <= phi <= 6):
                            kf = K2F + 4 * (phi - 1) if reg == "2" else K3F + 4 * (phi - 3)
                            pos[t, mt].append(len(main))
                            mf(ACC(t, mt), a0, kf, nd((a0, 4, ("F", reg, ks, mt)), (kf, 4, ("K" + reg, phi))))
            reads.append(R)
        ns = len(reads); start.append(len(main))
        xb5 = [r for r in reads[9] if r.tag == "xb5"]; reads[9] = [r for r in reads[9] if r.tag != "xb5"]
        g = Sched(main)
        SO = X0 - U0 - 2048
        g.pre = [I(f"ds_read_b128 v[{ACC(t, mt)}:{ACC(t, mt)+3}], v{e.vST + 2 + mt} offset:{SO + 4096 * t}", tag="s0") for t in range(4) for mt in range(2)]
        g.pre = reads[0] + g.pre + reads[1] + e.w4_reads(1) + e.w4_reads(2) + mk("@lgkm s0")
        w41 = g.add(e.w4_build(1), 2, start[2 if early else 3] - 1, prio=1)
        w42 = g.add(e.w4_build(2), 2, start[9], after=[(w41[-1], 0)])
        for s in range(ns - 2):
            g.add(reads[s + 2], start[s], start[s + 1] + (2 if s < 19 else 0), prio=2, pace=True)
            g.add(mk(f"@lgkm s{s+1}"), start[s + 1] - 1, start[s + 1] - 1, prio=3)
        g.add(mk(f"@lgkm s{ns-1}"), start[ns - 1] - 1, start[ns - 1] - 1, prio=3)
        g.add(xb5, start[8], start[8] + 3, prio=2)
        prev = [None, None]
        for n, (k, ins) in enumerate(box_at):
            prev[n & 1] = g.add(ins, k + 3, k + 14, after=[(prev[n & 1], 0)] if prev[n & 1] else None, prio=1)[-1]
        g.add(kreads, start[10], start[15], after=[(w42[-1], 0)])
        last = None
        for t in range(4):
            s = o.get("xs", 7) + 2 * t
            chain = lambda mt, k: pos[t, mt][k]
            if early and t == 0:
                s = o.get("xs0", 4); chain = lambda mt, k, last=False: pos[0, mt][2 * k + 1]
            r = g.add([I(f"ds_read_b128 v[{XU}:{XU+3}], v{e.vUB} offset:{2048 + 4096 * t}", tag=f"xr{t}")] +
                      [I(f"ds_read_b128 v[{XU+4+4*mt}:{XU+7+4*mt}], v{e.vST + mt} offset:{SO + 4096 * t}", tag=f"xr{t}") for mt in range(2)],
                      0, chain(0, s - 1) - 6, after=[(last, 0)] if last else None, prio=1)
            for mt in range(2):
                p = chain(mt, s - 1 + mt); q = pos[t, mt][pos[t, mt].index(p) + 1]
                un = g.add(mk(([f"@lgkm xr{t}"] if mt == 0 else []) + [f"v_lshlrev_b32 v{XU+12+2*k}, 16, v{XU+2*mt+k}\nv_and_b32 v{XU+13+2*k}, 0xffff0000, v{XU+2*mt+k}" for k in range(2)]),
                           0, p + 2, after=[(r[-1], 5)] if mt == 0 else [(last, 0)])
                last = g.add(mk([f"v_fmac_f32 v{ACC(t, mt)+k}, v{XU+4+4*mt+k}, v{XU+12+k}" for k in range(4)]), p + 3, q - 2, after=[(un[-1], 0)], prio=2)[-1]
        def hstore(t):
            oo = 86 if early and t == 0 else XU + 4 * t
            return mk([f"s_mov_b32 s68, {HT + 16 * 40960 * t}"] + [f"v_cvt_pk_bf16_f32 v{oo+k}, v{ACC(t, k >> 1) + 2 * (k & 1)}, v{ACC(t, k >> 1) + 2 * (k & 1) + 1}" for k in range(4)]) + \
                mk(f"buffer_store_dwordx4 v[{oo}:{oo+3}], v{e.vHST}, {SRD}, s68 offen sc1", tag=f"hs{min(t, 2)}")
        for t in range(3):
            p = max(pos[t, 0][-1], pos[t, 1][-1])
            st = g.add(hstore(t), p + 3, p + 8, after=[(last, 0)] if t or not early else None, prio=2)[-1]
            if t or not early: last = st
            if t == 0:
                g.add(mk(f"""s_add_u32 s48, s69, {F2}
                    @vm hs0
                    s_barrier
                    buffer_store_dwordx2 v[{e.vTAG}:{e.vTAG+1}], v199, {SRD}, s48 offen sc1""") + e.stamp(8), 0, len(main) - 1, after=[(st, o.get("sga", 44))], prio=2)
        w1 = e.w1_loads(); n1 = o.get("w1n", 39)
        fwc = o.get("fwc", 14)
        chk = e.poll_check(e.vPOLL, 234, "s70")
        if o.get("fwi", 1) > 1: g.add(e.fwi, o.get("fwi", 1), o.get("fwi", 1) + 2, prio=2)
        if fwc >= 0:
            c = g.add([chk[0], chk[1:], I("s_barrier")], fwc, fwc + 4, prio=2)
        ids, blk = e.ffn_ids(), []
        for i in ids:
            if i.mn == "s_addc_u32": blk[-1] = [blk[-1], i]
            else: blk.append(i)
        sid = g.add(blk[:18], 0, fwc + 4)
        sid2 = g.add(blk[18:], 0, fwc + 30, after=[(sid[-1], 0)])
        wl = g.add(w1[:n1], fwc + 5, start[o.get("w1e", 22)], pace=True, win=3, after=[(c[-1], 0), (sid[-1], 1)])
        wl[15]["after"] = [(sid2[-1], 1)]
        if fwc < 0: e(chk)
        e("@vm u\ns_barrier")
        e(e.stamp(6))
        e.pre_conv = list(e.p); e.conv_stream = g.run(); e.conv_steps = (main, start)
        e(e.conv_stream)
        e(e.stamp(7))
        e(hstore(3))
        if e.stop == "conv": return
        import gen_ffn as F
        sa, sb = F.setup(e)
        n2 = F.w1_before(e)
        e(sa)
        g = Sched(F.colsums()[:n2], dense=True)
        g.add(sb, 0, n2 - 1)
        if n2 > n1: g.add(w1[n1:n2], 0, 4 * (n2 - n1), pace=True, prio=1)
        g.add(e.poll_issue(F.vPF, F.PD), o.get("f2i", 8), o.get("f2i", 8), prio=2)
        g.add(mk(f"""s_mov_b32 s48, {F2C - F2B}
            @vm hs1
            s_barrier
            buffer_store_dwordx2 v[{e.vTAG}:{e.vTAG+1}], v{e.vSIG}, {SRD}, s48 offen sc1"""), o.get("sgc", 8), o.get("sgc", 8) + 4, prio=2)
        assert o.get("f2c", 28) > o.get("sgc", 8) + 4
        st = g.run()
        k = [n for n, i in enumerate(st) if i.kind == "mfma"][o.get("f2c", 28)]
        e(st[:k]); e(e.stamp(13))
        e(e.poll_check(F.vPF, F.PD)); e(e.stamp(1) if o.get("fst") else [])
        rest, c0 = st[k:], F.chunk(0)
        while c0:
            e(c0.pop(0))
            if e.p[-1].kind == "vm":
                while rest:
                    e(rest.pop(0))
                    if rest and rest[0].kind == "mfma":
                        e(rest.pop(0)); break
        e(rest)
        e(f"""@vm hs2
            s_barrier
            buffer_store_dwordx2 v[{e.vTAG}:{e.vTAG+1}], v198, {SRD}, 0 offen sc1""")

    def w1_pack_loads(self):
        out = mk(f"""s_lshl2_add_u32 s71, s2, s{sW}
            s_min_u32 s71, s71, 959
            s_mul_i32 s72, s71, 5462
            s_lshr_b32 s72, s72, 16
            s_mul_i32 s48, s72, 12
            s_sub_u32 s71, s71, s48
            s_mul_i32 s48, s72, {8 * 3072}
            s_lshl_b32 s49, s71, 8
            s_add_u32 s48, s48, s49
            s_add_u32 s48, s48, 3072
            v_lshl_add_u32 v196, v6, 2, s48
            v_mov_b32 v197, 0
            v_lshl_add_u64 v[194:195], v[196:197], 0, s[26:27]
            s_mov_b32 exec_hi, 0
            v_lshl_add_u64 v[194:195], v[196:197], 0, s[24:25]
            s_mov_b32 exec_hi, -1
            s_mov_b32 s48, 9216
            s_mov_b32 s49, 0
            v_lshl_add_u64 v[196:197], v[194:195], 0, s[48:49]
            v_lshl_add_u64 v[198:199], v[196:197], 0, s[48:49]""")
        return out
    def w1_pack_issue(self):
        out = []
        for j in range(8):
            for hf in range(2):
                a = 194 + 2 * (j // 3)
                out += mk(f"global_load_dword v{236+8*hf+j}, v[{a}:{a+1}], off offset:{3072 * (j % 3 - 1) + 128 * hf}")
        return out
    def w1_pack_addr(self):
        out = mk(f"""s_lshl_b32 s48, s71, 4
            v_bfe_u32 v160, v1, 3, 2
            v_lshl_add_u32 v160, v160, 1, s48
            s_lshr_b32 s48, s72, 2
            s_mul_i32 s48, s48, 3072
            s_and_b32 s49, s72, 3
            s_lshl_b32 s49, s49, 8
            s_add_u32 s48, s48, s49
            s_add_u32 s48, s48, {W1P}
            v_and_b32 v161, 1, v1
            v_lshl_add_u32 v161, v161, 4, s48
            v_bfe_u32 v162, v1, 1, 2
            v_lshl_add_u32 v161, v162, 6, v161
            v_and_b32 v162, 32, v1
            v_add_u32 v161, v161, v162
            s_mov_b32 s49, 57
            s_mov_b32 s72, 0x05040100
            s_mov_b32 s73, 0x07060302""")
        for t in range(4):
            out += mk(f"""v_mul_u32_u24 v162, 21846, v160
                v_lshrrev_b32 v162, 16, v162
                v_mad_u32_u24 v162, v162, s49, v160
                v_lshl_add_u32 v{164+t}, v162, 10, v161""")
            if t < 3: out += mk(f"v_add_u32 v160, {7 if t == 1 else 1}, v160")
        return out
    def w1_pack_perm(self):
        return mk([f"v_perm_b32 v{2+4*t+jj}, v{236+8*(t>>1)+2*jj+1}, v{236+8*(t>>1)+2*jj}, s{72+(t&1)}" for t in range(4) for jj in range(4)])
    def w1_pack_stores(self):
        return mk([f"global_store_dwordx4 v{164+t}, v[{2+4*t}:{5+4*t}], s[34:35] sc1" for t in range(4)], tag="w1p")
    def w1_pack(self):
        return self.w1_pack_perm() + self.w1_pack_stores() + self.stamp(9)
    def w1_publish(self, va=None):
        return mk("@vm w1p\ns_barrier") + self.signal_all(FW, va)

    def w2_consts(self):
        e = self
        e(f"""s_sub_u32 s50, s2, 160
            v_lshlrev_b32 v{e.vL16}, 4, v1
            s_lshr_b32 s55, s50, 1
            s_and_b32 s56, s50, 1
            s_mul_i32 s48, s55, {32 * 1280}
            s_mul_i32 s49, s56, 640
            s_add_u32 s48, s48, s49
            s_mul_i32 s49, s{sW}, {8 * 1280}
            s_add_u32 s48, s48, s49
            s_lshl2_add_u32 s56, s56, s{sW}
            s_mul_i32 s56, s56, 48
            s_add_u32 s55, s55, s56
            s_mul_i32 s56, s{sW}, 5120""")
        for n in range(5):
            e(f"""v_add_u32 v20, {64 * n}, v1
                v_mul_u32_u24 v21, 1639, v20
                v_lshrrev_b32 v21, 16, v21
                v_mul_u32_u24 v21, 640, v21
                v_lshl_add_u32 v21, v20, 4, v21
                v_add_u32 v{24+n}, s48, v21""")
        e(f"""v_bfe_u32 v20, v1, 2, 2
            v_bfe_u32 v21, v1, 4, 1
            v_lshl_add_u32 v20, v20, 1, v21
            v_lshrrev_b32 v21, 5, v1
            v_lshl_add_u32 v20, v21, 4, v20
            v_mul_u32_u24 v20, 640, v20
            v_and_b32 v21, 3, v1
            v_lshl_add_u32 v20, v21, 3, v20
            s_mul_i32 s48, s{sW}, 160
            v_add_u32 v20, s48, v20""")

    def helper_main(self):
        e = self
        wl, w2l = e.o.get("wl", 1), e.o.get("w2l", 3)
        dma = [i for n in range(5) for i in mk(f"s_add_u32 m0, s56, {1024 * n}") + mk(f"global_load_lds_dwordx4 v{24+n}, s[28:29]", tag="w2l")]
        e.x_loads(); e.pretouch(); e.w2_consts()
        if w2l == 0: e(dma)
        e(e.w1_pack_loads()); e.ln_consts()
        ln = e.ln1()
        e(ln[:20])
        if wl == 0: e(e.w1_pack_issue())
        if w2l == 1: e(dma)
        e(ln[20:])
        if wl == 1: e(e.w1_pack_issue())
        e(e.ln_publish())
        if wl == 2: e(e.w1_pack_issue())
        if w2l == 2: e(dma)
        if e.o.get("hd", 1): e("s_waitcnt vmcnt(0)")
        e(e.w1_pack_addr()); e(e.w1_pack_perm())
        e(e.ffn_ids())
        e(f"""s_lshl_b32 s48, s{sCLS}, 14
            s_add_u32 s48, s48, {FW}
            v_lshl_add_u32 v{e.vPOLL}, v0, 6, s48
            s_mul_i32 s58, s55, 5120
            s_add_u32 s58, s58, {W2P}
            s_add_u32 s59, s58, 4096""")
        e(e.w1_pack_stores()); e(e.stamp(9))
        w2s = mk([f"buffer_store_dwordx4 v[{32+4*t}:{35+4*t}], v{e.vL16}, {SRD}, s{58 + t // 4} offen offset:{1024 * (t & 3)} sc1" for t in range(5)], tag="w2p")
        e(e.w1_publish())
        e(e.stamp(4))
        if w2l == 3: e(dma); e("@vm w2l")
        e(e.stamp(10))
        e(e.hint_wait(FW))
        e(e.poll_issue(e.vPOLL, 192))
        for t in range(5):
            e(f"ds_read_b64_tr_b16 v[{32+4*t}:{33+4*t}], v20 offset:{32*t}\nds_read_b64_tr_b16 v[{34+4*t}:{35+4*t}], v20 offset:{32*t + 8*640}")
        e(e.poll_check(e.vPOLL, 192, slp=8))
        e("s_barrier")
        e(e.stamp(6))
        import gen_ffn as F
        w1 = e.w1_loads()[:F.w1_before(e)]; a, b = e.o.get("h1", 30), e.o.get("h2", 60)
        e(w1[:a]); e(w2s); e(w1[a:b])
        e(w1[b:])
        e("@vm w2p")
        e(e.stamp(5))
        if e.stop == "conv": return
        import gen_ffn as F
        sa, sb = F.setup(e)
        e(sa); e(sb); e(F.colsums()[:F.w1_before(e)])
        e(e.stamp(7))
        e(e.hint_wait(F2))
        e(e.stamp(13))
        e(e.poll_issue(F.vPF, F.PD)); e(e.poll_check(F.vPF, F.PD)); e(e.stamp(1) if e.o.get("fst") else [])
        e(F.chunk(0))
        e(e.signal_all(F2B))

    def finish_stamps(self):
        e = self
        if not e.stamps: return
        if e.o.get("nost"): e("s_waitcnt vmcnt(0)\ns_memrealtime s[100:101]")
        e(f"""s_waitcnt lgkmcnt(0)
            s_lshl2_add_u32 s48, s2, s{sW}
            s_lshl_b32 s48, s48, 6
            s_add_u32 s48, s48, {DBG}
            v_mov_b32 v2, s48""")
        for k in range(14):
            e(f"v_mov_b32 v3, s{74 + 2 * k}\nbuffer_store_dword v3, v2, {SRD}, 0 offen offset:{4 * k}")

    def build(self):
        e = self
        e.prologue()
        e(f"s_cmp_ge_u32 s{sIDX}, 20\ns_cbranch_scc1 L_helper")
        head = list(e.p)
        e.x_loads(); e.conv_param_loads(); e.pretouch(); e(e.w1_pack_loads()); e.ln_consts(); e(e.w1_pack_addr()); e(e.hint_setup(163, 0)); e.conv_consts_a()
        tl = e.table_loads([6, 2, 8, 0, 1, 3, 4, 5, 7])
        ln = e.ln1()
        k = e.o.get("tbl", 20)
        e(ln[:k]); e(tl)
        if e.o.get("wl", 1) == 0: e(e.w1_pack_issue())
        e(ln[k:])
        e.kgen(); e.conv()
        e("s_branch L_join")
        a, sa = finalize(e.p)
        e.p = list(head); e("L_helper:")
        e.helper_main()
        b, sb = finalize(e.p)
        k = next(n for n, i in enumerate(b) if i.text == "L_helper:")
        e.p = []
        e("L_join:")
        if e.stop != "conv":
            import gen_ffn
            e.in_ffn = True
            gen_ffn.ffn(e)
        e.finish_stamps()
        c, sc = finalize(e.p)
        self.stats = (sa, sb, sc)
        allp = a + b[k:] + c
        if e.o.get("al", 0): self.stats += (align8(allp),)
        body = "\n".join(("" if i.kind == "meta" else "    ") + i.text for i in allp if i.kind != "pseudo")
        return f"""; @launch grid=(256,1,1) block=(256,1,1) lds={LDS_BYTES}
; One persistent workgroup per CU. Hand-offs between workgroups go through write-through stores into d_ws and
.amdgcn_target "amdgcn-amd-amdhsa--gfx950"
.text
.globl {NAME}_kernel
.p2align 8
.type {NAME}_kernel,@function
{NAME}_kernel:
{body}
L_end:
    s_endpgm
{chr(10).join(self.cold)}
.p2align 7
L_table:
{self.lane_table()}
L_code_end:
.section .rodata,"a"
.p2align 6
.amdhsa_kernel {NAME}_kernel
  .amdhsa_next_free_vgpr 512
  .amdhsa_next_free_sgpr 102
  .amdhsa_accum_offset 256
  .amdhsa_group_segment_fixed_size 0
  .amdhsa_kernarg_size 128
  .amdhsa_user_sgpr_count 2
  .amdhsa_user_sgpr_kernarg_segment_ptr 1
  .amdhsa_system_sgpr_workgroup_id_x 1
.end_amdhsa_kernel
"""

if __name__ == "__main__":
    opt = {a.split("=")[0]: int(a.split("=")[1]) for a in sys.argv[4:]}
    k = K(stop=sys.argv[2] if len(sys.argv) > 2 and sys.argv[2] != "-" else None, stamps=len(sys.argv) > 3 and sys.argv[3] == "stamps", opt=opt)
    open(sys.argv[1], "w").write(k.build())
    print(k.stats, getattr(k, 'models', None))
```

```python
import re

REG = re.compile(r"^-?\|?(?:abs\()?([vas])(?:(\d+)|\[(\d+):(\d+)\])\)?\|?$")
TRANS = re.compile(r"^v_(exp|log|rcp|rsq|sqrt|sin|cos)_f32")

def regs_of(tok):
    tok = tok.strip()
    if tok in ("vcc", "exec"):
        return [(tok, 0)]
    if tok == "m0":
        return [("m0", 0)]
    m = REG.match(tok)
    if not m:
        return []
    if m.group(2) is not None:
        return [(m.group(1), int(m.group(2)))]
    return [(m.group(1), i) for i in range(int(m.group(3)), int(m.group(4)) + 1)]

class I:
    def __init__(self, text, tag=None, opt=False, put=None, need=None):
        self.text = text.strip()
        self.tag, self.opt, self.put, self.need = tag, opt, put, need
        self.defs, self.uses = set(), set()
        self.kind = "other"
        t = self.text
        if t.endswith(":") or t.startswith(".") or t.startswith(";") or not t:
            self.kind, self.mn = "meta", ""
            return
        if t.startswith("@"):
            self.kind, self.mn = "pseudo", t.split()[0]
            return
        mn, _, rest = t.partition(" ")
        self.mn = mn
        ops = [o.strip() for o in re.split(r",(?![^\[]*\])", rest)] if rest else []
        mods = ""
        if ops:
            last = ops[-1].split(None, 1)
            if len(last) == 2 and not last[0].endswith(":"):
                ops[-1], mods = last[0], last[1]
        self.ops, self.mods = ops, mods
        R = [regs_of(o) for o in ops]
        allr = lambda k: {r for x in R[k:] for r in x}
        if mn.startswith("v_mfma"):
            self.kind = "mfma"
            self.passes = 8 if "32x32" in mn else 4
            self.defs, self.uses = set(R[0]), allr(1)
            self.A, self.B, self.C = set(R[1]), set(R[2]), set(R[3])
        elif mn.startswith("ds_"):
            self.kind = "ds"
            if mn.startswith("ds_read") or "permute" in mn or "swizzle" in mn:
                self.defs, self.uses = set(R[0]), allr(1)
            else:
                self.uses = allr(0)
                if "addtid" in mn: self.uses.add(("m0", 0))
        elif mn.startswith("buffer_") or mn.startswith("global_"):
            self.kind = "vm"
            self.dma = "_lds_" in mn or re.search(r"\blds\b", mods) is not None
            if self.dma:
                self.uses = allr(0) | {("m0", 0)}
            elif "_load" in mn:
                self.defs, self.uses = set(R[0]), allr(1)
                if "d16" in mn:
                    self.uses |= self.defs
            else:
                self.uses = allr(0)
                self.wide = set()
                if "x3" in mn or "x4" in mn:
                    self.wide = set(R[0] if mn.startswith("buffer_") else R[1])
        elif mn.startswith("s_load") or mn in ("s_memtime", "s_memrealtime"):
            self.kind = "smem"
            self.defs, self.uses = set(R[0]), allr(1)
        elif mn.startswith("s_"):
            self.kind = "salu"
            if mn.startswith(("s_cmp", "s_cbranch", "s_branch", "s_waitcnt", "s_barrier", "s_nop", "s_sleep", "s_setprio", "s_endpgm", "s_bitcmp")):
                self.uses = allr(0)
                if "vcc" in mn: self.uses.add(("vcc", 0))
            else:
                self.defs, self.uses = set(R[0]), allr(1)
                if "saveexec" in mn: self.defs.add(("exec", 0))
        elif mn.startswith("v_"):
            self.kind = "valu"
            self.defs, self.uses = set(R[0]), allr(1)
            if "permlane" in mn and "swap" in mn:
                self.defs |= set(R[1]); self.uses |= set(R[0])
            if re.match(r"v_(fmac|dot2c|mac|pk_fmac|writelane)", mn) or "dpp" in mn or "quad_perm" in mods or "row_" in mods:
                self.uses |= set(R[0])
            if mn.startswith("v_cndmask") and len(ops) == 3:
                self.uses.add(("vcc", 0))
            if re.match(r"v_(add|sub|subrev|addc|subb)_co", mn):
                self.defs |= set(R[1])
        self.trans = bool(TRANS.match(mn))
        self.dpp = self.kind == "valu" and ("dpp" in mn or "quad_perm" in mods or "row_" in mods)
        self.dot = mn.startswith("v_dot")

    def cost(self):
        if self.kind in ("meta", "pseudo"): return 0
        if self.kind == "salu": return 0.25
        if self.kind == "ds" and not self.defs: return len(vg(self.uses))
        if self.kind == "vm":
            return (1 if self.defs or self.dma else len(vg(self.uses))) + self.mn.startswith("buffer_")
        if "permlane" in self.mn: return 2
        return 2 if getattr(self, "trans", False) else 1
    def cls(self):
        return 0 if self.kind in ("salu", "pseudo", "meta", "smem") else 1 if self.kind in ("ds", "vm") else 2

def mk(x, **kw):
    if isinstance(x, I): return [x]
    if isinstance(x, str): return [I(l, **kw) for l in x.strip().split("\n") if l.strip()]
    return [j for i in x for j in mk(i, **kw)]

def vg(s): return {r for r in s if r[0] in "va"}
def sg(s): return {r for r in s if r[0] in ("s", "vcc")}

def need_states(p, c):
    n = 0
    if p.kind == "valu":
        w = vg(p.defs)
        if c.kind == "mfma" and w & c.uses: n = max(n, 3 if p.dot else 2)
        if c.kind == "valu":
            if p.trans and not c.trans and w & c.uses: n = max(n, 1)
            if (c.dpp or "permlane" in c.mn) and w & c.uses: n = max(n, 2)
            if c.mn.startswith(("v_readlane", "v_readfirstlane")) and w & c.uses: n = max(n, 1)
            if sg(p.defs) & c.uses: n = max(n, 4 if "lane" in c.mn else 2)
        if p.dot and w & (c.uses | c.defs):
            same_chain = c.mn == p.mn and not (w & {r for o in c.ops[1:3] for r in regs_of(o)})
            if not same_chain: n = max(n, 3)
        if c.kind == "vm" and sg(p.defs) & c.uses: n = max(n, 5)
        if c.kind == "salu" and sg(p.defs) & c.uses: n = max(n, 2)
    if p.kind == "mfma":
        big = p.passes == 8
        if c.kind == "mfma":
            if p.defs & (c.A | c.B): n = max(n, 12 if big else 8)
            if p.defs & c.C and not (p.defs == c.C and p.passes == c.passes): n = max(n, 10 if big else 6)
            if p.defs & c.defs and not p.defs & c.C: n = max(n, 10 if big else 6)
        elif c.kind in ("valu", "vm", "ds"):
            if p.defs & (c.uses | c.defs): n = max(n, 12 if big else 8)
            if p.C & c.defs and c.kind == "valu": n = max(n, 7 if big else 3)
    if p.kind == "vm" and getattr(p, "wide", None) and p.wide & c.defs: n = max(n, 2)
    if p.kind == "salu" and ("m0", 0) in p.defs and c.kind in ("vm", "ds") and ("m0", 0) in c.uses: n = max(n, 1)
    return n

def finalize(prog):
    out, vmq, lgq, hist, val = [], [], [], [], {}
    stats = {"wait": 0, "nop": 0}
    waited = set()
    def newer(q, k): return sum(1 for e in q[k + 1:] if not e.opt)
    def emit(i):
        out.append(i)
        if i.kind in ("meta", "pseudo"): return
        states = int(i.ops[0]) + 1 if i.mn == "s_nop" else 1
        hist.append((i, states))
        if len(hist) > 64: hist.pop(0)
    def do_wait(vn, ln, opt=False):
        parts = []
        if vn is not None: parts.append(f"vmcnt({min(vn, 63)})")
        if ln is not None: parts.append(f"lgkmcnt({min(ln, 15)})")
        if parts:
            w = I("s_waitcnt " + " ".join(parts), opt=opt); emit(w); apply_wait(w); stats["wait"] += 1
    def drop(q, n):
        while len(q) > n: q.pop(0)
    def apply_wait(i):
        m = re.search(r"vmcnt\((\d+)\)", i.text)
        if m: trim(vmq, int(m.group(1)), i.opt)
        m = re.search(r"lgkmcnt\((\d+)\)", i.text)
        if m:
            n = int(m.group(1))
            if n == 0 or not any(e.kind == "smem" for e in lgq): trim(lgq, n, i.opt)
    def trim(q, n, opt):
        done = [k for k in range(len(q)) if newer(q, k) >= n and (q[k].opt or not opt)]
        for k in reversed(done): q.pop(k)
    for i in prog:
        if i.kind == "pseudo":
            a = i.text.split()
            if a[0] == "@reset":
                vmq.clear(); lgq.clear(); hist.clear()
            elif a[0] in ("@vm", "@lgkm"):
                q = vmq if a[0] == "@vm" else lgq
                waited.add(a[1])
                ks = [k for k, e in enumerate(q) if e.tag == a[1]]
                if ks:
                    n = newer(q, ks[-1])
                    if a[0] == "@lgkm" and any(e.kind == "smem" for e in q): n = 0
                    do_wait(n if a[0] == "@vm" else None, n if a[0] == "@lgkm" else None)
            continue
        if i.kind == "meta":
            emit(i); continue
        touch = i.uses | i.defs
        vn = ln = None
        ks = [k for k, e in enumerate(vmq) if e.defs & touch]
        if ks and not (i.kind == "vm" and not any(vmq[k].defs & i.uses for k in ks)): vn = newer(vmq, ks[-1])
        ks = [k for k, e in enumerate(lgq) if e.defs & touch]
        if ks and not (i.kind == "ds" and not any(lgq[k].defs & i.uses or lgq[k].kind == "smem" for k in ks)):
            ln = 0 if any(e.kind == "smem" for e in lgq) else newer(lgq, ks[-1])
        do_wait(vn, ln, i.opt)
        dist, pad = 0, 0
        for p, st in reversed(hist):
            pad = max(pad, need_states(p, i) - dist)
            if i.opt or not p.opt: dist += st
        if pad > 0:
            emit(I(f"s_nop {pad - 1}", opt=i.opt)); stats["nop"] += pad
        if i.need:
            for r, t in i.need.items():
                assert val.get(r) == t, f"{i.text}: register {r} holds {val.get(r)}, expected {t}"
        for r in i.defs: val.pop(r, None)
        if i.put: val.update(i.put)
        emit(i)
        if i.mn == "s_waitcnt": apply_wait(i)
        assert not (i.kind in ("vm", "ds") and i.tag in waited), f"{i.text}: issued after the wait for its tag {i.tag}"
        if i.kind == "vm": vmq.append(i)
        if i.kind in ("ds", "smem"): lgq.append(i)
    return out, stats

def indep(a, b):
    scc = lambda i: i.kind == "salu"
    return not (a.defs & (b.uses | b.defs) or b.defs & a.uses)

class Gaps:
    def __init__(self, main, cap=2):
        self.main, self.cap = main, cap
        self.pre = []
        self.g = [[] for _ in main]
        self.blk = [[] for _ in main]
    def load(self, k): return sum(i.cost() for i in self.g[k]) + min(2, len(self.blk[k]))
    def block(self, k, x):
        (self.pre if k < 0 else self.blk[k]).extend(mk(x))
    def put(self, k, i):
        while True:
            g = self.g[k]
            pos = len(g)
            while pos > 0 and g[pos - 1].cls() > i.cls(): pos -= 1
            if all(indep(i, j) for j in g[pos:]):
                g.insert(pos, i); return k
            if k == len(self.main) - 1:
                g.append(i); return k
            k += 1
    def at(self, k, x):
        if k < 0:
            self.pre.extend(mk(x)); return
        for i in mk(x): k = self.put(k, i)
        return k
    def spread(self, x, lo, hi):
        x = mk(x)
        lo = max(lo, 0); hi = min(hi, len(self.main))
        assert hi > lo, (lo, hi)
        total = sum(i.cost() for i in x)
        level = 0
        while sum(max(0, level - self.load(k)) for k in range(lo, hi)) < total: level += 1
        room = [max(0, level - self.load(k)) for k in range(lo, hi)]
        scale = total / sum(room) if total else 0
        k, acc, used, last = 0, room[0] * scale, 0, lo
        for i in x:
            while k < hi - lo - 1 and used + i.cost() * 0.5 > acc + 1e-9:
                k += 1; acc += room[k] * scale
            last = self.put(max(lo + k, last), i); used += i.cost()
        return last
    def early(self, x, lo, cap=None):
        k = max(lo, 0); cap = cap or self.cap
        for i in mk(x):
            while k < len(self.main) - 1 and self.load(k) > 0.9 and self.load(k) + i.cost() > cap + 0.5: k += 1
            k = self.put(k, i)
        return k
    def flat(self):
        out = list(self.pre)
        for m, g, b in zip(self.main, self.g, self.blk):
            out.append(m); out += g + b
        return out


class Sched:
    def __init__(self, main, cap=2, dense=False):
        self.main, self.cap = main, cap
        self.streams, self.pre, self.dense = [], [], dense
    def add(self, x, lo, hi, pace=False, after=None, prio=0, win=None):
        items = []
        for y in (x if isinstance(x, list) else mk(x)):
            items.append({"ins": mk(y), "blk": isinstance(y, list) and len(mk(y)) > 1})
        n = len(items)
        hi = min(hi, len(self.main) - 1)
        for k, it in enumerate(items):
            it["lo"] = lo + ((hi - lo + 1) * k) // n if pace else lo
            it["hi"] = min(hi, it["lo"] + win) if win is not None else hi
            it["gap"] = None; it["prio"] = prio
            it["cost"] = sum(i.cost() for i in it["ins"] if not i.opt)
            it["after"] = list(after or []) if k == 0 else []
        self.streams.append(items)
        return items
    def run(self):
        n = len(self.main)
        g = [[] for _ in range(n)]
        heads = [0] * len(self.streams)
        credit, quiet, lock = 0.0, 0, None
        for k in range(n):
            rem = sorted((it["hi"], it["cost"]) for s, h in zip(self.streams, heads) for it in s[h:])
            rate, acc = self.cap, 0.0
            for hi, c in rem:
                acc += c
                if hi >= k: rate = max(rate, acc / (hi - k + 1))
            budget = rate + max(-1.0, min(credit, 1.0)) if rate > self.cap else self.cap
            used, salu = 0.0, 0
            while True:
                cand = []
                for si, s in enumerate(self.streams):
                    if heads[si] == len(s): continue
                    it = s[heads[si]]
                    if it["lo"] > k or any(a["gap"] is None or a["gap"] + d > k for a, d in it["after"]): continue
                    if lock not in (None, si) and ("vcc", 0) in it["ins"][0].defs: continue
                    c0 = it["ins"][-1].cls() if not it["blk"] else max(i.cls() for i in it["ins"])
                    pos = len(g[k])
                    while pos > 0 and g[k][pos - 1][0] > c0: pos -= 1
                    ok = all(indep(a, b) for a in it["ins"] for _, o in g[k][pos:] for b in o["ins"]) and not any(o in s for _, o in g[k][pos:] if c0 == 0 and it["ins"][0].kind == "pseudo")
                    must = it["hi"] <= k
                    if not ok and not must: continue
                    if not ok: pos = len(g[k])
                    hasvm = any(b.kind == "vm" for _, o in g[k] for b in o["ins"])
                    if it["ins"][0].kind == "vm" and salu and not must and not any(c == 1 for c, _ in g[k]): continue
                    free = c0 == 0 and salu == 0 and not hasvm
                    if c0 == 0 and not free and not must and used + 1 > budget: continue
                    extra = 1 if c0 == 1 and any(c == 1 and o["ins"][0].kind == it["ins"][0].kind for c, o in g[k]) else 0
                    if c0 == 1 and not must:
                        tight = sum(1 for x in s[heads[si]:] if x["hi"] <= it["hi"] and x["ins"][-1].cls() == 1) > it["hi"] - k
                        if ((k < quiet and it["ins"][0].kind == "ds") or (extra and not self.dense)) and not tight: continue
                    if not (must or free or used == 0 or used + it["cost"] + extra * (not self.dense) <= budget + 0.26): continue
                    left = sum(x["cost"] for x in s[heads[si]:] if x["hi"] <= it["hi"])
                    slack = it["hi"] - k - left / self.cap
                    cand.append(((0 if free else 1, -it["prio"], 0 if c0 == 1 else 1, slack), si, pos, c0, free))
                if not cand: break
                cand.sort(key=lambda c: (c[0][0], c[0][2], c[0][1], c[0][3]))
                _, si, pos, c0, free = cand[0]
                it = self.streams[si][heads[si]]; heads[si] += 1
                it["gap"] = k
                if ("vcc", 0) in it["ins"][0].defs: lock = si
                if ("vcc", 0) in it["ins"][0].uses: lock = None
                g[k].insert(pos, (c0, it))
                if c0 == 0:
                    ns = max(1, sum(1 for b in it["ins"] if b.kind != "meta"))
                    salu += ns; used += ns - 1 if free else ns
                else:
                    used += it["cost"] + (1 if c0 == 1 and sum(c == 1 and o["ins"][0].kind == it["ins"][0].kind for c, o in g[k]) > 1 else 0)
                    if it["ins"][0].mn.startswith("ds_write"): quiet = k + (3 if "128" in it["ins"][0].mn else 2)
            credit = budget - used if rate > self.cap else 0.0
        for s, h in zip(self.streams, heads):
            assert h == len(s), f"unscheduled: {s[h]['ins'][0].text}"
        self.refill(g)
        out = list(self.pre)
        for m, gg in zip(self.main, g):
            out.append(m)
            for _, it in gg: out += it["ins"]
        return out
    def refill(self, g):
        n = len(g)
        if any(a[0] > b[0] for gg in g for a, b in zip(gg, gg[1:])):
            pinned = {id(it) for gg in g if any(a[0] > b[0] for a, b in zip(gg, gg[1:])) for _, it in gg}
        else:
            pinned = set()
        seq = [it for gg in g for c, it in gg if c == 2]
        isv = {id(it) for it in seq}
        lo = {id(it): it["lo"] for it in seq}; hi = {id(it): max(it["hi"], it["gap"]) for it in seq}
        for s in self.streams:
            for a, b in zip(s, s[1:]):
                if id(a) in isv and id(b) not in isv: hi[id(a)] = min(hi[id(a)], max(a["gap"], b["gap"] - 1))
                if id(b) in isv and id(a) not in isv: lo[id(b)] = max(lo[id(b)], min(b["gap"], a["gap"]))
            for b in s:
                for a, d in b["after"]:
                    if id(b) in isv and id(a) not in isv: lo[id(b)] = max(lo[id(b)], a["gap"] + d)
                    if id(a) in isv and id(b) not in isv: hi[id(a)] = min(hi[id(a)], max(a["gap"], b["gap"] - max(d, 1)))
                    if id(a) in isv and id(b) in isv and d: lo[id(b)] = max(lo[id(b)], a["gap"] + d); hi[id(a)] = a["gap"]
        fixed = [it for gg in g for c, it in gg if c != 2]
        for a in seq:
            for b in fixed:
                if abs(a["gap"] - b["gap"]) > 80 or all(indep(x, y) for x in a["ins"] for y in b["ins"]): continue
                if b["gap"] > a["gap"]: hi[id(a)] = min(hi[id(a)], b["gap"] - 1)
                else: lo[id(a)] = max(lo[id(a)], b["gap"])
        for it in seq:
            if id(it) in pinned: lo[id(it)] = hi[id(it)] = it["gap"]
        for a, b in reversed(list(zip(seq, seq[1:]))): hi[id(a)] = min(hi[id(a)], hi[id(b)])
        base = []
        for gg in g:
            ns = sum(1 for c, it in gg if c == 0 for b in it["ins"] if b.kind != "meta")
            mem = [it for c, it in gg if c == 1]
            base.append(max(0, ns - 1) + sum(it["cost"] for it in mem) + max(0, sum(it["ins"][0].kind == "ds" for it in mem) - 1) + (1 if ns and mem and mem[0]["ins"][0].kind == "vm" else 0))
        m = len(seq)
        INF = 1e9
        best = {0: (0.0, None)}
        hist = []
        for k in range(n):
            nxt = {}
            for j, (c, _) in best.items():
                load, jj = base[k], j
                while True:
                    if jj == m or hi[id(seq[jj])] > k:
                        cost = c + max(0, self.cap - load) + 1e-3 * max(0, load - self.cap) ** 2
                        if cost < nxt.get(jj, (INF,))[0]: nxt[jj] = (cost, j)
                    if jj == m or lo[id(seq[jj])] > k or jj - j > 48: break
                    load += seq[jj]["cost"]; jj += 1
            assert nxt, k
            hist.append(nxt); best = nxt
        j = m
        for k in range(n - 1, -1, -1):
            p = hist[k][j][1]
            if not any(id(it) in pinned for _, it in g[k]):
                g[k] = [x for x in g[k] if x[0] != 2] + [(2, it) for it in seq[p:j]]
            else:
                have = {id(it) for _, it in g[k]}
                first = next(q for q, x in enumerate(g[k]) if x[0] == 2)
                own = [q for q in range(p, j) if id(seq[q]) in have]
                g[k] = g[k][:first] + [(2, seq[q]) for q in range(p, own[0])] + g[k][first:] + [(2, seq[q]) for q in range(own[-1] + 1, j)]
            j = p

def model_cycles(prog):
    t, vfree, mfree, lastv, prev = 0, 0, 0, False, None
    for i in prog:
        if i.kind in ("meta", "pseudo") or i.opt: continue
        if i.kind == "mfma":
            t = max(t, vfree, mfree); mfree = t + 4 * i.passes; vfree = t + 8; t += 4; lastv = False
        elif i.kind in ("salu", "smem"):
            t += 4 * (int(i.ops[0]) + 1) if i.mn == "s_nop" else 4
        else:
            t = max(t, vfree)
            if i.kind == "valu":
                if i.mn.startswith(("v_pk_", "v_dot")): t = max(t, mfree + 12)
                t += 4 * i.cost(); lastv = True
            else:
                t += (8 if lastv else 0) + (4 if (i.kind == "vm" and prev == "salu") or prev == i.kind else 0) + 4 * i.cost(); lastv = False
            vfree = t
        prev = i.kind
    return max(t, mfree)

def gap_map(prog):
    out = ""
    for i in prog:
        if i.kind in ("meta", "pseudo"): continue
        if i.kind == "mfma": out += " "
        else:
            out += {"salu": "w" if i.mn == "s_waitcnt" else "n" if i.mn == "s_nop" else "B" if i.mn == "s_barrier" else "s", "smem": "s", "vm": "g" if (i.defs or getattr(i, "dma", 0)) else "G",
                    "ds": "r" if i.defs else "W", "valu": "t" if i.cost() == 2 else "f"}[i.kind]
    return out


def sizes(prog):
    import subprocess
    lines = []
    for i in prog:
        if i.kind in ("meta", "pseudo"): continue
        t = i.text
        if i.mn.startswith(("s_cbranch", "s_branch")): t = "s_nop 0"
        t = re.sub(r"L_(code_end|table)[^,]*", "0x12345", t)
        lines.append(t)
    r = subprocess.run(["llvm-mc", "-triple", "amdgcn-amd-amdhsa", "-mcpu=gfx950", "-show-encoding"], input="\n".join(lines) + "\n", capture_output=True, text=True)
    assert r.returncode == 0, r.stderr[:2000]
    enc = [m.count("0x") for m in re.findall(r"encoding: \[(.*?)\]", r.stdout)]
    assert len(enc) == len(lines)
    it = iter(enc)
    return [0 if i.kind in ("meta", "pseudo") else next(it) for i in prog]

def align8(prog, start=0):
    sz = sizes(prog)
    off, cand, left = start, None, 0
    for k, i in enumerate(prog):
        if sz[k] == 0: continue
        if sz[k] >= 8:
            if off % 8:
                if cand is not None:
                    j = prog[cand]
                    j.text = j.text.replace(j.mn, j.mn + "_e64", 1); off += 4
                else:
                    left += 1
            if off % 8 == 0 or cand is not None: cand = None
        elif i.kind == "valu" and not i.mn.endswith(("_e64", "_dpp")) and not i.mn.startswith(("v_readfirstlane", "v_dot2c", "v_addc", "v_add_co")):
            cand = k
        off += sz[k]
    return left


def align_runs(prog, lo, hi, minrun=6):
    sz = sizes(prog)
    out, off, k, added = [], 0, 0, 0
    while k < len(prog):
        i = prog[k]
        if lo <= k < hi and sz[k] == 8 and off % 8:
            run, j = 0, k
            while j < hi and sz[j] != 4:
                run += sz[j] > 0; j += 1
            if run >= minrun:
                p = next(x for x in reversed(out) if x.kind not in ("meta", "pseudo"))
                if p.kind == "valu" and not p.mn.endswith(("_e64", "_dpp")) and not p.mn.startswith(("v_readfirstlane", "v_dot2c", "v_addc", "v_add_co")):
                    p.text = p.text.replace(p.mn, p.mn + "_e64", 1)
                else:
                    out.append(I("s_nop 0")); added += 1
                off += 4
        out.append(i); off += sz[k]; k += 1
    return out, added
```

```python
import math
from asmlib import I, mk, Gaps, Sched, model_cycles
import gen as G
from gen import fx, SRD, SRD2, sW, sCLS, sIDX, SLOT, STP, RST, RES, PART, HT, ACT, W2P, F2, F2B, F2C, AP

C0 = -2 * 0.7978845608028654 * math.log2(math.e)
vL16 = 252
TA = 2
FRG = 10
ACC = 50
S1, S2 = 74, 78
CS, ONES = 82, 94
CN = 98
T = 106
OUT = 120
vAST, vSW, vSR, vPF = 124, 125, 126, 127
W2E = 128
vSG, vTG = 116, 118
vPK = 117
PD = 254
MF = "v_mfma_f32_16x16x32_bf16"

def r4(kind, n): return f"{kind}[{n}:{n+3}]"

vW2, vX = 253, 117
NPK = 6

def setup(e):
    a = mk(f"""s_mul_i32 s57, s62, {SLOT}
        s_mul_i32 s58, s39, 10240
        s_add_u32 s57, s57, s58
        s_add_u32 s57, s57, {HT}
        s_mul_i32 s58, s58, 3
        v_add_u32 v{vPK}, s57, v{vL16}
        s_lshl_b32 s46, s{sCLS}, 14
        s_mul_i32 s47, s39, 2560
        s_add_u32 s47, s47, s46
        s_add_u32 s47, s47, {F2}
        v_min_u32 v{vPF}, 39, v1
        v_lshl_add_u32 v{vPF}, v{vPF}, 6, s47
        v_mov_b32 v{ONES}, 0x3f803f80
        v_mov_b32 v{ONES+1}, 0x3f803f80
        v_mov_b32 v{ONES+2}, 0x3f803f80
        v_mov_b32 v{ONES+3}, 0x3f803f80""")
    b = []
    for k in range(1, 4): b.append(mk(f"s_add_u32 s{20+2*k}, s34, {4096 * k}\ns_addc_u32 s{21+2*k}, s35, 0"))
    b += mk(f"""s_mov_b64 s[20:21], s[34:35]
        s_and_b32 s68, s63, 7
        s_lshr_b32 s72, s63, 3
        v_mov_b32 v{vTG}, s44
        v_mov_b32 v{vTG+1}, s45
        v_and_b32 v{T}, 15, v1
        v_lshrrev_b32 v{T+1}, 4, v1
        v_bfe_u32 v{T+2}, v1, 2, 2
        v_and_b32 v{T+3}, 3, v1
        v_lshlrev_b32 v{T+4}, 9, v{T+1}
        v_lshl_add_u32 v{T+4}, v{T+2}, 6, v{T+4}
        v_lshl_add_u32 v{T+4}, v{T+3}, 3, v{T+4}
        v_and_b32 v{T+5}, 1, v{T+1}
        v_lshl_add_u32 v{T+4}, v{T+5}, 5, v{T+4}""")
    for gq in range(4):
        b += mk(f"""s_add_u32 s47, s39, {gq}
            s_and_b32 s47, s47, 3
            s_mul_i32 s47, s47, 30720
            v_add_u32 v{TA+gq}, s47, v{T+4}
            v_xor_b32 v{TA+4+gq}, 32, v{TA+gq}""")
    b += mk(f"""v_mov_b32 v{OUT+3}, 0
        v_cmp_eq_u32 s[50:51], v{T+1}, v{T+2}
        v_cmp_gt_u32 s[52:53], 48, v1
        v_cmp_lt_u32 s[54:55], 39, v1
        s_lshl_b32 s47, s{sW}, 3
        s_add_u32 s47, s47, {STP}
        v_lshl_add_u32 v{vSW}, v{T}, 5, s47
        v_mov_b32 v{T+5}, {STP + 1024}
        v_lshl_add_u32 v{T+5}, v1, 3, v{T+5}
        v_cndmask_b32 v{vSW}, v{T+5}, v{vSW}, s[50:51]
        v_lshlrev_b32 v{vSR}, 5, v{T}
        v_add_u32 v{vSR}, {STP}, v{vSR}
        v_mov_b32 v{T+5}, 0x40000000
        v_cmp_gt_u32 s[50:51], 16, v1
        s_mul_i32 s56, s62, {9 * AP}
        s_add_u32 s60, s56, {ACT}
        s_lshl2_add_u32 s47, s63, s{sW}
        s_mul_i32 s56, s47, 768
        s_add_u32 s56, s56, s60
        s_mul_i32 s61, s47, {64 - 768}
        s_add_u32 s61, s61, {192 * 256 - 16 * 48}
        v_add_u32 v{vSG}, s61, v{vL16}
        v_cndmask_b32 v{vAST}, v{vSG}, v{vL16}, s[52:53]
        v_cmp_gt_u32 s[52:53], 52, v1
        s_add_u32 s61, s61, {16 * 48}
        v_lshrrev_b32 v{vSG}, 3, v1
        v_mul_u32_u24 v{vSG}, {AP - 64}, v{vSG}
        v_lshl_add_u32 v{vSG}, v1, 3, v{vSG}
        v_add_u32 v{vSG}, s61, v{vSG}
        v_cndmask_b32 v{vAST}, v{T+5}, v{vAST}, s[52:53]
        v_cndmask_b32 v{vSG}, v{T+5}, v{vSG}, s[50:51]
        s_mul_i32 s47, s{sW}, {24 * 64}
        s_add_u32 s47, s47, s46
        s_and_b32 s46, s68, 4
        s_lshl4_add_u32 s47, s46, s47
        s_add_u32 s47, s47, {F2 + 64 * 160 - 128 * 40}
        v_min_u32 v0, 51, v1
        v_lshl_add_u32 v0, v0, 7, s47
        v_cndmask_b32 v0, v{vPF}, v0, s[54:55]
        v_cmp_eq_u32 s[50:51], 1, v{T+3}
        v_cmp_eq_u32 s[52:53], 2, v{T+3}
        v_cmp_eq_u32 s[54:55], 3, v{T+3}
        s_lshl2_add_u32 s59, s68, s{sW}
        s_mul_i32 s59, s59, {12 * 5120}
        s_add_u32 s59, s59, {W2P}
        s_mul_i32 s47, s72, {AP}
        s_add_u32 s60, s60, s47
        s_mul_i32 s47, s{sW}, {48 * 256}
        s_add_u32 s60, s60, s47
        s_lshr_b32 s47, s68, 1
        s_mul_i32 s47, s47, 30720
        s_and_b32 s46, s68, 1
        s_mul_i32 s46, s46, 5120
        s_add_u32 s47, s47, s46
        v_lshl_add_u32 v{T+6}, v{T+1}, 2, v{T+2}
        v_lshlrev_b32 v{T+6}, 6, v{T+6}
        v_lshl_add_u32 v{T+6}, v{T+3}, 3, v{T+6}
        v_lshrrev_b32 v{T+7}, 1, v{T+1}
        v_xor_b32 v{T+7}, s72, v{T+7}
        v_lshl_add_u32 v{T+6}, v{T+7}, 5, v{T+6}
        v_add_u32 v{T+6}, s47, v{T+6}
        v_mul_u32_u24 v{T+7}, 176, v{T}
        v_lshl_add_u32 v{T+7}, v{T+1}, 3, v{T+7}
        v_add_u32 v{T+7}, {RES}, v{T+7}
        s_mul_i32 s33, s{sW}, {1024 * NPK}
        s_add_u32 s33, s33, {RST}
        s_mov_b32 s32, {fx(1/640)}
        v_mov_b32 v{T+8}, {fx(1e-5)}""")
    return a, b

def code_touch(e, lines, dst):
    L = e.lab("pc")
    return [mk(f"s_getpc_b64 s[28:29]\n{L}:")] + mk(f"""s_mul_i32 s71, s{sIDX}, {128 * lines}
        v_min_u32 v{dst}, {lines - 1}, v1
        v_lshl_add_u32 v{dst}, v{dst}, 7, s71
        v_min_u32 v{dst}, L_table-{L}, v{dst}
        global_load_dword v{dst}, v{dst}, s[28:29]""")

def f3_prewarm(e):
    return mk(f"""v_lshrrev_b32 v{T}, 3, v1
        v_and_b32 v{T+1}, 7, v1
        v_mul_u32_u24 v{T}, {AP}, v{T}
        v_lshl_add_u32 v{T}, v{T+1}, 3, v{T}
        s_add_u32 s48, s56, s61
        s_add_u32 s48, s48, {AP}
        buffer_store_dwordx2 v[{ONES}:{ONES+1}], v{T}, {SRD}, s48 offen sc1""")

def w1_before(e):
    return e.o.get("w1b", 45)

def colsums(e):
    return [I(f"{MF} {r4('v', CS + 4 * (n % 3))}, {r4('a', 4 * n)}, {r4('v', ONES)}, " + ("0" if n < 3 else r4('v', CS + 4 * (n % 3))), need={("a", 4 * n): "W1"}) for n in e.W1_ORDER]

def dma(va, k0, m0base, m0off, n, tag):
    out = []
    for k in range(k0, k0 + n):
        if k % 4 == 0 or k == k0: out += mk(f"s_add_u32 m0, s{m0base}, {m0off + 1024 * (k - k % 4 - k0)}")
        b = 20 + 2 * (k // 4)
        out += mk(f"global_load_lds_dwordx4 v{va}, s[{b}:{b+1}] offset:{1024 * (k % 4)} sc1", tag=tag)
    return out

def chunk(c):
    return dma(vPK, 0, 58, (c % 3) * 10240, 10, f"h{c}") + (mk(f"v_add_u32 v{vPK}, {16 * SLOT}, v{vPK}") if c < 3 else [])

def ffn(e):
    o = e.o
    wr = e.w1_loads()[48:]
    nw0 = o.get("nw0", 5)
    e(wr[:nw0])
    if o.get("ds", 0):
        e(f"""v_lshlrev_b32 v{vAST}, 4, v{T}
            v_lshl_add_u32 v{vAST}, v{T+1}, 2, v{vAST}
            v_add_u32 v{vAST}, s56, v{vAST}""")
    hd = mk(f"""s_mul_i32 s48, s{sW}, {1024 - 48 * 256}
        s_add_u32 s70, s60, s48
        s_add_u32 s70, s70, {AP + 192 * 256}
        {"s_add_u32 s46, s62, s63" if o.get("rot2", 0) else "s_mov_b32 s46, 0"}""")
    for gq in range(4):
        hd += mk(f"""s_add_u32 s48, s46, {gq}
            s_and_b32 s48, s48, 3
            s_mul_i32 s71, s48, 15360
            s_add_u32 s{4+gq}, s59, s71
            s_mul_i32 s71, s48, 3072
            s_add_u32 s71, s71, s60""") + [mk(f"s_add_u32 s{8+2*gq}, s34, s71\ns_addc_u32 s{9+2*gq}, s35, 0")]

    late = [("x", c, k) for c in range(2) for k in range(12)]
    late += [("w", n, 0) for n in range(35, 60)]
    w2reg = {n: ("v", W2E + 4 * n) if n < 31 else ("a", 240 + 4 * (n - 31)) for n in range(35)}
    actreg = {}
    for n, (kind, a, b) in enumerate(late):
        if kind == "w": w2reg[a] = ("a", 4 * n)
        else: actreg[a, b] = ("a", 4 * n)
    for k in range(11): actreg[2, k] = ("a", 4 * (49 + k))
    actreg[2, 11] = ("a", 0)
    for k in range(12): actreg[3, k] = ("a", 4 * (k + 1))
    def tagput(reg, tag): return {(reg[0], reg[1] + i): tag for i in range(4)}
    grp = lambda n: mk(f"v_add_u32 v{vW2}, s{4 + n // 15}, v{vL16}")
    def w2_load(n):
        k = n % 15; b = 20 + 2 * (k // 4)
        return (grp(n) if k == 0 else []) + [I(f"global_load_dwordx4 {r4(*w2reg[n])}, v{vW2}, s[{b}:{b+1}] offset:{1024 * (k % 4)} sc1", put=tagput(w2reg[n], ("W2", n)))]
    def act_load(c, k):
        b = 8 + 2 * (k // 3); va = (vL16, vX, vW2, vX)[c]
        pre = mk(f"v_add_u32 v{va}, {2 * c * AP}, v{vL16}") if c and k == 0 else []
        return pre + [I(f"global_load_dwordx4 {r4(*actreg[c, k])}, v{va}, s[{b}:{b+1}] offset:{1024 * (k % 3)} sc1", tag=f"x{c}_{k}", put=tagput(actreg[c, k], ("X", c, k)))]
    def unpark(n):
        a, off = (vSW, 10240 + 1024 * (n - 35)) if n < 45 else (T + 6, 1024 * (n - 45)) if n < 45 + NPK else (vSW, 20480 + 1024 * (n - 45 - NPK))
        return I(f"ds_read_b128 {r4(*w2reg[n])}, v{a} offset:{off}", tag="up", put=tagput(w2reg[n], ("W2", n)))
    w2_loads = lambda a, b: [x for n in range(a, b) for x in w2_load(n)]
    act_loads = lambda c: [x for k in range(12) for x in act_load(c, k)]
    late_loads = lambda a, b: [x for kind, p, q in late[a:b] for x in (w2_load(p) if kind == "w" else act_load(p, q))]
    def f3_issue(c): return mk(f"s_mov_b32 s73, {2 * c * AP}") + e.poll_issue(vPF, PD, "s73")
    def f3_check(c):
        a = e.poll_check(vPF, PD, "s73")
        return [a[0], a[1:]]
    def f3_signal(i):
        return mk(f"@vm st{i}\ns_add_u32 s61, s56, {AP * i}\nbuffer_store_dwordx2 v[{vTG}:{vTG+1}], v{vSG}, {SRD}, s61 offen sc1")

    main, start, bstart, pstart = [], [], [], {}
    def frag(i, p): return FRG + 20 * ((p // 5) & 1) + 4 * (p % 5)
    def ftag(i, p): return {("v", frag(i, p) + k): ("H", i, p) for k in range(4)}
    for i in range(8):
        start.append(len(main))
        for p in range(20):
            if p % 5 == 0: bstart.append(len(main))
            pstart[i, p] = len(main)
            f = r4("v", frag(i, p))
            if p < 5:
                main.append(I(f"{MF} {r4('v', S1)}, {r4('v', ONES)}, {f}, " + ("0" if p == 0 else r4('v', S1)), need=ftag(i, p), put=tagput(("v", S1), ("S", i, p))))
                main.append(I(f"{MF} {r4('v', S2)}, {f}, {f}, " + ("0" if p == 0 else r4('v', S2)), need=ftag(i, p), put=tagput(("v", S2), ("S", i, p))))
            for t in range(3):
                a = ACC + 12 * (i & 1) + 4 * t
                main.append(I(f"{MF} {r4('v', a)}, {r4('a', 12 * p + 4 * t)}, {f}, " + ("0" if p == 0 else r4('v', a)), need=ftag(i, p)))
                if p == 19: main[-1].put = tagput(("v", a), ("G", i))
            if i == 0 and p % 5 == 4: main.extend(colsums(e)[48 + 3 * (p // 5): 51 + 3 * (p // 5)])
    start.append(len(main)); bstart.append(len(main))
    def reads(b):
        i, gq = b // 4, b % 4
        slot = (i // 2) % 3
        base = TA + 4 * (i & 1) + gq
        out = []
        for p in range(5 * gq, 5 * gq + 5):
            f = frag(i, p); off = 10240 * slot + 2048 * (p % 5)
            out.append(I(f"ds_read_b64_tr_b16 v[{f}:{f+1}], v{base} offset:{off}", tag=f"b{b}_{p % 5 // 2}", put={("v", f): ("H", i, p), ("v", f + 1): ("H", i, p)}))
            out.append(I(f"ds_read_b64_tr_b16 v[{f+2}:{f+3}], v{base} offset:{off + 256}", tag=f"b{b}_{p % 5 // 2}", put={("v", f + 2): ("H", i, p), ("v", f + 3): ("H", i, p)}))
        return out
    NB = o.get("nb", 0)
    def stats_check(i, rd):
        a = S1; neg = not (i >> 1) & 1
        A, B = e.lab("again"), e.lab("ready")
        comb = f"""v_bitop3_b32 v{T+9}, v{a+1}, v{a+3}, v{a+5} bitop3:{'0x80' if neg else '0xfe'}
            v_{'and' if neg else 'or'}_b32 v{T+9}, v{T+9}, v{a+7}
            v_cmp_{'le' if neg else 'gt'}_i32 vcc, 0, v{T+9}"""
        e.cold.append(f"""{A}:
    s_mov_b32 s49, 0
{A}_l:
    {rd[0].text}
    {rd[1].text}
    s_add_u32 s49, s49, 1
    s_waitcnt lgkmcnt(0)
    {comb}
    s_cmp_ge_u32 s49, {G.SPIN * 8}
    s_cbranch_scc1 {B}
    s_nop 1
    s_cbranch_vccnz {A}_l
    s_branch {B}""")
        br = I(f"s_cbranch_vccnz {A}")
        br.uses |= {("v", a + k) for k in range(8)} | {("v", T + 9)}; br.defs |= {("v", a + k) for k in range(8)}
        out = mk(comb); out[-1].put = br.need = {("vcc", 0): A}
        return out + [[br] + mk(f"{B}:")]
    def stats_out(i):
        sg = "-" if NB and not (i >> 1) & 1 else ""
        out = mk(f"""v_cndmask_b32 v{S1+1}, v{S2}, v{S2+1}, s[50:51]
            v_cndmask_b32 v{S1+1}, v{S1+1}, v{S2+2}, s[52:53]
            v_cndmask_b32 v{S1+1}, {sg}abs(v{S1+1}), {sg}abs(v{S2+3}), s[54:55]""") + mk(f"ds_write_b64 v{vSW}, v[{S1}:{S1+1}] offset:{512 * (i & 1)}", tag=f"sp{i}")
        out[0].need = {("v", S2): ("S", i, 4)}; out[3].need = {("v", S1): ("S", i, 4)}
        return out
    def stats_in(i):
        c = CN + 4 * (i & 1); a = S1
        rd = mk(f"ds_read_b128 v[{a}:{a+3}], v{vSR} offset:{512 * (i & 1)}\nds_read_b128 v[{a+4}:{a+7}], v{vSR} offset:{512 * (i & 1) + 16}", tag=f"sr{i}")
        m = mk(f"""v_add_f32 v{a}, v{a}, v{a+2}
            v_add_f32 v{a+1}, v{a+1}, v{a+3}
            v_add_f32 v{a+4}, v{a+4}, v{a+6}
            v_add_f32 v{a+5}, v{a+5}, v{a+7}
            v_add_f32 v{a}, v{a}, v{a+4}
            v_add_f32 v{a+1}, v{a+1}, v{a+5}""")
        if o.get("mim", 0):
            m += mk(f"""v_mul_f32 v{a}, {fx(1/640)}, v{a}
                v_mul_f32 v{a+1}, {fx(1/640)}, v{a+1}
                v_fma_f32 v{a+1}, -v{a}, v{a}, v{a+1}
                v_max_f32 v{a+1}, 0, v{a+1}
                v_cvt_pk_bf16_f32 v{a}, v{a}, v{a+1}
                v_and_b32 v{a+1}, 0xffff0000, v{a}
                v_add_f32 v{a+1}, {fx(1e-5)}, v{a+1}
                v_cvt_pk_bf16_f32 v{a+1}, v{a+1}, v{a+1}
                v_lshlrev_b32 v{a+1}, 16, v{a+1}
                v_sqrt_f32 v{a+1}, v{a+1}
                v_lshlrev_b32 v{c}, 16, v{a}
                v_cvt_pk_bf16_f32 v{a+1}, v{a+1}, v{a+1}
                v_lshlrev_b32 v{a+1}, 16, v{a+1}
                v_rcp_f32 v{a+2}, v{a+1}
                v_mul_f32 v{c+3}, v{a+1}, v{a+1}""")
        else:
            m += mk(f"""v_mul_f32 v{c}, {fx(1/640)}, v{a}
                v_fmaak_f32 v{a+1}, s33, v{a+1}, {fx(1e-5)}
                v_fma_f32 v{a+1}, -v{c}, v{c}, v{a+1}
                v_max_f32 v{c+3}, {fx(1e-5)}, v{a+1}
                v_rsq_f32 v{a+2}, v{c+3}""".replace("v_fmaak_f32 v%d, s33, v%d, %s" % (a + 1, a + 1, fx(1e-5)), f"v_fma_f32 v{a+1}, abs(v{a+1}), s32, v{T+8}"))
        m += mk(f"""v_mul_f32 v{c+1}, {fx(C0)}, v{a+2}
            v_mul_f32 v{a+2}, v{a+2}, v{a+2}
            v_mul_f32 v{a+2}, {fx(0.044715)}, v{a+2}
            v_mul_f32 v{c+2}, v{c+1}, v{a+2}""")
        m[-1].put = {("v", c + 2): ("C", i)}
        m[-2].put = {("v", a + 2): ("M", i)}; m[-1].need = {("v", a + 2): ("M", i)}
        return rd, m
    DS = o.get("ds", 0)
    def dstore(i, t):
        return mk(f"global_store_dword v{vAST}, v{OUT+t}, s[34:35] offset:{256 * t} sc1", tag=f"st{i}")
    def epilogue(i, packed=False):
        c = CN + 4 * (i & 1)
        out = mk(f"v_mov_b32 v{OUT+3}, {'v0' if i < 7 else 0}")
        for t in range(3):
            a = ACC + 12 * (i & 1) + 4 * t; s = CS + 4 * t; x = T
            p2 = lambda r: f"v[{r}:{r+1}]"
            if packed:
                out += mk(f"""v_pk_fma_f32 {p2(a)}, {p2(c)}, {p2(s)}, {p2(a)} op_sel_hi:[0,1,1] neg_lo:[1,0,0] neg_hi:[1,0,0]
                    v_pk_fma_f32 {p2(a+2)}, {p2(c)}, {p2(s+2)}, {p2(a+2)} op_sel_hi:[0,1,1] neg_lo:[1,0,0] neg_hi:[1,0,0]
                    v_pk_mul_f32 {p2(x)}, {p2(a)}, {p2(a)}
                    v_pk_fma_f32 {p2(x)}, {p2(x)}, {p2(c+2)}, {p2(c)} op_sel:[0,0,1] op_sel_hi:[1,0,1]
                    v_pk_mul_f32 {p2(x)}, {p2(x)}, {p2(a)}
                    v_exp_f32 v{x}, v{x}
                    v_exp_f32 v{x+1}, v{x+1}
                    v_pk_mul_f32 {p2(a)}, {p2(a)}, {p2(a+2)}
                    v_pk_fma_f32 {p2(x)}, {p2(x)}, {p2(c+2)}, {p2(c+2)} op_sel:[0,1,1] op_sel_hi:[1,1,1]
                    v_rcp_f32 v{x}, v{x}
                    v_rcp_f32 v{x+1}, v{x+1}""")
                if t == 2 and not DS: out += mk(f"v_permlane32_swap_b32 v{OUT+1}, v{OUT+3}")
                out += mk(f"v_pk_mul_f32 {p2(a)}, {p2(a)}, {p2(x)}\nv_cvt_pk_bf16_f32 v{OUT+t}, v{a}, v{a+1}")
                continue
            first = [I(f"v_fma_f32 v{a+k}, -v{c}, v{s+k}, v{a+k}", need={("v", a + k): ("G", i), ("v", c + 2): ("C", i)}) for k in range(4)]
            out += first[:2] + mk(f"v_mul_f32 v{x}, v{a}, v{a}\nv_mul_f32 v{x+1}, v{a+1}, v{a+1}")
            out += mk(f"""v_fma_f32 v{x}, v{x}, v{c+2}, v{c+1}
                v_fma_f32 v{x+1}, v{x+1}, v{c+2}, v{c+1}
                v_mul_f32 v{x}, v{x}, v{a}
                v_mul_f32 v{x+1}, v{x+1}, v{a+1}
                v_exp_f32 v{x}, v{x}
                v_exp_f32 v{x+1}, v{x+1}""") + first[2:] + mk(f"""v_fma_f32 v{x}, v{x}, v{c+3}, v{c+3}
                v_fma_f32 v{x+1}, v{x+1}, v{c+3}, v{c+3}
                v_rcp_f32 v{x}, v{x}
                v_rcp_f32 v{x+1}, v{x+1}
                v_mul_f32 v{a}, v{a}, v{a+2}
                v_mul_f32 v{a+1}, v{a+1}, v{a+3}
                v_mul_f32 v{a}, v{a}, v{x}
                v_mul_f32 v{a+1}, v{a+1}, v{x+1}
                v_cvt_pk_bf16_f32 v{OUT+t}, v{a}, v{a+1}""")
            if t == 2 and not DS: out[-9:-9] = mk(f"v_permlane32_swap_b32 v{OUT+1}, v{OUT+3}")
            if DS: out += dstore(i, t)
        if DS:
            if packed: out += dstore(i, 0) + dstore(i, 1) + dstore(i, 2)
            return out + mk(f"v_add_u32 v{vAST}, {192 * 256}, v{vAST}")
        out += mk(f"""s_add_u32 s3, s56, {i * AP}
            v_permlane32_swap_b32 v{OUT}, v{OUT+2}
            v_permlane16_swap_b32 v{OUT}, v{OUT+1}
            v_permlane16_swap_b32 v{OUT+2}, v{OUT+3}""")
        out[-1].put = {("v", OUT + 3): ("O", i)}
        if 0 < i < 7: out[-1:-1] = mk(f"@vm st{i-1}")
        out.append(I(f"buffer_store_dwordx4 v[{OUT}:{OUT+3}], v{vAST}, {SRD}, s3 offen sc1", tag=f"st{i}", need={("v", OUT + 3): ("O", i)}))
        return out

    g = Sched(main)
    LEAD = o.get("lead", 1)
    bar, vcc_busy = {}, []
    for i in range(8):
        s0 = start[i]
        hw = [f"@vm h{i // 2 + 1}"] if i & 1 and i < 7 else []
        slow = i in (1, 3)
        rd, m = stats_in(i)
        if NB:
            so = stats_out(i)
            w0 = o.get("nw1", 36) if slow else 27
            so = g.add(so[:3] + mk(hw) + so[3:], s0 + 24, s0 + w0 + 3, prio=2)
            for x in so[3:]: x["lo"] = s0 + w0 - 1
            r = g.add(rd, s0 + o.get("nr", 43), s0 + 48, after=[(so[-1], 6)], prio=2)
            ck = g.add(mk(f"@lgkm sr{i}") + stats_check(i, rd) + m, s0, start[i + 1] - 1, after=[(r[-1], 5)], prio=1)
            bar[i] = ck[4]
            for x in ck[:5]: x["hi"] = s0 + 56
            vcc_busy.append((ck[3], ck[4]))
        else:
            so = g.add(stats_out(i), s0 + 24, s0 + 30, prio=2)
            bar[i] = g.add(mk(hw + [f"@lgkm sp{i}", "s_barrier"]), s0 + (o.get("bar1", 46) if slow else o.get("bar", 35)), s0 + (52 if slow else 42), after=[(so[-1], 4)], prio=2)[-1]
            r = g.add(rd, s0, s0 + 56, after=[(bar[i], 0)], prio=2)
            g.add(mk(f"@lgkm sr{i}") + m, s0, start[i + 1] - 1, after=[(r[-1], 6)])
        if i > 0:
            ep = g.add(epilogue(i - 1), s0 + 1, s0 + (o.get("epe", 70) if i < 7 else o.get("epe7", 62)))
    for b in range(31):
        r = g.add(reads(b + 1), bstart[b], bstart[b + 1] - 1 - LEAD, pace=True, prio=1, after=[(bar[b // 4], 0)] if b % 8 == 7 else None)
        if b == 0: r1 = r
    for b in range(32):
        for q in range(3):
            k = pstart[b // 4, 5 * (b % 4) + 2 * q] - 1
            if b > 0: g.add(mk(f"@lgkm b{b}_{q}"), k, k, prio=3)
    pb = g.add(mk(f"s_mov_b32 s73, {F2C - F2}") + e.poll_issue(0, PD, "s73"), o.get("pci", 16), o.get("pci", 16) + 3)
    a = e.poll_check(0, PD, "s73")
    cc = g.add([a[0], a[1:]] + mk(f"v_and_b32 v0, 16, v1\nv_cmp_eq_u32 s[28:29], 0, v0\nv_cndmask_b32 v0, v{vTG+1}, v{vTG}, s[28:29]"), 0, start[1] - 1, after=[(pb[-1], o.get("rtb", 32))], prio=2)
    pb2 = g.add(mk(f"s_mov_b32 s73, {F2B - F2}") + e.poll_issue(vPF, PD, "s73"), o.get("pbi", 112), o.get("pbi", 112) + 3, after=[(cc[1], 1)])
    a = e.poll_check(vPF, PD, "s73")
    cb = g.add([a[0], a[1:]] + mk(f"v_and_b32 v{vPF}, 15, v1\nv_lshl_add_u32 v{vPF}, v{vPF}, 6, s70"), 0, 200, after=[(pb2[-1], o.get("rtb", 32))], prio=2)
    e(f"""v_lshl_add_u32 v{T+2}, s{sW}, 10, v{T+6}
        v_lshl_add_u32 v{T+3}, s{sW}, 5, v{T+7}""")
    mv = []
    for c in range(4):
        lo = start[2 * c] + (4 if c == 0 else 0); hi = start[2 * c + 1] + 60
        for ra, ro, wa, wo in ((T + 2, 0, T + 3, 0), (T + 6, 4096, T + 7, 128)):
            mv.append(g.add(mk(f"ds_read_b64_tr_b16 v[{T+4}:{T+5}], v{ra} offset:{10240 * (c % 3) + ro}"), lo, hi, after=[(mv[-1][-1], 2)] if mv else None, prio=1))
            mv.append(g.add(mk(f"ds_write_b64 v{wa}, v[{T+4}:{T+5}] offset:{2816 * c + wo}"), lo, hi + 4, after=[(mv[-1][-1], 12)], prio=1))
    def mix(a, b):
        out = []
        while a:
            out.append(a.pop(0))
            if out[-1].kind == "vm" and b:
                out.append(b.pop(0))
                if out[-1].kind != "vm": out.append(b.pop(0))
        return out + b
    m2, m3 = o.get("m2", 6), o.get("m3", 10)
    parts = [wr[nw0:], chunk(1), grp(45) + dma(vW2, 0, 33, 0, NPK, "pk") + w2_loads(0, 2), mix(chunk(2), w2_loads(2, 2 + m2)), mix(chunk(3), w2_loads(2 + m2, 2 + m2 + m3)), w2_loads(2 + m2 + m3, 35),
             dma(vW2, 5, 58, 10240, 10, "pk"), grp(45) + dma(vW2, NPK, 58, 20480, 15 - NPK, "pk")]
    ld = g.add([x for p in parts for x in p], 0, start[7] + 30)
    first = [sum(len(p) for p in parts[:k]) for k in range(len(parts))]
    for k, a in ((1, cc[1]), (3, cb[1]), (4, bar[2]), (6, bar[4]), (7, bar[6])): ld[first[k]]["after"] = [(a, 0)]
    t0 = o.get("t0", 50)
    t, per = 12.0, (start[6] + (56 if NB else 42) - t0) / (75 + NPK)
    for k, x in enumerate(ld):
        if k == first[1]: t = t0
        vm = x["ins"][0].kind == "vm"
        x["lo"] = int(t) - (0 if vm else 3); x["hi"] = int(t) + (4 if vm else 1)
        if vm: t += 4 if k < first[1] else per if k < first[7] else o.get("pk2", 4)
    s7 = start[7]
    dead = lambda n: s7 + (5 * (n // 3) + 4 if n < 15 else 25 + 3 * (n // 3 - 5) + 2)
    p0 = g.add(f3_issue(0), start[5] + 10, start[5] + 20)
    c0 = g.add(f3_check(0), 0, start[6], after=[(p0[-1], 40)])
    p1 = g.add(f3_issue(1), s7 + o.get("i1", 0), s7 + o.get("i1", 0) + 4, after=[(c0[-1], 1)])
    c1 = g.add(f3_check(1), 0, s7 + 52, after=[(p1[-1], 40)], prio=2)
    nl7 = o.get("nl7", 12)
    it = g.add(late_loads(0, nl7), s7 + (24 if NB else 14), s7 + o.get("x7e", 68), pace=True, win=3, after=[(c0[-1], 0), (ld[-1], 0)])
    if nl7 > 12: it[12]["after"] = [(c1[-1], 0)]
    n = 0
    for x in it:
        if x["ins"][0].kind == "vm":
            x["lo"] = max(x["lo"], dead(n)); x["hi"] = max(x["hi"], x["lo"]); n += 1
    if o.get("gst"):
        for i in range(1, 8): g.add(e.stamp(3 + i if i < 7 else 13), start[i], start[i], prio=3)
    newer = nw0
    r0 = reads(0)
    head = mk(f"v_mov_b32 v{T+4}, 0\nv_mov_b32 v{T+5}, 0\nds_write_b64 v{vSW}, v[{T+4}:{T+5}]\nds_write_b64 v{vSW}, v[{T+4}:{T+5}] offset:512") if NB else []
    for p in range(5):
        it = mk(f"s_waitcnt vmcnt({newer + 8 - 2 * p})") + r0[2 * p: 2 * p + 2]
        if p < 2: head += it
        else: hb = g.add(it, 5 * (p - 2), 5 * (p - 2) + 2, prio=4)
    hb = g.add(mk("s_barrier"), 11, 13, after=[(hb[0], 0)], prio=4)
    r1[0]["after"] = [(hb[-1], 0)]; mv[0][0]["after"] = [(hb[-1], 0)]
    for k, x in enumerate(r1): x["lo"] = 13 + k
    ld[0]["after"] = ld[0]["after"] + [(hb[-1], 0)]; pb[0]["after"] = [(hb[-1], 0)]
    g.add(mk(f"buffer_store_dwordx2 v[{vTG}:{vTG+1}], v198, {SRD}, 0 offen sc1"), 11, 16, after=[(hb[-1], 0)], prio=4)
    h1 = g.add(hd, 0, 76, after=[(ld[first[1] - 1], 0)])
    ld[first[2]]["after"] = [(h1[-1], 0)]
    pw = f3_prewarm(e)
    g.add(pw, 14, start[1] - 1, after=[(h1[-1], 0), (hb[-1], 0)])
    if o.get("fst"): e(e.stamp(2))
    e.pre_g1 = list(e.p)
    e.g1 = head + g.run(); e.g1m = (main, start)
    e(e.g1)
    if o.get("fst"): e(e.stamp(3))
    if o.get("gst"): o["fst"] = 0
    RD, RR, RU, O2 = 50, 82, 86, 120
    A2 = lambda c: 10 + 20 * (c & 1)
    vPW, vPR, vRR, vOS = TA, TA + 1, TA + 2, TA + 3
    nup = o.get("nup", 4)
    e(f"v_add_u32 v{vSW}, s58, v{vL16}\nv_add_u32 v{T+6}, s33, v{vL16}\n@vm pk")
    e([unpark(n) for n in range(35, 35 + nup)])
    e(epilogue(7, True))
    nlt = nl7 + o.get("nlt", 2)
    e(late_loads(nl7, nlt))
    e(f"""v_and_b32 v{T+4}, 15, v1
        v_lshrrev_b32 v{T+5}, 4, v1
        v_mul_u32_u24 v{vPW}, 176, v{T+4}
        v_lshrrev_b32 v{T+4}, 1, v{T+5}
        v_lshl_add_u32 v{vPW}, v{T+4}, 4, v{vPW}
        v_and_b32 v{T+4}, 1, v{T+5}
        v_mul_u32_u24 v{T+4}, 2816, v{T+4}
        v_add_u32 v{vPW}, v{vPW}, v{T+4}
        s_mul_i32 s48, s{sW}, 5632
        s_add_u32 s48, s48, {PART}
        v_add_u32 v{vPW}, s48, v{vPW}""")
    setup2 = mk(f"""v_min_u32 v{T+4}, 39, v1
        v_mul_u32_u24 v{T+5}, 6554, v{T+4}
        v_lshrrev_b32 v{T+5}, 16, v{T+5}
        v_mul_u32_u24 v{T+7}, 10, v{T+5}
        v_sub_u32 v{T+4}, v{T+4}, v{T+7}
        s_lshl_b32 s48, s{sW}, 2
        v_add_u32 v{T+5}, s48, v{T+5}
        v_mul_u32_u24 v{vPR}, 176, v{T+5}
        v_lshl_add_u32 v{vPR}, v{T+4}, 4, v{vPR}
        v_add_u32 v{vRR}, {RES}, v{vPR}
        v_mul_u32_u24 v{vOS}, 1280, v{T+5}
        v_lshl_add_u32 v{vOS}, v{T+4}, 4, v{vOS}
        v_cmp_gt_u32 s[50:51], 40, v1
        v_mov_b32 v{T+5}, 0x40000000
        s_mov_b32 s64, s30
        s_mov_b32 s65, s31
        s_mov_b32 s66, {2048 * 1280}
        s_mov_b32 s67, 0x20000
        v_cndmask_b32 v{vOS}, v{T+5}, v{vOS}, s[50:51]
        s_lshl1_add_u32 s46, s62, s72
        s_mul_i32 s46, s46, {16 * 1280}
        s_mul_i32 s48, s68, 160
        s_add_u32 s46, s46, s48""")
    assert PART == 0
    main = []
    NT = o.get("nt", 4)
    first_use, done = {}, {}
    for c in range(4):
        seq = [(k, t) for k in range(12 - NT) for t in range(5)] + [(k, t) for t in range(5) for k in range(12 - NT, 12)]
        for k, t in seq:
            a = A2(c) + 4 * t
            first_use.setdefault((c, k), len(main))
            need = dict(tagput(w2reg[5 * k + t], ("W2", 5 * k + t))); need.update(tagput(actreg[c, k], ("X", c, k)))
            main.append(I(f"{MF} {r4('v', a)}, {r4(*w2reg[5 * k + t])}, {r4(*actreg[c, k])}, " + ("0" if k == 0 else r4('v', a)), need=need))
            if k == 11:
                main[-1].put = tagput(("v", a), ("P", c)); done[c, t] = len(main) - 1
    def part_write(c):
        return [I(f"ds_write_b128 v{vPW}, {r4('v', A2(c) + 4 * t)} offset:{(c & 1) * 22528 + 32 * t}", tag=f"pw{c}", need=tagput(("v", A2(c) + 4 * t), ("P", c))) for t in range(5)]
    def res_read(c):
        rd = mk(f"ds_read_b128 {r4('v', RR)}, v{vRR} offset:{2816 * c}", tag=f"rr{c}")
        un = mk([f"v_lshlrev_b32 v{RU+2*k}, 16, v{RR+k}\nv_and_b32 v{RU+2*k+1}, 0xffff0000, v{RR+k}" for k in range(4)])
        return rd, un
    def part_read(c):
        return mk([f"ds_read_b128 {r4('v', RD + 8 * w + 4 * hf)}, v{vPR} offset:{(c & 1) * 22528 + 5632 * w + 2816 * hf}" for w in range(4) for hf in range(2)], tag=f"pr{c}")
    def finish(c, packed):
        out = [f"s_add_u32 s47, s46, {c * 512 * 1280}"]
        for w in range(4):
            if packed: out += [f"v_pk_add_f32 v[{RU+2*k}:{RU+2*k+1}], v[{RU+2*k}:{RU+2*k+1}], v[{RD+8*w+2*k}:{RD+8*w+2*k+1}]" for k in range(4)]
            else: out += [f"v_add_f32 v{RU+k}, v{RU+k}, v{RD+8*w+k}" for k in range(8)]
        out += [f"v_cvt_pk_bf16_f32 v{O2+k}, v{RU+2*k}, v{RU+2*k+1}" for k in range(4)]
        out += [f"buffer_store_dwordx4 {r4('v', O2)}, v{vOS}, {SRD2}, s47 offen" + (" sc1" if o.get("osc") else "")]
        return mk(out)
    g = Sched(main, dense=True)
    su = g.add(setup2, 0, 40)
    sg = g.add(f3_signal(7), o.get("sig7", 30), o.get("sig7", 30) + 3, prio=3)
    up = g.add([unpark(n) for n in range(35 + nup, 60)], 0, 28, pace=True)
    b0 = g.add(mk("@lgkm up\ns_barrier"), 33, 34, after=[(up[-1], 4)])
    ll = g.add(late_loads(nlt, 24), 0, o.get("lle", 46), pace=True, win=2, prio=1)
    p2 = g.add(f3_issue(2), o.get("i2", 24), o.get("i2", 24) + 3, prio=2)
    c2 = g.add(f3_check(2), 0, 100, after=[(p2[-1], o.get("rtt", 36)), (sg[-1], 0)], prio=2)
    x2 = g.add(act_loads(2), o.get("i2", 24) + 38, o.get("x2e", 110), pace=True, win=2, after=[(c2[-1], 0), (ll[-1], 0)], prio=1)
    i3 = o.get("i3", 100); r3 = o.get("rt3", 30)
    p3 = g.add(f3_issue(3), i3, i3 + 3, after=[(c2[-1], 1)], prio=2)
    c3 = g.add(f3_check(3) + [e.stamp(5)] * bool(o.get("fst") and e.stamp(5)), 0, i3 + r3 + 6, after=[(p3[-1], r3)], prio=2)
    x3 = g.add(act_loads(3), 66, 239, after=[(c3[-1], 0), (x2[-1], 0)], prio=2)
    for k, x in enumerate(x3[1:]):
        x["lo"] = i3 + r3 + max(0, k - 3) * o.get("p3", 4); x["hi"] = min(x["lo"] + 6, first_use[3, k] - 2)
    for (c, k), n in first_use.items():
        if n and (k <= 12 - NT or c == 3): g.add(mk(f"@vm x{c}_{k if k < 12 - NT or c == 3 else 11}"), n - 1, n - 1, prio=-1)
    prev = su[-1]
    for c in range(4):
        b = 60 * (c + 1)
        rd, un = res_read(c)
        r = g.add(rd, 0, b - 6, after=[(prev, 0)])
        u = g.add(mk(f"@lgkm rr{c}") + un, 0, b - 1 + (10 if c < 3 else 0), after=[(r[-1], 4)])
        pw = part_write(c)
        nin = 5 if c < 3 else 3
        w = g.add(pw[:nin], 0, b + 6, prio=2, after=[(b0[-1], 0)])
        for t in range(nin): w[t]["lo"] = min(done[c, t] + o.get("wd", 6), 239)
        if c < 3:
            br = g.add(mk(f"@lgkm pw{c}\ns_barrier"), 0, b + 14, after=[(w[-1], 5)], prio=2)
            pr = g.add(part_read(c), b + 8, b + 8 + o.get("prs", 10), pace=True, after=[(br[-1], 0)], prio=1)
            prev = g.add(mk(f"@lgkm pr{c}") + finish(c, False), 0, b + 48, after=[(pr[-1], 4), (u[-1], 0)])[-1]
    if o.get("fst"): e(e.stamp(4))
    e.pre_g2 = list(e.p); e.g2 = g.run()
    e(e.g2)
    if o.get("fst"): e(e.stamp(10))
    e(pw[3:]); e("s_waitcnt lgkmcnt(0)\ns_barrier")
    e(part_read(3)); e(finish(3, True))
    if o.get("fst"): e(e.stamp(11)); e("s_waitcnt vmcnt(0)"); e(e.stamp(12))
    e.models = (model_cycles(e.g1), model_cycles(e.g2))
```

```python
import struct, math, sys
from asmlib import I, mk, finalize, Gaps, Sched, model_cycles, align8, align_runs, sizes

NAME = "sequential_preLN__ssm_conv_s4__geglu_ffn__prompt"
def fx(x): return hex(struct.unpack("<I", struct.pack("<f", x))[0])
LOG2E = math.log2(math.e)

EPOCH, F1, FW, F2, F2B, F3, DBG = 0, 0x10000, 0x40000, 0x70000, 0xa0000, 4 << 20, 0xe0000
F2C = (4 << 20) + 0x90000
HOFF = 0x20000
UP = 161 * 256
UT, XT, HT, W1P, W2P, ACT, WS_SIZE = 1 << 20, 4 << 20, 7 << 20, 10 << 20, 14 << 20, 16 << 20, 24 << 20
AP = 192 * 256 + 4096
U0, X0, CH0, CHS = 0, 20480, 36864, 21760
PS, A5, A3, A9, A7 = 832, 0, 3328, 6656, 9984 + 64
KTS = 272
KN = 13376; W4 = 55 * KTS; W4P = 2832; K2 = W4 + 2 * W4P; K3 = K2 + 752
LNU = CH0 + 4 * CHS; LNS = 1344
SLOT = 40960
STP = 3 * SLOT
RES = STP + 2048
RST = 160 * 1024 - 4 * 6144
PART = 0
LDS_BYTES = 160 * 1024
assert LNU + 10752 <= LDS_BYTES and RES + 4 * 2816 <= RST

sW, sCLS, sIDX = 36, 37, 38
SRD = "s[40:43]"; TAG = "s[44:45]"; SRD2 = "s[64:67]"
SPIN = 20000

class K:
    def __init__(self, stop=None, stamps=False, opt=None):
        self.p = []; self.stop = stop; self.stamps = stamps; self.nlab = 0
        self.o = dict(opt or {}); self.in_ffn = self.in_ln = False; self.cold = []
    def __call__(self, x, **kw): self.p += mk(x, **kw)
    def lab(self, s):
        self.nlab += 1; return f"L_{s}_{self.nlab}"
    def stamp(self, k):
        if self.o.get("nost") and k and k != self.o.get("st"): return []
        if self.o.get("fst") and not self.in_ffn and (k not in (0, 1, 6, 7, 8, 13) or (k == 1 and self.in_ln)): return []
        return mk(f"s_memrealtime s[{74 + 2 * k}:{75 + 2 * k}]") if self.stamps else []

    vSIG, vTAG = 177, 178
    def signal_setup(self):
        return mk(f"""s_lshl_b32 s48, s2, 6
            v_lshrrev_b32 v{self.vSIG}, 3, v0
            v_lshl_add_u32 v{self.vSIG}, v{self.vSIG}, 14, s48
            v_and_b32 v{self.vTAG}, 7, v0
            v_lshl_add_u32 v{self.vSIG}, v{self.vTAG}, 3, v{self.vSIG}
            s_min_u32 s48, s{sW}, 1
            s_lshl_b32 s48, s48, 30
            v_add_u32 v{self.vSIG}, s48, v{self.vSIG}""")
    def prewarm(self):
        if not self.o.get("pwm", 1): return []
        return mk(f"""v_lshrrev_b32 v174, 3, v1
            s_lshl_b32 s48, s2, 6
            v_lshl_add_u32 v174, v174, 14, s48
            v_and_b32 v175, 7, v1
            v_lshl_add_u32 v174, v175, 3, v174
            s_mul_i32 s48, s{sW}, {FW - F1}
            s_add_u32 s48, s48, {F1}
            buffer_store_dwordx2 v[2:3], v174, {SRD}, s48 offen sc1
            s_mov_b32 s48, {F2C}
            buffer_store_dwordx2 v[2:3], v{self.vSIG}, {SRD}, s48 offen sc1""")
    def extra_lanes(self, dst, code):
        return mk(code + f"""
            v_lshrrev_b32 v{dst}, 3, v0
            v_cmp_eq_u32 vcc, 8, v{dst}
            v_lshl_add_u32 v{dst}, v1, 3, s48
            v_cndmask_b32 v{dst}, v{self.vSIG}, v{dst}, vcc""")
    def hint_setup(self, dst, sub):
        return self.extra_lanes(dst, f"s_lshl_b32 s48, s2, 7\ns_add_u32 s48, s48, {HOFF}\ns_sub_u32 s48, s48, {sub}")
    def hint_wait(self, region):
        L = self.lab("hint")
        return mk(f"""s_sub_u32 s48, s2, 160
            s_lshl_b32 s48, s48, 7
            s_add_u32 s48, s48, {region + HOFF}
            v_mov_b32 v196, s48
            s_cmp_lg_u32 s{sW}, 0
            s_cbranch_scc1 {L}""") + self.poll_issue(196, 192) + self.poll_check(196, 192, slp=4) + mk(f"{L}:\ns_barrier")
    def signal_all(self, region, va=None):
        return mk(f"s_mov_b32 s48, {region}\nbuffer_store_dwordx2 v[{self.vTAG}:{self.vTAG+1}], v{va or self.vSIG}, {SRD}, s48 offen sc1")
    def poll_issue(self, va, vd, so="0"):
        return mk(f"buffer_load_dwordx2 v[{vd}:{vd+1}], v{va}, {SRD}, {so} offen sc1")
    def poll_check(self, va, vd, so="0", slp=2):
        A, B = self.lab("retry"), self.lab("seen")
        self.cold.append(f"""{A}:
    s_mov_b32 s49, 0
{A}_l:
    s_mov_b64 exec, vcc
    s_sleep {self.o.get('slp', slp)}
    buffer_load_dwordx2 v[{vd}:{vd+1}], v{va}, {SRD}, {so} offen sc1
    s_add_u32 s49, s49, 1
    s_waitcnt vmcnt(0)
    v_cmp_ne_u64 vcc, {TAG}, v[{vd}:{vd+1}]
    s_mov_b64 exec, -1
    s_cmp_ge_u32 s49, {SPIN}
    s_cbranch_scc1 {B}
    s_nop 1
    s_cbranch_vccnz {A}_l
    {f"s_mov_b32 s{76 + 2 * len(self.cold)}, s49" if self.o.get("cnt") else ""}
    s_branch {B}""")
        br = I(f"s_cbranch_vccnz {A}")
        br.uses |= {("v", va), ("v", vd), ("v", vd + 1)} | ({("s", int(so[1:]))} if so != "0" else set())
        c = I(f"v_cmp_ne_u64 vcc, {TAG}, v[{vd}:{vd+1}]"); c.put = br.need = {("vcc", 0): A}
        return [c, br] + mk(f"{B}:")

    def prologue(self):
        e = self
        e(f"s_cmp_ge_u32 s2, 256\ns_cbranch_scc1 L_end")
        e(self.stamp(0))
        if e.o.get("cnt"): e([f"s_mov_b32 s{r}, 0" for r in range(76, 102, 2)])
        e(f"""s_load_dwordx16 s[4:19], s[0:1], 0
            s_load_dwordx16 s[20:35], s[0:1], 64
            s_getpc_b64 s[46:47]
            L_pc:
            v_and_b32 v1, 63, v0
            v_lshrrev_b32 v2, 6, v0
            s_lshr_b32 s{sIDX}, s2, 3
            v_readfirstlane_b32 s{sW}, v2
            s_mul_i32 s48, s{sIDX}, 14
            v_min_u32 v3, 13, v0
            v_add_u32 v3, s48, v3
            v_lshlrev_b32 v3, 7, v3
            v_min_u32 v3, L_code_end-{NAME}_kernel-64, v3
            global_load_dword v4, v3, s[46:47]
            s_and_b32 s{sCLS}, s2, 7
            v_lshrrev_b32 v5, 5, v0
            v_and_b32 v6, 31, v0
            s_lshl_b32 s48, s2, 3
            v_add_u32 v7, s48, v5
            v_mul_u32_u24 v7, 1280, v7
            v_lshl_add_u32 v2, v6, 2, v7
            v_lshl_add_u32 v7, v6, 4, v7""")

    def x_loads(self):
        self(f"""global_load_dwordx4 v[10:13], v7, s[4:5]
            global_load_dwordx4 v[14:17], v7, s[4:5] offset:512
            global_load_dword v18, v2, s[4:5] offset:1024
            global_load_dword v19, v2, s[4:5] offset:1152
            s_mov_b32 s40, s34
            s_mov_b32 s41, s35
            s_mov_b32 s42, {WS_SIZE}
            s_mov_b32 s43, 0x20000
            v_mov_b32 v138, {EPOCH}""")
    def epoch_load(self):
        self(f"buffer_load_dword v{self.vTAG+1}, v138, {SRD}, 0 offen sc1")

    def conv_param_loads(self):
        e = self
        e(f"""s_mul_i32 s50, s{sCLS}, 80
            s_lshl2_add_u32 s50, s{sIDX}, s50
            s_add_u32 s50, s50, s{sW}
            s_mul_i32 s48, s50, 384
            v_lshl_add_u32 v34, v1, 2, s48
            v_lshl_add_u32 v35, v1, 1, s48
            s_lshl_b32 s48, s50, 1
            v_mov_b32 v36, s48
            global_load_ushort v32, v36, s[18:19]""")
        for a in range(6):
            e(f"global_load_dword v{20+a}, v34, s[{6+2*a}:{7+2*a}]")
        for a in range(6):
            e(f"global_load_ushort v{26+a}, v35, s[{6+2*a}:{7+2*a}] offset:256")
        e("global_load_ushort v33, v36, s[20:21]")

    def ln_consts(self):
        self(f"""v_mul_u32_u24 v141, {LNS}, v5
            v_add_u32 v141, {LNU}, v141
            v_lshl_add_u32 v140, v6, 2, v141
            v_add_u32 v140, 1024, v140
            v_lshl_add_u32 v141, v6, 4, v141
            v_and_b32 v143, 3, v5
            v_mul_u32_u24 v143, {2 * LNS}, v143
            v_add_u32 v143, {LNU + 1280}, v143
            v_mov_b32 v2, 0
            v_mov_b32 v3, 0
            ds_write_b64 v143, v[2:3]
            v_lshrrev_b32 v139, 2, v5
            v_lshl_add_u32 v143, v139, 1, v143
            v_bfe_u32 v142, v1, 2, 2
            v_mul_u32_u24 v142, {LNS}, v142
            v_lshrrev_b32 v139, 4, v1
            v_lshl_add_u32 v142, v139, 5, v142
            v_and_b32 v139, 3, v1
            v_lshl_add_u32 v142, v139, 3, v142
            s_lshl_b32 s48, s{sW}, 7
            s_add_u32 s48, s48, {LNU}
            v_add_u32 v142, s48, v142
            s_lshr_b32 s51, s2, 2
            s_and_b32 s48, s51, 7
            s_lshl_b32 s49, s2, 1
            s_and_b32 s49, s49, 4
            s_xor_b32 s48, s48, s49
            v_xor_b32 v139, s48, v139
            v_lshrrev_b32 v8, 2, v1
            v_lshlrev_b32 v8, 8, v8
            v_lshl_add_u32 v8, v139, 4, v8
            v_cmp_gt_u32 vcc, 132, v0
            v_mov_b32 v37, 0x40000000
            s_mul_i32 s51, s51, {UP}
            s_and_b32 s48, s2, 1
            v_cndmask_b32 v37, v37, v8, vcc
            s_lshl_b32 s48, s48, 7
            s_add_u32 s51, s51, s48
            s_lshl_b32 s48, s{sW}, 12
            s_add_u32 s51, s51, s48
            s_add_u32 s51, s51, {UT}
            s_add_u32 s52, s51, 16384
            s_add_u32 s53, s51, 32768
            s_mov_b32 s54, 0x3f803f80""")
        self(self.signal_setup()); self(self.prewarm())

    def ln1(self):
        keep, self.p, self.in_ln = self.p, [], True
        e = self
        for i in range(10):
            e(f"v_dot2c_f32_bf16 v2, s54, v{10+i}\nv_dot2c_f32_bf16 v3, v{10+i}, v{10+i}")
        e(self.stamp(1))
        un = [f"v_lshlrev_b32 v{80+2*i}, 16, v{10+i}" for i in range(10)] + [f"v_and_b32 v{81+2*i}, 0xffff0000, v{10+i}" for i in range(10)]
        e(un.pop()); e(un.pop()); e(un.pop())
        for m in ("quad_perm:[1,0,3,2]", "quad_perm:[2,3,0,1]", "row_half_mirror", "row_mirror"):
            e(f"v_add_f32_dpp v2, v2, v2 {m} row_mask:0xf bank_mask:0xf\nv_add_f32_dpp v3, v3, v3 {m} row_mask:0xf bank_mask:0xf")
            e(un.pop())
        e("v_mov_b32 v4, v2\nv_mov_b32 v5, v3"); e(un.pop()); e(un.pop())
        e("v_permlane16_swap_b32 v4, v2\nv_permlane16_swap_b32 v5, v3")
        e(f"""v_add_f32 v2, v2, v4
            v_add_f32 v3, v3, v5
            v_mul_f32 v2, {fx(1/640)}, v2
            v_mul_f32 v3, {fx(1/640)}, v3
            v_fma_f32 v3, -v2, v2, v3
            v_max_f32 v3, 0, v3
            v_cvt_pk_bf16_f32 v2, v2, v3
            v_and_b32 v3, 0xffff0000, v2
            v_add_f32 v3, {fx(1e-5)}, v3
            v_cvt_pk_bf16_f32 v3, v3, v3
            v_lshlrev_b32 v3, 16, v3
            v_sqrt_f32 v3, v3
            v_lshlrev_b32 v2, 16, v2
            v_cvt_pk_bf16_f32 v3, v3, v3
            v_lshlrev_b32 v3, 16, v3
            v_rcp_f32 v4, v3""")
        e(un)
        e("v_mul_f32_e64 v6, -v2, v4")
        for i in range(10):
            e(f"v_pk_fma_f32 v[{80+2*i}:{81+2*i}], v[{80+2*i}:{81+2*i}], v[4:5], v[6:7] op_sel_hi:[1,0,0]")
        for i in range(10):
            e(f"v_cvt_pk_bf16_f32 v{128+i}, v{80+2*i}, v{81+2*i}")
        e("ds_write_b128 v141, v[128:131]\nds_write_b128 v141, v[132:135] offset:512\nds_write2_b32 v140, v136, v137 offset1:32")
        e(f"ds_write_b16_d16_hi v143, v3 offset:{LNS}\nds_write_b16_d16_hi v143, v2 offset:{LNS + 4}")
        e("s_waitcnt lgkmcnt(0)\ns_barrier")
        for k in range(3):
            e(f"""ds_read_b64_tr_b16 v[{100+4*k}:{101+4*k}], v142 offset:{512*k}
                ds_read_b64_tr_b16 v[{102+4*k}:{103+4*k}], v142 offset:{512*k + 4*LNS}""")
        for k in range(3):
            e(f"buffer_store_dwordx4 v[{100+4*k}:{103+4*k}], v{8 if k < 2 else 37}, {SRD}, s{51+k} offen sc1", tag="ln")
        e(self.stamp(2))
        out, self.p, self.in_ln = self.p, keep, False
        return out

    def ln_publish(self):
        return mk(f"""v_readfirstlane_b32 s44, v{self.vTAG+1}
            s_add_u32 s44, s44, 1
            s_xor_b32 s45, s44, 0x5bd1e995
            v_mov_b32 v{self.vTAG}, s44
            v_mov_b32 v{self.vTAG+1}, s45
            @vm ln
            s_barrier""") + self.signal_all(F1) + self.stamp(3)

    TB0 = 200
    vUB, vBB, vHST, vDMA, vPOLL, vST = 200, 208, 209, 210, 211, 212
    vAB, vBW, vR2, vR3, vK2A, vK3A = 216, 217, 218, 220, 222, 223
    vKTX, vKTY, vKNW, vK2W, vK3W, vW4S, vW4D, vW4S3, vW4D3, vZB = range(224, 234)
    vBAND, vL16 = 236, 252

    def lane_table(self):
        e = self
        tab = {r: [0] * 64 for r in range(200, 252)}
        ua = lambda ap, hh, s: 256 * ap + 128 * (hh & 1) + 16 * ((4 * (hh >> 1) + s) ^ (ap & 7))
        for l in range(64):
            col, h, q, r, c, h2 = l & 15, l >> 4, (l >> 2) & 3, l & 3, l & 31, l >> 5
            for j in range(8): tab[e.vUB + j][l] = U0 + 2048 + ua(col - j, h, 0)
            o8 = 2 * col - 1 + h
            tab[e.vBB][l] = U0 + 4096 + ua(o8 >> 2, o8 & 3, 0)
            tab[e.vHST][l] = 40960 * col + 16 * h
            tab[e.vDMA][l] = UT + 40960 + UP * h + 16 * col
            tab[e.vPOLL][l] = F1 + 64 * l
            for s in range(4): tab[e.vST + s][l] = U0 + 2048 + ua(col, h, s)
            tab[e.vAB][l] = 32 * (q - h) + 8 * r
            tab[e.vBW][l] = PS * ((h + 3) & 3) + 8 * (col + ((h + 7) >> 2))
            for mt in range(2):
                v = 2 * r + mt + q
                tab[e.vR2 + mt][l] = (A3 if q & 1 else A5) + PS * (v & 3) + 8 * ((v >> 2) + 2 * h)
                v = 2 * r + mt + 2 * q
                tab[e.vR3 + mt][l] = (A7 if q & 1 else A9) + PS * (v & 3) + 8 * ((v >> 2) + 4 * h)
            tab[e.vK2A][l] = 16 * (h - col); tab[e.vK3A][l] = 8 * (2 * h - col)
            tab[e.vKTX][l] = KTS * (c - 16 if c > 22 else c) + 16 * h2
            tab[e.vKTY][l] = KTS * c + 16 * h2
            tab[e.vKNW][l] = 8 * (2 * c + h2)
            tab[e.vK2W][l] = -(128 * h2 + 4 * c); tab[e.vK3W][l] = -(128 * h2 + 2 * c)
            tab[e.vW4S][l] = 8 * l
            tab[e.vW4D][l] = W4P * (l & 1) + 32 * (l >> 1)
            tab[e.vW4S3][l] = {0: 1032, 1: 1040, 24: 1048, 25: 1056}.get(l, 0)
            tab[e.vW4D3][l] = tab[e.vW4D][l] + 2176 if l < 40 else 0
            tab[e.vZB][l] = {16: KN, 17: KN + 1040, 18: KN + 1056}.get(l, (A5, A3, A9, A7)[q] + PS * r)
            for rr in range(e.vAB, e.vZB + 1): tab[rr][l] += CH0
            for b, w in enumerate((2, 1, 4, 3)):
                for m in range(4):
                    on = lambda k: 0x3F80 if abs(8 * h + k - 4 - col) <= w else 0
                    tab[e.vBAND + 4 * b + m][l] = on(2 * m) | on(2 * m + 1) << 16
        words = [tab[200 + 4 * k + i][l] for k in range(13) for l in range(64) for i in range(4)]
        return "\n".join(".long " + ",".join(hex(x) if x > 99999 else str(x) for x in words[n:n + 16]) for n in range(0, len(words), 16))
    def table_loads(self, ks):
        return [I(f"global_load_dwordx4 v[{200+4*k}:{203+4*k}], v{254 + (k >= 8)}, s[46:47] offset:{1024 * (k % 8) - 4096}") for k in ks]

    def conv_consts_a(self):
        e = self
        e(f"""s_mul_i32 s70, s{sW}, {CHS}
            v_lshlrev_b32 v{e.vL16}, 4, v1
            v_add_u32 v254, L_table-L_pc+4096, v{e.vL16}
            v_add_u32 v255, 8192, v254
            v_mov_b32 v190, 0
            v_mov_b32 v191, 0
            v_mov_b32 v192, 0
            v_mov_b32 v193, 0
            v_lshlrev_b32 v186, 4, v0
            v_add_u32 v187, s70, v{e.vL16}
            v_mov_b32 v188, 0x3f80
            s_mov_b32 m0, s70
            ds_write_b128 v186, v[190:193] offset:{U0}
            ds_write_b128 v187, v[190:193] offset:{CH0 + W4}
            ds_write_b128 v187, v[190:193] offset:{CH0 + W4 + W4P}
            ds_write_b128 v187, v[190:193] offset:{CH0 + K2}
            ds_write_b128 v187, v[190:193] offset:{CH0 + K2 + 112}
            ds_write_addtid_b32 v188 offset:{CH0}
            s_lshl_b32 s59, s{sW}, 12""")
    def conv_fix(self):
        e = self
        a = mk(f"""v_add_u32 v{e.vKTX}, s70, v{e.vKTX}
            v_add_u32 v{e.vKTY}, s70, v{e.vKTY}
            s_lshl_b32 s48, s{sCLS}, 14
            s_lshl_b32 s49, s{sW}, 12
            s_add_u32 s48, s48, s49
            v_add_u32 v{e.vPOLL}, s48, v{e.vPOLL}
            s_mul_i32 s49, s{sW}, {16 * UP}
            v_add_u32 v176, s49, v{e.vDMA}
            s_lshr_b32 s48, s50, 2
            s_sub_u32 s48, 160, s48
            s_lshl_b32 s48, s48, 8
            v_subrev_u32 v{e.vDMA}, s48, v176
            v_add_u32 v{e.vZB}, s70, v{e.vZB}""")
        b = mk([f"v_add_u32 v{r}, s55, v{r}" for r in list(range(e.vKNW, e.vZB)) + list(range(e.vAB, e.vKTX))])
        b += mk(f"s_lshl_b32 s68, s{sW}, 4") + mk([f"v_xor_b32 v{r}, s68, v{r}" for r in range(e.vUB, e.vBB + 1)])
        b += mk(f"""s_lshl_b32 s68, s50, 2
            s_and_b32 s68, s68, 32
            v_xor_b32 v{e.vHST}, s68, v{e.vHST}
            s_lshl_b32 s68, s50, 6
            v_add_u32 v{e.vHST}, s68, v{e.vHST}
            s_mul_i32 s69, s{sIDX}, {-7 * 64}
            s_mul_i32 s48, s{sCLS}, {19 * 64}
            s_add_u32 s69, s69, s48""") + e.hint_setup(199, "s69")
        b += mk(f"s_add_u32 s48, s69, {F2B}\nv_add_u32 v{e.vSIG}, s48, v{e.vSIG}") + e.extra_lanes(198, f"s_min_u32 s48, s2, 1\ns_lshl_b32 s48, s48, 30")
        return a, b

    @staticmethod
    def cmul(d, z, w, t):
        return [f"v_pk_mul_f32 v[{t}:{t+1}], v[{z}:{z+1}], v[{w}:{w+1}] op_sel:[1,1] op_sel_hi:[1,0] neg_lo:[1,0]",
                f"v_pk_fma_f32 v[{d}:{d+1}], v[{z}:{z+1}], v[{w}:{w+1}], v[{t}:{t+1}] op_sel_hi:[0,1,1]"]

    def kgen_setup(self, j):
        out = []
        for a in range(6):
            src = 20 + a if j < 2 else 26 + a
            out.append(f"v_and_b32 v{146+a}, 0xffff0000, v{src}" if j == 1 else f"v_lshlrev_b32 v{146+a}, 16, v{src}")
        out += f"""v_mul_f32 v146, s56, v146
            v_mul_f32 v147, s57, v147
            v_mul_f32 v148, s58, v148
            v_mul_f32 v149, s58, v149
            v_mul_f32 v152, 0x41000000, v146
            v_mul_f32 v153, 0xc1000000, v147
            v_mul_f32 v154, 0x43800000, v146
            v_mul_f32 v155, 0x43800000, v147
            v_fract_f32 v147, v147
            v_fract_f32 v153, v153
            v_fract_f32 v155, v155
            v_exp_f32 v146, v146
            v_mul_f32 v44, v150, v148
            v_cos_f32 v38, v147
            v_mul_f32 v45, v150, v149
            v_sin_f32 v39, v147
            v_fma_f32 v44, -v151, v149, v44
            v_exp_f32 v152, v152
            v_fmac_f32 v45, v151, v148
            v_cos_f32 v40, v153
            v_mul_f32 v38, v146, v38
            v_sin_f32 v41, v153
            v_mul_f32 v39, v146, v39
            v_exp_f32 v154, v154
            v_mul_f32 v40, v152, v40
            v_cos_f32 v42, v155
            v_mul_f32 v41, v152, v41
            v_sin_f32 v43, v155
            v_mul_f32 v42, v154, v42
            v_mul_f32 v43, v154, v43""".split("\n")
        return mk(out)

    def kgen_tables(self):
        e = self
        W1, W8, W256 = 38, 40, 42
        rows = [0, 1, 2, 3, 4, 5, 6, 7, 256, 258, 260, 1288, 260, 262, 264, 1800, 516, 520, 1032, None, 772, 776, 1544]
        xs = [(("x", 0), None, None)] + [(("x", x), ("x", x - 1), "w1") for x in range(1, 9)] + [(("x", x), ("x", x - 256), "w256") for x in (256, 258, 260, 262, 264, 516, 520, 772, 776, 1032, 1288, 1544, 1800)]
        ys = [(("y", 1), None, None)] + [(("y", c), ("y", c - 1), "w8") for c in range(2, 32)]
        ny, nx = e.o.get("ky", 8), e.o.get("kx", 5)
        batches = [ys[len(ys) * k // ny: len(ys) * (k + 1) // ny] for k in range(ny)] + [xs[len(xs) * k // nx: len(xs) * (k + 1) // nx] for k in range(nx)]
        last = {}
        for b, its in enumerate(batches):
            for d, s, w in its:
                last[d] = max(last.get(d, b), b)
                if s: last[s] = b
        reg = {"w1": W1, "w8": W8, "w256": W256, ("y", 1): W8, ("x", 0): 44}
        free = [46, 48, 50, 52, 54, 56, 62, 168, 170, 172, 174, 144]
        out = []
        for b, its in enumerate(batches):
            mul, cvt, st = [], [], []
            for k, (d, s, w) in enumerate(its):
                if s:
                    reg[d] = free.pop(0)
                    mul += e.cmul(reg[d], reg[s], reg[w], 58 + 2 * (k & 1))
                if d != ("x", 8):
                    o = 156 + len(cvt)
                    cvt.append(f"v_cvt_pk_bf16_f32 v{o}, v{reg[d]}, v{reg[d]+1}")
                    for r in ([d[1]] if d[0] == "y" else [32 + n for n, x in enumerate(rows) if x == d[1]]):
                        st.append(f"ds_write_addtid_b32 v{o} offset:{CH0 + KTS * r}")
            for d in [d for d, l in last.items() if l == b and d not in (("y", 1), ("x", 0))]: free.append(reg[d])
            out.append((mk(mul), mk(cvt), mk(st)))
        return out, ny

    def kgen(self):
        e = self
        e(f"""v_lshlrev_b32 v32, 16, v32""")
        e(f"""
            v_mul_f32 v32, {fx(LOG2E)}, v32
            v_exp_f32 v32, v32
            v_lshlrev_b32 v33, 16, v33
            v_cvt_pk_bf16_f32 v32, v32, v32
            v_lshlrev_b32 v32, 16, v32
            v_mul_f32 v34, {fx(LOG2E)}, v32
            v_mul_f32 v35, 0.15915494, v32
            v_readfirstlane_b32 s58, v32
            v_readfirstlane_b32 s56, v34
            v_readfirstlane_b32 s57, v35
            s_mov_b32 s55, s70""")
        drip = []
        def wdrip():
            w = e.w1_pack_issue(); drip.extend(w[k:k + 4] for k in range(0, 16, 4))
        ho = e.o.get("ho", 3)
        if ho: drip.extend([i] for i in e.table_loads(range(9, 13)))
        elif e.o.get("wl", 1) == 1: wdrip()
        def pub():
            if e.o.get("wl", 1) == 2: wdrip()
            return (e.walk("B", 0) if e.o.get("wkb", 3) == 5 else []) + e.ln_publish()
        def gather():
            a, b = e.gather(); drip.extend(b)
            for k, i in enumerate(e.table_loads(range(9, 13)) if not ho else []): drip[-4 + k] = drip[-4 + k][:3] + [i] + drip[-4 + k][3:]
            return a
        def pack():
            drip.extend([i] for i in e.w1_pack_stores())
            return e.w1_pack_perm() + e.stamp(9)
        hooks = {e.o.get("pub", 7): pub,
                 e.o.get("p1i", 23): lambda: e.poll_issue(e.vPOLL, 18),
                 e.o.get("pk", 17): pack,
                 e.o.get("p1c", 29): gather,
                 e.o.get("pw", 32): lambda: e.w1_publish(163) + e.stamp(12)}
        fix, e.late = e.conv_fix()
        hooks[e.o.get("fix", 6)] = lambda: fix
        if ho: hooks[e.o.get("pk", 17)] = hooks[e.o.get("pw", 32)] = lambda: []
        assert len(hooks) == 6 and e.o.get("pk", 17) < e.o.get("p1c", 29)
        xrd = lambda: mk([f"ds_read_b128 v[{64+8*ks}:{67+8*ks}], v{e.vKTX} offset:{32*ks + 32*KTS}" for ks in range(8)])
        yrd = lambda: mk([f"ds_read_b128 v[{68+8*ks}:{71+8*ks}], v{e.vKTY} offset:{32*ks}" for ks in range(8)])
        mfs = lambda j: [I(f"v_mfma_f32_32x32x16_bf16 v[128:143], v[{64+8*ks}:{67+8*ks}], v[{68+8*ks}:{71+8*ks}], " + ("0" if j == 0 and ks == 0 else "v[128:143]")) for ks in range(8)]
        n, mf, xr, ids = 0, [], [], e.ffn_ids()
        for j in range(3):
            e(e.kgen_setup(j))
            pend, yr = [], yrd()
            tb, ny = e.kgen_tables()
            for b, (mul, cvt, st) in enumerate(tb):
                e(mul)
                for _ in range(-(-len(mf) // (ny + 1 - b)) if b <= ny else 0):
                    e(mf.pop(0)); e(ids.pop(0))
                e(pend)
                for _ in range(min(len(xr), -(-8 // ny))): e(xr.pop(0))
                if b >= ny:
                    assert not mf and not xr
                    for _ in range(-(-len(yr) // (len(tb) - b))): e(yr.pop(0))
                if drip: e(drip.pop(0))
                if n in hooks: e(hooks[n]())
                e(cvt)
                pend = st; n += 1
            e(pend)
            xr, mf = xrd(), mfs(j)
            for _ in range(2 if j < 2 else 8): e(xr.pop(0))
        e(f"ds_write_b128 v{e.vZB}, v[190:193]")
        assert not drip
        e(e.stamp(11))
        if ho: e(f"s_lshl_b32 s48, s{sCLS}, 14\ns_add_u32 s48, s48, {F1 + 160 * 64}\nv_max_u32 v{e.vPOLL}, s48, v{e.vPOLL}")
        fwi = mk(f"s_mov_b32 s70, {FW - F1}") + e.poll_issue(e.vPOLL, 234, "s70")
        if e.o.get("fwi", 1) == 0: e(fwi)
        e(ids); e(e.late[:16])
        for k, m in enumerate(mf):
            e(m); e(e.late[16 + 5 * k: 21 + 5 * k])
        assert len(e.late) <= 56
        R = 128
        e(f"""v_cmp_eq_u32 vcc, 0, v1
            s_mov_b32 s71, 0xffff
            v_cndmask_b32 v33, 0, v33, vcc
            v_add_f32 v{R}, v{R}, v33
            v_cvt_pk_bf16_f32 v20, v{R}, v{R+1}
            v_cvt_pk_bf16_f32 v21, v{R+2}, v{R+3}
            ds_write_b64 v{e.vKNW}, v[20:21] offset:{KN + 16}""")
        e(e.w4_reads(0))
        e(f"""v_cvt_pk_bf16_f32 v22, v{R+4}, v{R+4}
            v_cvt_pk_bf16_f32 v23, v{R+5}, v{R+6}
            v_cvt_pk_bf16_f32 v24, v{R+6}, v{R+6}
            v_cvt_pk_bf16_f32 v25, v{R+6}, 0
            v_cvt_pk_bf16_f32 v26, 0, v{R+9}
            v_cvt_pk_bf16_f32 v27, v{R+9}, 0
            v_cvt_pk_bf16_f32 v28, v{R+9}, v{R+8}
            v_cvt_pk_bf16_f32 v29, v{R+10}, v{R+7}
            ds_write_b64 v{e.vKNW}, v[22:23] offset:{KN + 16 + 512}
            ds_write_b32 v{e.vK2W}, v28 offset:{K2 + 508}
            ds_write_b16 v{e.vK3W}, v29 offset:{K3 + 254}
            ds_write_b16_d16_hi v{e.vK3W}, v29 offset:{K3 + 190}
            s_mov_b32 exec_lo, 0
            s_mov_b32 exec_hi, 0x80000000
            ds_write_b64 v{e.vKNW}, v[24:25] offset:{KN + 16 + 1024 - 504}
            ds_write2_b32 v{e.vK3W}, v26, v27 offset0:0 offset1:1
            s_mov_b64 exec, -1""".replace(f"ds_write2_b32 v{e.vK3W}, v26, v27 offset0:0 offset1:1", f"ds_write_b32 v{e.vKNW}, v26 offset:{KN + 16 + 1044 - 504}\nds_write_b32 v{e.vKNW}, v27 offset:{KN + 16 + 1048 - 504}"))
        if e.o.get("pw", 32) == 99: e(e.w1_publish(163) + e.stamp(12))
        e(e.w4_build(0))
        if e.o.get("fwi", 1) == 1: e(fwi)
        e.fwi = fwi
        e(self.stamp(5))

    W4S, W4O = 92, 128
    def w4_reads(self, rnd):
        e = self
        a, off = (e.vW4S, KN + 8 + 512 * rnd) if rnd < 2 else (e.vW4S3, KN)
        r = e.W4S + 4 * (rnd & 1)
        return mk(f"ds_read_b64 v[{r}:{r+1}], v{a} offset:{off}\nds_read_b64 v[{r+2}:{r+3}], v{a} offset:{off + 8}", tag=f"w4r{rnd}")
    def w4_build(self, rnd):
        e = self
        p0, p1, o0, o1 = (e.W4S + 4 * (rnd & 1) + i for i in range(4))
        d = e.W4O
        a, off = (e.vW4D, W4 + 128 + 1024 * rnd) if rnd < 2 else (e.vW4D3, W4)
        return mk(f"""v_bfi_b32 v{d}, s71, v{o0}, v{p1}
            v_bfi_b32 v{d+1}, s71, v{p1}, v{p0}
            v_alignbit_b32 v{d+2}, v{o0}, v{o0}, 16
            v_alignbit_b32 v{d+3}, v{p1}, v{p1}, 16
            v_bfi_b32 v{d+4}, s71, v{o1}, v{o0}
            v_mov_b32 v{d+5}, v{d}
            v_alignbit_b32 v{d+6}, v{o1}, v{o1}, 16
            v_mov_b32 v{d+7}, v{d+2}
            ds_write_b128 v{a}, v[{d}:{d+3}] offset:{off}
            ds_write_b128 v{a}, v[{d+4}:{d+7}] offset:{off + 16}""")

    def gather(self):
        e = self
        out = e.stamp(10) + e.poll_check(e.vPOLL, 18) + e.stamp(4)
        items = []
        for lds, va in ((U0 + 4096, e.vDMA), (X0, 176)):
            for k in range(4):
                items.append(mk(f"s_add_u32 m0, s59, {lds + 1024 * k}") + mk(f"global_load_lds_dwordx4 v{va}, s[34:35] sc1", tag="u") +
                             mk("s_mov_b32 m0, s70") + (mk(f"v_add_u32 v{va}, {4 * UP}, v{va}") if k < 3 else []))
        return out, items

    def w1_loads(self):
        out = []
        for n in range(60):
            gq, k = n // 15, n % 15
            b = 4 + 4 * gq + 2 * (k // 8)
            out.append(I(f"global_load_dwordx4 a[{4*n}:{4*n+3}], v{self.vL16}, s[{b}:{b+1}] offset:{1024 * (k % 8) - 4096} sc1", tag="w1", put={("a", 4 * n): "W1"}))
        return [out[n] for n in self.W1_ORDER]

    W1_ORDER = [n for n in range(60) if n // 3 % 5 < 4] + [n for n in range(60) if n // 3 % 5 == 4]
    def ffn_ids(self):
        nb = self.o.get("xm", 2)
        return mk(f"""s_and_b32 s62, s{sCLS}, {(1 << (nb - 1)) - 1}
            s_lshl_b32 s62, s62, {5 - nb}
            s_lshr_b32 s67, s{sIDX}, {nb}
            s_add_u32 s62, s62, s67
            s_lshr_b32 s63, s{sCLS}, {nb - 1}
            s_and_b32 s67, s{sIDX}, {(1 << nb) - 1}
            s_lshl{nb}_add_u32 s63, s63, s67
            s_lshl2_add_u32 s60, s63, s{sW}
            s_mul_i32 s60, s60, 61440
            s_add_u32 s60, s60, {W1P + 4096}
            s_add_u32 s39, s{sW}, {"s62" if self.o.get("rot", 0) else 0}
            s_and_b32 s39, s39, 3""") + [i for gq in range(4) for i in mk(f"""s_add_u32 s67, s39, {gq}
            s_and_b32 s67, s67, 3
            s_mul_i32 s67, s67, 15360
            s_add_u32 s67, s67, s60
            s_add_u32 s{4+4*gq}, s34, s67
            s_addc_u32 s{5+4*gq}, s35, 0
            s_add_u32 s{6+4*gq}, s{4+4*gq}, 8192
            s_addc_u32 s{7+4*gq}, s{5+4*gq}, 0""")]

    def fw_poll_addr(self, va):
        return mk(f"""s_lshl_b32 s48, s{sCLS}, 12
            s_add_u32 s48, s48, {FW + 160 * 16}
            v_lshl_add_u32 v{va}, v1, 4, s48
            v_add_u32 v{va+1}, 512, v{va}""")

    def conv(self):
        e = self; o = e.o
        ACC = lambda t, mt: 144 + 8 * t + 4 * mt
        BR, AR, XB, XD, XC, K2F, K3F, AX, XU = 2, 50, 100, 108, 124, 68, 128, 100, 180
        main = []
        def mf(acc, A, B, need, zero=False):
            main.append(I(f"v_mfma_f32_16x16x32_bf16 v[{acc}:{acc+3}], v[{A}:{A+3}], v[{B}:{B+3}], " + ("0" if zero else f"v[{acc}:{acc+3}]"), need=need))
        def rd(txt, reg, n, tag, grp):
            return I(txt, tag=grp, put={("v", reg + i): tag for i in range(n)})
        def nd(*items): return {("v", reg + i): tag for reg, n, tag in items for i in range(n)}
        start, reads, pos = [], [], {}
        boxes = [(T, b) for T in range(6) for b in range(4) if not (b >= 2 and T >= 4)]
        arr = (A5, A3, A9, A7)
        nbox, box_at = 0, []
        early = o.get("t0e", 1)
        J = list(range(4, 16)) + [2, 3, 0, 1] if early else list(range(2, 16)) + [0, 1]
        J2 = [0, 1, 2, 3, 12, 13, 14, 15]
        for s, j in enumerate(J):
            grp = f"s{s}"
            start.append(len(main)); R = []
            b0 = BR + 16 * (s % 3)
            steps = [(0, 4 * j, (0, 1))]
            if j == 0: steps += [(1, 64, (0, 1)), (2, 76, (0, 1))]
            if j == 1: steps += [(1, 68, (0,)), (2, 80, (0,))]
            def bread(reg, jj, i):
                return rd(f"ds_read_b128 v[{reg}:{reg+3}], v{e.vUB + (jj & 7)} offset:{4096 * i + 2048 - 2048 * (jj >> 3)}", reg, 4, ("B", jj, i), grp)
            def areads(a0, o0, jj, iF, mts):
                base = W4 + 128 + 32 * o0
                return [rd(f"ds_read_b64 v[{a0+k}:{a0+k+1}], v{e.vAB} offset:{off}", a0 + k, 2, ("A", jj, iF, k), grp)
                        for k, off in ((0, base + W4P), (2, base), (4, base + W4P - 32)) if not (k == 0 and mts == (0,))]
            def mm(t, mt, a0, jj, iF, breg):
                A = a0 + 2 - 2 * mt
                pos.setdefault((t, mt), []).append(len(main))
                mf(ACC(t, mt), A, breg, nd((A, 2, ("A", jj, iF, 2 - 2 * mt)), (A + 2, 2, ("A", jj, iF, 4 - 2 * mt)), (breg, 4, ("B", jj, t - iF))))
            skip0 = early and s >= 8
            for i in range(4):
                if i or not skip0 or j < 2: R.append(bread(b0 + 4 * i, j, i))
            for iF, o0, mts in steps:
                a0 = AR + 6 * (s % 3) if iF == 0 else AX - 6 + 6 * iF + 12 * j
                ar = areads(a0, o0, j, iF, mts)
                R = ar + R if iF == 0 else R + ar
                for t in range(iF, 4):
                    if t == 0 and skip0: continue
                    for mt in mts: mm(t, mt, a0, j, iF, b0 + 4 * (t - iF))
                    if t == 0 and early:
                        a2, b2 = 68 + 6 * (s % 3), (86, 136, 140)[s % 3]
                        R = R[:4] + areads(a2, 4 * J2[s], J2[s], 0, (0, 1)) + [bread(b2, J2[s], 0)] + R[4:]
                        for mt in range(2): mm(0, mt, a2, J2[s], 0, b2)
            for _ in range(min(2, 20 - nbox)):
                T, b = boxes[nbox]
                xb = XB + 4 * (T & 1); xd = XD + 4 * (nbox & 3)
                if b == 0:
                    R.append(rd(f"ds_read_b128 v[{xb}:{xb+3}], v{e.vBB} offset:{2048 * T}", xb, 4, ("XB", T), grp if T < 5 else "xb5"))
                mf(xd, e.vBAND + 4 * b, xb, nd((xb, 4, ("XB", T))), zero=True)
                xc = XC + 2 * (nbox & 1)
                main[-1].put = nd((xd, 4, ("XD", nbox)))
                box_at.append((len(main) - 1, [
                    I(f"v_cvt_pk_bf16_f32 v{xc}, v{xd}, v{xd+1}", need=nd((xd, 2, ("XD", nbox))), put=nd((xc, 1, ("XC", nbox)))),
                    I(f"v_cvt_pk_bf16_f32 v{xc+1}, v{xd+2}, v{xd+3}", need=nd((xd + 2, 2, ("XD", nbox))), put=nd((xc + 1, 1, ("XC", nbox)))),
                    I(f"ds_write_b64 v{e.vBW}, v[{xc}:{xc+1}] offset:{arr[b] + 128 * T}", need=nd((xc, 2, ("XC", nbox))))]))
                nbox += 1
            reads.append(R)
        far = [("2", 0), ("2", 2), ("3", 0), ("2", 4), ("2", 6), ("2", 8), ("2", 10), ("3", 2)]
        kreads = []
        for phi in range(1, 9):
            kreads.append(rd(f"ds_read_b128 v[{K2F+4*(phi-1)}:{K2F+4*(phi-1)+3}], v{e.vK2A} offset:{K2 + 752 - 64 * phi}", K2F + 4 * (phi - 1), 4, ("K2", phi), None))
        for phi in range(3, 7):
            for k in range(2):
                r_ = K3F + 4 * (phi - 3) + 2 * k
                kreads.append(rd(f"ds_read_b64 v[{r_}:{r_+1}], v{e.vK3A} offset:{K3 + 504 - 64 * phi + 8 * k}", r_, 2, ("K3", phi), None))
        for s, (reg, k0) in enumerate(far, 16):
            start.append(len(main)); R = []
            b0 = BR + 16 * (s % 3)
            for kk in range(2):
                ks = k0 + kk
                for mt in range(2):
                    a0 = b0 + 8 * kk + 4 * mt
                    va, st, hf = (e.vR2 + mt, 64, 8) if reg == "2" else (e.vR3 + mt, 128, 16)
                    for k in range(2):
                        R.append(rd(f"ds_read_b64_tr_b16 v[{a0+2*k}:{a0+2*k+1}], v{va} offset:{st * ks + hf * k}", a0 + 2 * k, 2, ("F", reg, ks, mt), f"s{s}"))
                    for t in range(1, 4):
                        phi = 4 * t - ks if reg == "2" else 2 * t - ks
                        if (1 <= phi <= 8 if reg == "2" else 3 <= phi <= 6):
                            kf = K2F + 4 * (phi - 1) if reg == "2" else K3F + 4 * (phi - 3)
                            pos[t, mt].append(len(main))
                            mf(ACC(t, mt), a0, kf, nd((a0, 4, ("F", reg, ks, mt)), (kf, 4, ("K" + reg, phi))))
            reads.append(R)
        ns = len(reads); start.append(len(main))
        xb5 = [r for r in reads[9] if r.tag == "xb5"]; reads[9] = [r for r in reads[9] if r.tag != "xb5"]
        g = Sched(main)
        SO = X0 - U0 - 2048
        g.pre = [I(f"ds_read_b128 v[{ACC(t, mt)}:{ACC(t, mt)+3}], v{e.vST + 2 + mt} offset:{SO + 4096 * t}", tag="s0") for t in range(4) for mt in range(2)]
        g.pre = reads[0] + g.pre + reads[1] + e.w4_reads(1) + e.w4_reads(2) + mk("@lgkm s0")
        w41 = g.add(e.w4_build(1), 2, start[2 if early else 3] - 1, prio=1)
        w42 = g.add(e.w4_build(2), 2, start[9], after=[(w41[-1], 0)])
        for s in range(ns - 2):
            g.add(reads[s + 2], start[s], start[s + 1] + (2 if s < 19 else 0), prio=2, pace=True)
            g.add(mk(f"@lgkm s{s+1}"), start[s + 1] - 1, start[s + 1] - 1, prio=3)
        g.add(mk(f"@lgkm s{ns-1}"), start[ns - 1] - 1, start[ns - 1] - 1, prio=3)
        g.add(xb5, start[8], start[8] + 3, prio=2)
        prev = [None, None]
        for n, (k, ins) in enumerate(box_at):
            prev[n & 1] = g.add(ins, k + 3, k + 14, after=[(prev[n & 1], 0)] if prev[n & 1] else None, prio=1)[-1]
        g.add(kreads[3::-1] + kreads[7:3:-1], start[o.get("k2s", 11)], start[16] - 4, pace=True, win=5, after=[(w42[-1], 0)])
        g.add(kreads[8:], start[15], start[18] - 4, pace=True, win=5)
        last = None
        for t in range(4):
            s = o.get("xs", 7) + 2 * t
            chain = lambda mt, k: pos[t, mt][k]
            if early and t == 0:
                s = o.get("xs0", 4); chain = lambda mt, k, last=False: pos[0, mt][2 * k + 1]
            r = g.add([I(f"ds_read_b128 v[{XU}:{XU+3}], v{e.vUB} offset:{2048 + 4096 * t}", tag=f"xr{t}")] +
                      [I(f"ds_read_b128 v[{XU+4+4*mt}:{XU+7+4*mt}], v{e.vST + mt} offset:{SO + 4096 * t}", tag=f"xr{t}") for mt in range(2)],
                      0, chain(0, s - 1) - 6, after=[(last, 0)] if last else None, prio=1)
            for mt in range(2):
                p = chain(mt, s - 1 + mt); q = pos[t, mt][pos[t, mt].index(p) + 1]
                un = g.add(mk(([f"@lgkm xr{t}"] if mt == 0 else []) + [f"v_lshlrev_b32 v{XU+12+2*k}, 16, v{XU+2*mt+k}\nv_and_b32 v{XU+13+2*k}, 0xffff0000, v{XU+2*mt+k}" for k in range(2)]),
                           0, p + 2, after=[(r[-1], 5)] if mt == 0 else [(last, 0)])
                last = g.add(mk([f"v_fmac_f32 v{ACC(t, mt)+k}, v{XU+4+4*mt+k}, v{XU+12+k}" for k in range(4)]), p + 3, q - 2, after=[(un[-1], 0)], prio=2)[-1]
        def hstore(t):
            oo = 86 if early and t == 0 else XU + 4 * t
            return mk([f"s_mov_b32 s68, {HT + 16 * 40960 * t}"] + [f"v_cvt_pk_bf16_f32 v{oo+k}, v{ACC(t, k >> 1) + 2 * (k & 1)}, v{ACC(t, k >> 1) + 2 * (k & 1) + 1}" for k in range(4)]) + \
                mk(f"buffer_store_dwordx4 v[{oo}:{oo+3}], v{e.vHST}, {SRD}, s68 offen sc1", tag=f"hs{min(t, 2)}")
        for t in range(3):
            p = max(pos[t, 0][-1], pos[t, 1][-1])
            st = g.add(hstore(t), p + 3, p + 8, after=[(last, 0)] if t or not early else None, prio=2)[-1]
            if t or not early: last = st
            if t == 0:
                sga = g.add(mk(f"""s_add_u32 s48, s69, {F2}
                    @vm hs0
                    s_barrier
                    buffer_store_dwordx2 v[{e.vTAG}:{e.vTAG+1}], v199, {SRD}, s48 offen sc1""") + e.stamp(8), 0, len(main) - 1, after=[(st, o.get("sga", 44))], prio=2)
        w1 = e.w1_loads(); n1 = o.get("w1n", 42)
        fwc = o.get("fwc", 16)
        chk = e.poll_check(e.vPOLL, 234, "s70")
        if o.get("fwi", 1) > 1: g.add(e.fwi, o.get("fwi", 1), o.get("fwi", 1) + 2, prio=2)
        if fwc >= 0:
            c = g.add([chk[0], chk[1:], I("s_barrier")], fwc, fwc + 4, prio=2)
        wl = g.add(w1[:n1], fwc + 5, start[o.get("w1e", 22)], pace=True, win=3, after=[(c[-1], 0)] if fwc >= 0 else None)
        g.add(mk(f"s_mov_b32 s70, {F2C - F1}") + e.poll_issue(e.vPOLL, 234, "s70"), len(main) - o.get("fw2", 10), len(main) - o.get("fw2", 10) + 3, prio=2)
        if fwc < 0: e(chk)
        if o.get("wkb", 3) == 2: e(e.walk("B", 0))
        e("@vm u\ns_barrier")
        e(e.stamp(6))
        import gen_ffn as F
        sa, sb = F.setup(e)
        x = g.add(sa[:12], start[16], start[20])
        f2i = o.get("f2i", -4)
        if f2i < 0: g.add(e.poll_issue(F.vPF, F.PD), len(main) + f2i, len(main) + f2i, after=[(x[-1], 1)], prio=2)
        e.pre_conv = list(e.p); e.conv_stream = g.run(); e.conv_steps = (main, start)
        e(e.conv_stream)
        e(e.stamp(7))
        e(sa[12:]); e(hstore(3))
        if e.stop == "conv": return
        g = Sched(F.colsums(e)[:48], dense=True)
        g.add(sb, 0, 47)
        if n1 < 48: g.add(w1[n1:48], 0, 4 * (48 - n1), pace=True, prio=1)
        if f2i >= 0: g.add(e.poll_issue(F.vPF, F.PD), f2i, f2i, prio=2)
        a = e.poll_check(e.vPOLL, 234, "s70")
        g.add([a[0], a[1:]] + mk(f"""s_mov_b32 s48, {F2C - F2B}
            @vm hs1
            s_barrier
            buffer_store_dwordx2 v[{e.vTAG}:{e.vTAG+1}], v{e.vSIG}, {SRD}, s48 offen sc1"""), o.get("sgc", 14) - 2, o.get("sgc", 14) + 4, prio=2)
        assert o.get("f2c", 20) > o.get("sgc", 14) + 4
        st = g.run()
        k = [n for n, i in enumerate(st) if i.kind == "mfma"][o.get("f2c", 20)]
        e(st[:k])
        if o.get("wkb", 3) == 0: e(e.walk("B", 0))
        e(e.stamp(13))
        e(e.poll_check(F.vPF, F.PD)); e(e.stamp(1) if o.get("fst") else [])
        rest, c0 = st[k:], F.chunk(0)
        while c0:
            e(c0.pop(0))
            if e.p[-1].kind == "vm":
                while rest:
                    e(rest.pop(0))
                    if rest and rest[0].kind == "mfma":
                        e(rest.pop(0)); break
        e(rest)
        if o.get("wkb", 3) == 1: e(e.walk("B", 0))

    def w1_pack_loads(self):
        out = mk(f"""s_lshl2_add_u32 s71, s2, s{sW}
            s_min_u32 s71, s71, 959
            s_mul_i32 s72, s71, 5462
            s_lshr_b32 s72, s72, 16
            s_mul_i32 s48, s72, 12
            s_sub_u32 s71, s71, s48
            s_mul_i32 s48, s72, {8 * 3072}
            s_lshl_b32 s49, s71, 8
            s_add_u32 s48, s48, s49
            s_add_u32 s48, s48, 3072
            v_lshl_add_u32 v196, v6, 2, s48
            v_mov_b32 v197, 0
            v_lshl_add_u64 v[194:195], v[196:197], 0, s[26:27]
            s_mov_b32 exec_hi, 0
            v_lshl_add_u64 v[194:195], v[196:197], 0, s[24:25]
            s_mov_b32 exec_hi, -1
            s_mov_b32 s48, 9216
            s_mov_b32 s49, 0
            v_lshl_add_u64 v[196:197], v[194:195], 0, s[48:49]
            v_lshl_add_u64 v[198:199], v[196:197], 0, s[48:49]""")
        return out
    def w1_pack_issue(self):
        out = []
        for j in range(8):
            for hf in range(2):
                a = 194 + 2 * (j // 3)
                out += mk(f"global_load_dword v{236+8*hf+j}, v[{a}:{a+1}], off offset:{3072 * (j % 3 - 1) + 128 * hf}")
        return out
    def w1_pack_addr(self):
        out = mk(f"""s_lshl_b32 s48, s71, 4
            v_bfe_u32 v160, v1, 3, 2
            v_lshl_add_u32 v160, v160, 1, s48
            s_lshr_b32 s48, s72, 2
            s_mul_i32 s48, s48, 3072
            s_and_b32 s49, s72, 3
            s_lshl_b32 s49, s49, 8
            s_add_u32 s48, s48, s49
            s_add_u32 s48, s48, {W1P}
            v_and_b32 v161, 1, v1
            v_lshl_add_u32 v161, v161, 4, s48
            v_bfe_u32 v162, v1, 1, 2
            v_lshl_add_u32 v161, v162, 6, v161
            v_and_b32 v162, 32, v1
            v_add_u32 v161, v161, v162
            s_mov_b32 s49, 57
            s_mov_b32 s72, 0x05040100
            s_mov_b32 s73, 0x07060302""")
        for t in range(4):
            out += mk(f"""v_mul_u32_u24 v162, 21846, v160
                v_lshrrev_b32 v162, 16, v162
                v_mad_u32_u24 v162, v162, s49, v160
                v_lshl_add_u32 v{164+t}, v162, 10, v161""")
            if t < 3: out += mk(f"v_add_u32 v160, {7 if t == 1 else 1}, v160")
        return out
    def w1_pack_perm(self):
        return mk([f"v_perm_b32 v{2+4*t+jj}, v{236+8*(t>>1)+2*jj+1}, v{236+8*(t>>1)+2*jj}, s{72+(t&1)}" for t in range(4) for jj in range(4)])
    def w1_pack_stores(self):
        return mk([f"global_store_dwordx4 v{164+t}, v[{2+4*t}:{5+4*t}], s[34:35] sc1" for t in range(4)], tag="w1p")
    def w1_pack(self):
        return self.w1_pack_perm() + self.w1_pack_stores() + self.stamp(9)
    def w1_publish(self, va=None):
        return mk("@vm w1p\ns_barrier") + self.signal_all(FW, va)

    def hp_base(self):
        return mk(f"""s_sub_u32 s50, s2, 160
            v_and_b32 v196, 31, v1
            v_lshlrev_b32 v196, 2, v196
            v_mov_b32 v197, 0
            v_lshl_add_u64 v[198:199], v[196:197], 0, s[26:27]
            s_mov_b32 exec_hi, 0
            v_lshl_add_u64 v[198:199], v[196:197], 0, s[24:25]
            s_mov_b32 exec_hi, -1""") + [i for k in range(3) for i in self.hp_unit(k)]
    def hp_unit(self, k):
        su = 60 + 2 * k
        if k < 2:
            return mk(f"""s_lshl3_add_u32 s{su}, s50, s{sW}
                s_add_u32 s{su}, s{su}, {4 * k}
                s_mul_i32 s66, s50, 2731
                s_lshr_b32 s66, s66, 16
                s_mul_i32 s66, s66, 48
                s_add_u32 s{su}, s{su}, s66
                s_mul_i32 s{su+1}, s{su}, 5462
                s_lshr_b32 s{su+1}, s{su+1}, 16""")
        return mk(f"""s_lshr_b32 s66, s{sW}, 1
            s_and_b32 s69, s{sW}, 1
            s_lshl1_add_u32 s{su}, s50, s66
            s_mul_i32 s66, s{su}, 1366
            s_lshr_b32 s66, s66, 16
            s_add_u32 s66, s66, 1
            s_mul_i32 s66, s66, 192
            s_add_u32 s{su}, s{su}, s66
            s_mul_i32 s{su+1}, s{su}, 5462
            s_lshr_b32 s{su+1}, s{su+1}, 16""")
    def hp_loads(self, k, opt=False):
        su = 60 + 2 * k
        out = mk(f"""s_mov_b32 s49, 0
            s_mul_i32 s48, s{su+1}, {8 * 3072 - 12 * 256}
            s_lshl_b32 s67, s{su}, 8
            s_add_u32 s48, s48, s67
            s_add_u32 s48, s48, 3072
            {"s_lshl_b32 s67, s69, 7" if k == 2 else ""}
            {"s_add_u32 s48, s48, s67" if k == 2 else ""}
            v_lshl_add_u64 v[190:191], v[198:199], 0, s[48:49]
            s_add_u32 s48, s48, 9216
            v_lshl_add_u64 v[192:193], v[198:199], 0, s[48:49]
            s_add_u32 s48, s48, 9216
            v_lshl_add_u64 v[194:195], v[198:199], 0, s[48:49]""", opt=opt)
        for j in range(8):
            for hf in range(2 if k < 2 else 1):
                a = 190 + 2 * (j // 3)
                out += mk(f"global_load_dword v{200+16*k+8*hf+j}, v[{a}:{a+1}], off offset:{3072 * (j % 3 - 1) + 128 * hf}", opt=opt)
        return out
    def hp_addr(self, k):
        su = 60 + 2 * k
        out = []
        if k == 0:
            out += mk(f"""v_bfe_u32 v180, v1, 3, 2
                v_and_b32 v181, 1, v1
                v_lshlrev_b32 v181, 4, v181
                v_bfe_u32 v182, v1, 1, 2
                v_lshl_add_u32 v181, v182, 6, v181
                v_and_b32 v182, 32, v1
                v_add_u32 v181, v181, v182
                s_mov_b32 s68, 57
                s_mov_b32 s72, 0x05040100
                s_mov_b32 s73, 0x07060302""")
        out += mk(f"""s_mul_i32 s48, s{su+1}, 12
            s_sub_u32 s48, s{su}, s48
            s_lshl_b32 s48, s48, 4
            {"s_lshl3_add_u32 s48, s69, s48" if k == 2 else ""}
            v_lshl_add_u32 v183, v180, 1, s48
            s_lshr_b32 s48, s{su+1}, 2
            s_mul_i32 s48, s48, 3072
            s_and_b32 s67, s{su+1}, 3
            s_lshl_b32 s67, s67, 8
            s_add_u32 s48, s48, s67
            s_add_u32 s48, s48, {W1P}
            v_add_u32 v184, s48, v181""")
        for t in range(4 if k < 2 else 2):
            out += mk(f"""v_mul_u32_u24 v182, 21846, v183
                v_lshrrev_b32 v182, 16, v182
                v_mad_u32_u24 v182, v182, s68, v183
                v_lshl_add_u32 v{160+4*k+t}, v182, 10, v184""")
            if t < 3: out += mk(f"v_add_u32 v183, {7 if t == 1 else 1}, v183")
        return out
    def hp_pack(self, k, opt=False):
        r, o = 200 + 16 * k, 52 + 16 * k
        return mk([f"v_perm_b32 v{o+4*t+jj}, v{r+8*(t>>1)+2*jj+1}, v{r+8*(t>>1)+2*jj}, s{72+(t&1)}" for t in range(4 if k < 2 else 2) for jj in range(4)], opt=opt) + \
            mk([f"global_store_dwordx4 v{160+4*k+t}, v[{o+4*t}:{o+4*t+3}], s[34:35] sc1" for t in range(4 if k < 2 else 2)], tag="w1p" if k < 2 else "w2p", opt=opt)
    def low_waves(self, ins):
        L = self.lab("lw")
        return mk(f"s_cmp_ge_u32 s{sW}, 2\ns_cbranch_scc1 {L}") + ins + mk(f"{L}:")

    def w2_consts(self):
        e = self
        e(f"""s_sub_u32 s50, s2, 160
            v_lshlrev_b32 v{e.vL16}, 4, v1
            s_lshr_b32 s55, s50, 1
            s_and_b32 s56, s50, 1
            s_mul_i32 s48, s55, {32 * 1280}
            s_mul_i32 s49, s56, 640
            s_add_u32 s48, s48, s49
            s_mul_i32 s49, s{sW}, {8 * 1280}
            s_add_u32 s48, s48, s49
            s_lshl2_add_u32 s56, s56, s{sW}
            s_mul_i32 s56, s56, 48
            s_add_u32 s55, s55, s56
            s_mul_i32 s56, s{sW}, 5120""")
        for n in range(5):
            e(f"""v_add_u32 v20, {64 * n}, v1
                v_mul_u32_u24 v21, 1639, v20
                v_lshrrev_b32 v21, 16, v21
                v_mul_u32_u24 v21, 640, v21
                v_lshl_add_u32 v21, v20, 4, v21
                v_add_u32 v{24+n}, s48, v21""")
        e(f"""v_bfe_u32 v20, v1, 2, 2
            v_bfe_u32 v21, v1, 4, 1
            v_lshl_add_u32 v20, v20, 1, v21
            v_lshrrev_b32 v21, 5, v1
            v_lshl_add_u32 v20, v21, 4, v20
            v_mul_u32_u24 v20, 640, v20
            v_and_b32 v21, 3, v1
            v_lshl_add_u32 v20, v21, 3, v20
            s_mul_i32 s48, s{sW}, 160
            v_add_u32 v20, s48, v20""")

    def helper_main(self):
        e = self
        import gen_ffn as F
        dma = [i for n in range(5) for i in mk(f"s_add_u32 m0, s56, {1024 * n}") + mk(f"global_load_lds_dwordx4 v{24+n}, s[28:29]", tag="w2l")]
        e.epoch_load(); e(e.hp_base()); e.ln_consts()
        ln = e.ln1(); he = e.o.get("he", 1)
        e(ln[:20])
        for k in range(he): e(e.hp_loads(k))
        e(ln[20:])
        for k in range(he, 2): e(e.hp_loads(k))
        e(e.ln_publish())
        for k in range(3): e(e.hp_addr(k))
        e.w2_consts()
        second = e.hp_loads(2) + dma; h2 = e.o.get("h2", 0)
        if h2 == 2: e(second)
        e(e.hp_pack(0)); e(e.hp_pack(1)); e(e.stamp(9))
        if h2 == 1: e(second)
        e("@vm w1p\ns_barrier"); e(e.signal_all(FW))
        e(e.stamp(4))
        if h2 == 0: e(second)
        e(e.ffn_ids())
        e(f"""s_lshl_b32 s48, s{sCLS}, 14
            s_add_u32 s48, s48, {FW}
            v_max_u32 v180, 160, v0
            v_lshl_add_u32 v180, v180, 6, s48
            s_mul_i32 s64, s55, 5120
            s_add_u32 s64, s64, {W2P}
            s_add_u32 s65, s64, 4096
            s_lshl_b32 s48, s50, 7
            s_add_u32 s48, s48, {F2 + HOFF}
            v_mov_b32 v197, s48
            v_mov_b32 v198, 0x40000000
            s_mov_b32 s70, {F2C - FW}
            @vm w2l""")
        e(e.poll_issue(180, 192))
        e("s_barrier")
        for t in range(5):
            e(f"ds_read_b64_tr_b16 v[{32+4*t}:{33+4*t}], v20 offset:{32*t}\nds_read_b64_tr_b16 v[{34+4*t}:{35+4*t}], v20 offset:{32*t + 8*640}")
        e(e.hp_pack(2))
        e([f"buffer_store_dwordx4 v[{32+4*t}:{35+4*t}], v{e.vL16}, {SRD}, s{64 + t // 4} offen offset:{1024 * (t & 3)} sc1" for t in range(5)], tag="w2p")
        e(e.stamp(10))
        e(e.walk("B", 1))
        e(e.poll_check(180, 192, slp=4))
        e("s_barrier")
        e(e.stamp(6))
        sa, sb = F.setup(e)
        w1, cs, fill = e.w1_loads()[:48], F.colsums(e)[:48], sa + sb
        lag = 14
        for n in range(48 + lag):
            if n == lag: e("@vm w2p\ns_barrier"); e(e.signal_all(F2C)); e(e.stamp(5))
            if n < 48: e(w1[n])
            if n == 46: e(e.poll_issue(180, 190, "s70"))
            if n == 47: e(e.poll_issue(197, 192))
            if n >= lag: e(cs[n - lag])
            e(fill[:9]); fill = fill[9:]
        e(e.poll_check(180, 190, "s70", slp=4)); e("s_barrier")
        e(e.stamp(7))
        e(e.poll_check(197, 192, slp=4))
        e(e.stamp(13))
        e(e.poll_issue(F.vPF, F.PD)); e(e.poll_check(F.vPF, F.PD)); e(e.stamp(1) if e.o.get("fst") else [])
        e(F.chunk(0))

    def walk(self, grp, role):
        if not self.o.get("wk", 1): return []
        out = mk(f"s_mov_b64 exec, 0\ns_mov_b32 s1, {role}")
        for w in range(3): out += mk(f"s_cmp_eq_u32 s{sW}, {w}\ns_cbranch_scc1 L_pad{grp}_{w}")
        out += mk(f"s_branch L_pad{grp}_3\nL_walked{grp}_{role}:")
        if grp == "B" and role == 0: out += mk("s_cmp_eq_u32 s1, 1\ns_cbranch_scc1 L_walkedB_1")
        return out + mk("s_mov_b64 exec, -1")
    def place_pads(self, prog, base):
        sz = sizes(prog)
        first = {grp: next(n for n, i in enumerate(prog) if i.text == f"L_walked{grp}_0:") for grp in "AB"}
        end = next(n for n, i in enumerate(prog) if i.mn == "s_endpgm")
        out, off, want, pads = [], base, [], {"A": [], "B": []}
        step = self.o.get("wks", 0)
        for n, i in enumerate(prog):
            if off // 4096 != (off + sz[n]) // 4096 and first["A"] < n < end:
                want = [(off + sz[n]) // 4096 * 4096 + k * step for k in range(2 if step else 1)]
            out.append(i); off += sz[n]
            near = [x.kind for x in prog[n + 1:n + 5]]
            if want and off >= want[0] and sz[n] and (i.kind == "mfma" or "mfma" not in near) and n + 1 < end:
                grp = "A" if n < first["B"] else "B"
                lab, br = I(f"L_pad{grp}_{len(pads[grp])}:"), I("s_cbranch_execz L_x")
                pads[grp].append(br); out += [lab, br]; off += 4; want.pop(0)
        tail = []
        for grp, ps in pads.items():
            for k, br in enumerate(ps):
                br.text = f"s_cbranch_execz L_pad{grp}_{k + 4}" if k + 4 < len(ps) else f"s_cbranch_execz L_back{grp}"
            k = next(n for n, i in enumerate(out) if i.text == f"L_walked{grp}_0:")
            back = [I(f"L_pad{grp}_{j}:") for j in range(len(ps), 4)] + [I(f"L_back{grp}:")]
            out[k:k] = back
        return out

    def finish_stamps(self):
        e = self
        if not e.stamps: return
        if e.o.get("nost") and not e.o.get("cnt"): e("s_waitcnt vmcnt(0)\ns_memrealtime s[100:101]")
        e(f"""s_waitcnt lgkmcnt(0)
            s_lshl2_add_u32 s48, s2, s{sW}
            s_lshl_b32 s48, s48, 6
            s_add_u32 s48, s48, {DBG}
            v_mov_b32 v2, s48""")
        for k in range(14):
            e(f"v_mov_b32 v3, s{74 + 2 * k}\nbuffer_store_dword v3, v2, {SRD}, 0 offen offset:{4 * k}")

    def build(self):
        e = self
        e.prologue(); e.x_loads()
        e(f"s_cmp_ge_u32 s{sIDX}, 20\ns_cbranch_scc1 L_helper")
        head = list(e.p)
        e.conv_param_loads(); e.epoch_load()
        if e.o.get("wkb", 3) == 4: e(e.walk("B", 0))
        if e.o.get("ho", 3): e.ln_consts()
        else: e(e.w1_pack_loads()); e.ln_consts(); e(e.w1_pack_addr()); e(e.hint_setup(163, 0))
        e.conv_consts_a()
        wkb = e.o.get("wkb", 3)
        if wkb < 3: e(e.walk("A", 0))
        else: e("L_walkedA_0:")
        if wkb == 3: e(e.walk("B", 0))
        tl = e.table_loads([6, 2, 8, 0, 1, 3, 4, 5, 7])
        ln = e.ln1()
        k = e.o.get("tbl", 20)
        e(ln[:k]); e(tl)
        if e.o.get("wl", 1) == 0: e(e.w1_pack_issue())
        e(ln[k:])
        e.kgen(); e.conv()
        a, sa = finalize(e.p)
        e.p = list(head); e("L_helper:")
        e.helper_main()
        e("s_branch L_join")
        b, sb = finalize(e.p)
        k = next(n for n, i in enumerate(b) if i.text == "L_helper:")
        e.p = []
        e("L_join:")
        if e.stop != "conv":
            import gen_ffn
            e.in_ffn = True
            gen_ffn.ffn(e)
        e.finish_stamps()
        c, sc = finalize(e.p)
        self.stats = (sa, sb, sc)
        allp = a + c + mk('L_end:\ns_endpgm') + b[k:]
        if e.o.get("al", 1):
            ks = [n for n, i in enumerate(allp) if i.kind == "valu" and i.mn.startswith("v_pk_") and n < len(a)]
            allp, n = align_runs(allp, ks[0], ks[-1] + 40, e.o.get("alr", 6)); self.stats += (n,)
        if "tr0" in e.o:
            ms = [n for n, i in enumerate(allp) if i.kind == "mfma"][e.o["tr0"]::e.o["trs"]][:13]
            allp = [i for i in allp if "s[100:101]" not in i.text]
            for k, n in reversed(list(enumerate(ms))): allp.insert(n + 1, I(f"s_memtime s[{76 + 2 * k}:{77 + 2 * k}]"))
        if e.o.get("wk", 1): allp = e.place_pads(allp, 0x300)
        body = "\n".join(("" if i.kind == "meta" else "    ") + i.text for i in allp if i.kind != "pseudo")
        return f"""; @launch grid=(256,1,1) block=(256,1,1) lds={LDS_BYTES}
; One persistent workgroup per CU. Hand-offs between workgroups go through write-through stores into d_ws and
.amdgcn_target "amdgcn-amd-amdhsa--gfx950"
.text
.p2align 12
.globl {NAME}_kernel
.p2align 8
.type {NAME}_kernel,@function
{NAME}_kernel:
{body}
{chr(10).join(self.cold)}
.p2align 7
L_table:
{self.lane_table()}
L_code_end:
.section .rodata,"a"
.p2align 6
.amdhsa_kernel {NAME}_kernel
  .amdhsa_next_free_vgpr 512
  .amdhsa_next_free_sgpr 102
  .amdhsa_accum_offset 256
  .amdhsa_group_segment_fixed_size 0
  .amdhsa_kernarg_size 128
  .amdhsa_user_sgpr_count 2
  .amdhsa_user_sgpr_kernarg_segment_ptr 1
  .amdhsa_system_sgpr_workgroup_id_x 1
.end_amdhsa_kernel
"""

if __name__ == "__main__":
    opt = {a.split("=")[0]: int(a.split("=")[1]) for a in sys.argv[4:]}
    k = K(stop=sys.argv[2] if len(sys.argv) > 2 and sys.argv[2] != "-" else None, stamps=len(sys.argv) > 3 and sys.argv[3] == "stamps", opt=opt)
    open(sys.argv[1], "w").write(k.build())
    print(k.stats, getattr(k, 'models', None))
```

```python
import math
from asmlib import I, mk, Gaps, Sched, model_cycles
import gen as G
from gen import fx, SRD, SRD2, sW, sCLS, sIDX, SLOT, STP, RST, RES, PART, HT, ACT, W2P, F2, F2B, F2C, AP

C0 = -2 * 0.7978845608028654 * math.log2(math.e)
vL16 = 252
TA = 2
FRG = 10
ACC = 50
S1, S2 = 74, 78
CS, ONES = 82, 94
CN = 98
T = 106
OUT = 120
vAST, vSW, vSR, vPF = 124, 125, 126, 127
W2E = 128
vSG, vTG = 116, 118
vPK = 117
PD = 254
MF = "v_mfma_f32_16x16x32_bf16"

def r4(kind, n): return f"{kind}[{n}:{n+3}]"

vW2, vX = 253, 117
NPK = 6

def setup(e):
    a = mk(f"""s_mul_i32 s57, s62, {SLOT}
        s_mul_i32 s58, s39, 10240
        s_add_u32 s57, s57, s58
        s_add_u32 s57, s57, {HT}
        s_mul_i32 s58, s58, 3
        v_add_u32 v{vPK}, s57, v{vL16}
        s_lshl_b32 s46, s{sCLS}, 15
        s_mul_i32 s47, s39, {40 << e.fs}
        s_add_u32 s47, s47, s46
        s_add_u32 s47, s47, {F2}
        v_min_u32 v{vPF}, 39, v1
        v_lshl_add_u32 v{vPF}, v{vPF}, {e.fs}, s47
        s_mul_i32 s47, s{sW}, {24 << e.fs}
        s_add_u32 s47, s47, s46
        s_add_u32 s47, s47, {F2 + (120 << e.fs)}
        v_cmp_lt_u32 s[28:29], 39, v1
        v_lshl_add_u32 v0, v1, {e.fs}, s47
        v_cndmask_b32 v0, v{vPF}, v0, s[28:29]
        v_mov_b32 v{ONES}, 0x3f803f80
        v_mov_b32 v{ONES+1}, 0x3f803f80
        v_mov_b32 v{ONES+2}, 0x3f803f80
        v_mov_b32 v{ONES+3}, 0x3f803f80""")
    b = []
    for k in range(1, 4): b.append(mk(f"s_add_u32 s{20+2*k}, s34, {4096 * k}\ns_addc_u32 s{21+2*k}, s35, 0"))
    b += mk(f"""s_mov_b64 s[20:21], s[34:35]
        s_and_b32 s68, s63, 7
        s_lshr_b32 s72, s63, 3
        v_mov_b32 v{vTG}, s44
        v_mov_b32 v{vTG+1}, s45
        v_and_b32 v{T}, 15, v1
        v_lshrrev_b32 v{T+1}, 4, v1
        v_bfe_u32 v{T+2}, v1, 2, 2
        v_and_b32 v{T+3}, 3, v1
        v_lshlrev_b32 v{T+4}, 9, v{T+1}
        v_lshl_add_u32 v{T+4}, v{T+2}, 6, v{T+4}
        v_lshl_add_u32 v{T+4}, v{T+3}, 3, v{T+4}
        v_and_b32 v{T+5}, 1, v{T+1}
        v_lshl_add_u32 v{T+4}, v{T+5}, 5, v{T+4}""")
    for gq in range(4):
        b += mk(f"""s_add_u32 s47, s39, {gq}
            s_and_b32 s47, s47, 3
            s_mul_i32 s47, s47, 30720
            v_add_u32 v{TA+gq}, s47, v{T+4}
            v_xor_b32 v{TA+4+gq}, 32, v{TA+gq}""")
    b += mk(f"""v_mov_b32 v{OUT+3}, 0
        v_cmp_eq_u32 s[50:51], v{T+1}, v{T+2}
        v_cmp_gt_u32 s[52:53], 48, v1
        s_lshl_b32 s47, s{sW}, 3
        s_add_u32 s47, s47, {STP}
        v_lshl_add_u32 v{vSW}, v{T}, 5, s47
        v_mov_b32 v{T+5}, {STP + 1024}
        v_lshl_add_u32 v{T+5}, v1, 3, v{T+5}
        v_cndmask_b32 v{vSW}, v{T+5}, v{vSW}, s[50:51]
        v_lshlrev_b32 v{vSR}, 5, v{T}
        v_add_u32 v{vSR}, {STP}, v{vSR}
        v_mov_b32 v{T+5}, 0x40000000
        v_cmp_gt_u32 s[50:51], 16, v1
        s_mul_i32 s56, s62, {9 * AP}
        s_add_u32 s60, s56, {ACT}
        s_lshl2_add_u32 s47, s63, s{sW}
        s_mul_i32 s56, s47, 768
        s_add_u32 s56, s56, s60
        s_mul_i32 s61, s47, {64 - 768}
        s_add_u32 s61, s61, {192 * 256 - 16 * 48}
        v_add_u32 v{vSG}, s61, v{vL16}
        v_cndmask_b32 v{vAST}, v{vSG}, v{vL16}, s[52:53]
        v_cmp_gt_u32 s[52:53], 52, v1
        s_add_u32 s61, s61, {16 * 48}
        v_lshrrev_b32 v{vSG}, 3, v1
        v_mul_u32_u24 v{vSG}, {AP - 64}, v{vSG}
        v_lshl_add_u32 v{vSG}, v1, 3, v{vSG}
        v_add_u32 v{vSG}, s61, v{vSG}
        v_cndmask_b32 v{vAST}, v{T+5}, v{vAST}, s[52:53]
        v_cndmask_b32 v{vSG}, v{T+5}, v{vSG}, s[50:51]
        v_cmp_eq_u32 s[50:51], 1, v{T+3}
        v_cmp_eq_u32 s[52:53], 2, v{T+3}
        v_cmp_eq_u32 s[54:55], 3, v{T+3}
        s_lshl2_add_u32 s59, s68, s{sW}
        s_mul_i32 s59, s59, {12 * 5120}
        s_add_u32 s59, s59, {W2P}
        s_mul_i32 s47, s72, {AP}
        s_add_u32 s60, s60, s47
        s_mul_i32 s47, s{sW}, {48 * 256}
        s_add_u32 s60, s60, s47
        s_lshr_b32 s47, s68, 1
        s_mul_i32 s47, s47, 30720
        s_and_b32 s46, s68, 1
        s_mul_i32 s46, s46, 5120
        s_add_u32 s47, s47, s46
        v_lshl_add_u32 v{T+6}, v{T+1}, 2, v{T+2}
        v_lshlrev_b32 v{T+6}, 6, v{T+6}
        v_lshl_add_u32 v{T+6}, v{T+3}, 3, v{T+6}
        v_lshrrev_b32 v{T+7}, 1, v{T+1}
        v_xor_b32 v{T+7}, s72, v{T+7}
        v_lshl_add_u32 v{T+6}, v{T+7}, 5, v{T+6}
        v_add_u32 v{T+6}, s47, v{T+6}
        v_mul_u32_u24 v{T+7}, 176, v{T}
        v_lshl_add_u32 v{T+7}, v{T+1}, 3, v{T+7}
        v_add_u32 v{T+7}, {RES}, v{T+7}
        s_mul_i32 s33, s{sW}, {1024 * NPK}
        s_add_u32 s33, s33, {RST}
        s_mov_b32 s32, {fx(1/640)}
        v_mov_b32 v{T+8}, {fx(1e-5)}""")
    return a, b

def code_touch(e, lines, dst):
    L = e.lab("pc")
    return [mk(f"s_getpc_b64 s[28:29]\n{L}:")] + mk(f"""s_mul_i32 s71, s{sIDX}, {128 * lines}
        v_min_u32 v{dst}, {lines - 1}, v1
        v_lshl_add_u32 v{dst}, v{dst}, 7, s71
        v_min_u32 v{dst}, L_table-{L}, v{dst}
        global_load_dword v{dst}, v{dst}, s[28:29]""")

def f3_prewarm(e):
    return mk(f"""v_lshrrev_b32 v{T}, 3, v1
        v_and_b32 v{T+1}, 7, v1
        v_mul_u32_u24 v{T}, {AP}, v{T}
        v_lshl_add_u32 v{T}, v{T+1}, 3, v{T}
        s_add_u32 s48, s56, s61
        s_add_u32 s48, s48, {AP}
        buffer_store_dwordx2 v[{ONES}:{ONES+1}], v{T}, {SRD}, s48 offen sc1""")

def w1_before(e):
    return e.o.get("w1b", 45)

def colsums(e, run=1, f="v"):
    o = e.W1_ORDER
    o = [o[3 * (k0 + k) + t] for k0 in range(0, 20, run) for t in range(3) for k in range(run)]
    cs, one = (CS, ONES) if f == "v" else (240, 252)
    return [I(f"{MF} {r4(f, cs + 4 * (n % 3))}, {r4('a', 4 * n)}, {r4(f, one)}, " + ("0" if n < 3 else r4(f, cs + 4 * (n % 3))), need={("a", 4 * n): "W1"}) for n in o]

def dma(va, k0, m0base, m0off, n, tag):
    out = []
    for k in range(k0, k0 + n):
        if k % 4 == 0 or k == k0: out += mk(f"s_add_u32 m0, s{m0base}, {m0off + 1024 * (k - k % 4 - k0)}")
        b = 20 + 2 * (k // 4)
        out += mk(f"global_load_lds_dwordx4 v{va}, s[{b}:{b+1}] offset:{1024 * (k % 4)} sc1", tag=tag)
    return out

def chunk(c):
    return dma(vPK, 0, 58, (c % 3) * 10240, 10, f"h{c}") + (mk(f"v_add_u32 v{vPK}, {16 * SLOT}, v{vPK}") if c < 3 else [])

def ffn(e):
    o = e.o
    wr = e.w1_loads()[48:]
    nw0 = o.get("nw0", 7)
    e(wr[:nw0])
    if o.get("ds", 0):
        e(f"""v_lshlrev_b32 v{vAST}, 4, v{T}
            v_lshl_add_u32 v{vAST}, v{T+1}, 2, v{vAST}
            v_add_u32 v{vAST}, s56, v{vAST}""")
    hd = mk(f"""s_mul_i32 s48, s{sW}, {1024 - 48 * 256}
        s_add_u32 s70, s60, s48
        s_add_u32 s70, s70, {AP + 192 * 256}
        {"s_add_u32 s46, s62, s63" if o.get("rot2", 0) else "s_mov_b32 s46, 0"}""")
    for gq in range(4):
        hd += mk(f"""s_add_u32 s48, s46, {gq}
            s_and_b32 s48, s48, 3
            s_mul_i32 s71, s48, 15360
            s_add_u32 s{4+gq}, s59, s71
            s_mul_i32 s71, s48, 3072
            s_add_u32 s71, s71, s60""") + [mk(f"s_add_u32 s{8+2*gq}, s34, s71\ns_addc_u32 s{9+2*gq}, s35, 0")]

    late = [("x", c, k) for c in range(2) for k in range(12)]
    late += [("w", n, 0) for n in range(35, 60)]
    w2reg = {n: ("v", W2E + 4 * n) if n < 31 else ("a", 240 + 4 * (n - 31)) for n in range(35)}
    actreg = {}
    for n, (kind, a, b) in enumerate(late):
        if kind == "w": w2reg[a] = ("a", 4 * n)
        else: actreg[a, b] = ("a", 4 * n)
    for k in range(11): actreg[2, k] = ("a", 4 * (49 + k))
    actreg[2, 11] = ("a", 0)
    for k in range(12): actreg[3, k] = ("a", 4 * (k + 1))
    def tagput(reg, tag): return {(reg[0], reg[1] + i): tag for i in range(4)}
    grp = lambda n: mk(f"v_add_u32 v{vW2}, s{4 + n // 15}, v{vL16}")
    def w2_load(n):
        k = n % 15; b = 20 + 2 * (k // 4)
        return (grp(n) if k == 0 else []) + [I(f"global_load_dwordx4 {r4(*w2reg[n])}, v{vW2}, s[{b}:{b+1}] offset:{1024 * (k % 4)} sc1", put=tagput(w2reg[n], ("W2", n)))]
    def act_load(c, k):
        b = 8 + 2 * (k // 3); va = (vL16, vX, vW2, vX)[c]
        pre = mk(f"v_add_u32 v{va}, {2 * c * AP}, v{vL16}") if c and k == 0 else []
        return pre + [I(f"global_load_dwordx4 {r4(*actreg[c, k])}, v{va}, s[{b}:{b+1}] offset:{1024 * (k % 3)} sc1", tag=f"x{c}_{k}", put=tagput(actreg[c, k], ("X", c, k)))]
    def unpark(n):
        a, off = (vSW, 10240 + 1024 * (n - 35)) if n < 45 else (T + 6, 1024 * (n - 45)) if n < 45 + NPK else (vSW, 20480 + 1024 * (n - 45 - NPK))
        return I(f"ds_read_b128 {r4(*w2reg[n])}, v{a} offset:{off}", tag="up", put=tagput(w2reg[n], ("W2", n)))
    w2_loads = lambda a, b: [x for n in range(a, b) for x in w2_load(n)]
    act_loads = lambda c: [x for k in range(12) for x in act_load(c, k)]
    late_loads = lambda a, b: [x for kind, p, q in late[a:b] for x in (w2_load(p) if kind == "w" else act_load(p, q))]
    def f3_issue(c): return mk(f"s_mov_b32 s73, {2 * c * AP}") + e.poll_issue(vPF, PD, "s73")
    def f3_check(c):
        a = e.poll_check(vPF, PD, "s73")
        return [a[0], a[1:]]
    def f3_signal(i):
        return mk(f"@vm st{i}\ns_add_u32 s61, s56, {AP * i}\nbuffer_store_dwordx2 v[{vTG}:{vTG+1}], v{vSG}, {SRD}, s61 offen sc1")

    main, start, bstart, pstart = [], [], [], {}
    def frag(i, p): return FRG + 20 * ((p // 5) & 1) + 4 * (p % 5)
    def ftag(i, p): return {("v", frag(i, p) + k): ("H", i, p) for k in range(4)}
    CH = o.get("ch", 1)
    used = {}
    for i in range(8):
        start.append(len(main))
        for b in range(4):
            bstart.append(len(main))
            ps = range(5 * b, 5 * b + 5); ts = ([-2, -1] if b == 0 else []) + ([2, 1, 0] if o.get("bou", 1) and b % 2 == 0 else [0, 1, 2])
            chain = CH and (i, b) != (0, 0)
            for p, t in ([(p, t) for t in ts for p in ps] if chain else [(p, t) for p in ps for t in ts]):
                pstart.setdefault((i, p), len(main))
                f = r4("v", frag(i, p))
                if t < 0:
                    S, A = (S2, f) if t == -2 else (S1, r4("v", ONES))
                    main.append(I(f"{MF} {r4('v', S)}, {A}, {f}, " + ("0" if p == 0 else r4('v', S)), need=ftag(i, p), put=tagput(("v", S), ("S", i, p))))
                    used[i, "s"] = len(main) - 1
                else:
                    a = ACC + 12 * (i & 1) + 4 * t
                    main.append(I(f"{MF} {r4('v', a)}, {r4('a', 12 * p + 4 * t)}, {f}, " + ("0" if p == 0 else r4('v', a)), need=ftag(i, p)))
                    if p == 19: main[-1].put = tagput(("v", a), ("G", i))
                    used[i, 3 * p + t] = len(main) - 1
            if i == 0:
                main.extend(colsums(e)[48 + 3 * b: 51 + 3 * b])
                if b == 3:
                    for t in range(3): main[t - 3].put = tagput(("v", CS + 4 * t), "CS")
    start.append(len(main)); bstart.append(len(main))
    def reads(b):
        i, gq = b // 4, b % 4
        slot = (i // 2) % 3
        base = TA + 4 * (i & 1) + gq
        out = []
        for p in range(5 * gq, 5 * gq + 5):
            f = frag(i, p); off = 10240 * slot + 2048 * (p % 5)
            out.append(I(f"ds_read_b64_tr_b16 v[{f}:{f+1}], v{base} offset:{off}", tag=f"b{b}_{p % 5 // 2}", put={("v", f): ("H", i, p), ("v", f + 1): ("H", i, p)}))
            out.append(I(f"ds_read_b64_tr_b16 v[{f+2}:{f+3}], v{base} offset:{off + 256}", tag=f"b{b}_{p % 5 // 2}", put={("v", f + 2): ("H", i, p), ("v", f + 3): ("H", i, p)}))
        return out
    NB = o.get("nb", 0)
    def stats_check(i, rd):
        a = S1; neg = not (i >> 1) & 1
        A, B = e.lab("again"), e.lab("ready")
        comb = f"""v_bitop3_b32 v{T+9}, v{a+1}, v{a+3}, v{a+5} bitop3:{'0x80' if neg else '0xfe'}
            v_{'and' if neg else 'or'}_b32 v{T+9}, v{T+9}, v{a+7}
            v_cmp_{'le' if neg else 'gt'}_i32 vcc, 0, v{T+9}"""
        e.cold.append(f"""{A}:
    s_mov_b32 s49, 0
{A}_l:
    {rd[0].text}
    {rd[1].text}
    s_add_u32 s49, s49, 1
    s_waitcnt lgkmcnt(0)
    {comb}
    s_cmp_ge_u32 s49, {G.SPIN * 8}
    s_cbranch_scc1 {B}
    s_nop 1
    s_cbranch_vccnz {A}_l
    s_branch {B}""")
        br = I(f"s_cbranch_vccnz {A}")
        br.uses |= {("v", a + k) for k in range(8)} | {("v", T + 9)}; br.defs |= {("v", a + k) for k in range(8)}
        out = mk(comb); out[-1].put = br.need = {("vcc", 0): A}
        return out + [[br] + mk(f"{B}:")]
    def stats_out(i):
        sg = "-" if NB and not (i >> 1) & 1 else ""
        out = mk(f"""v_cndmask_b32 v{S1+1}, v{S2}, v{S2+1}, s[50:51]
            v_cndmask_b32 v{S1+1}, v{S1+1}, v{S2+2}, s[52:53]
            v_cndmask_b32 v{S1+1}, {sg}abs(v{S1+1}), {sg}abs(v{S2+3}), s[54:55]""") + mk(f"ds_write_b64 v{vSW}, v[{S1}:{S1+1}] offset:{512 * (i & 1)}", tag=f"sp{i}")
        out[0].need = {("v", S2): ("S", i, 4)}; out[3].need = {("v", S1): ("S", i, 4)}
        return out
    def stats_in(i):
        c = CN + 4 * (i & 1); a = S1
        rd = mk(f"ds_read_b128 v[{a}:{a+3}], v{vSR} offset:{512 * (i & 1)}\nds_read_b128 v[{a+4}:{a+7}], v{vSR} offset:{512 * (i & 1) + 16}", tag=f"sr{i}")
        m = mk(f"""v_add_f32 v{a}, v{a}, v{a+2}
            v_add_f32 v{a+1}, v{a+1}, v{a+3}
            v_add_f32 v{a+4}, v{a+4}, v{a+6}
            v_add_f32 v{a+5}, v{a+5}, v{a+7}
            v_add_f32 v{a}, v{a}, v{a+4}
            v_add_f32 v{a+1}, v{a+1}, v{a+5}""")
        if o.get("mim", 0):
            m += mk(f"""v_mul_f32 v{a}, {fx(1/640)}, v{a}
                v_mul_f32 v{a+1}, {fx(1/640)}, v{a+1}
                v_fma_f32 v{a+1}, -v{a}, v{a}, v{a+1}
                v_max_f32 v{a+1}, 0, v{a+1}
                v_cvt_pk_bf16_f32 v{a}, v{a}, v{a+1}
                v_and_b32 v{a+1}, 0xffff0000, v{a}
                v_add_f32 v{a+1}, {fx(1e-5)}, v{a+1}
                v_cvt_pk_bf16_f32 v{a+1}, v{a+1}, v{a+1}
                v_lshlrev_b32 v{a+1}, 16, v{a+1}
                v_sqrt_f32 v{a+1}, v{a+1}
                v_lshlrev_b32 v{c}, 16, v{a}
                v_cvt_pk_bf16_f32 v{a+1}, v{a+1}, v{a+1}
                v_lshlrev_b32 v{a+1}, 16, v{a+1}
                v_rcp_f32 v{a+2}, v{a+1}
                v_mul_f32 v{c+3}, v{a+1}, v{a+1}""")
        else:
            m += mk(f"""v_mul_f32 v{c}, {fx(1/640)}, v{a}
                v_fmaak_f32 v{a+1}, s33, v{a+1}, {fx(1e-5)}
                v_fma_f32 v{a+1}, -v{c}, v{c}, v{a+1}
                v_max_f32 v{c+3}, {fx(1e-5)}, v{a+1}
                v_rsq_f32 v{a+2}, v{c+3}""".replace("v_fmaak_f32 v%d, s33, v%d, %s" % (a + 1, a + 1, fx(1e-5)), f"v_fma_f32 v{a+1}, abs(v{a+1}), s32, v{T+8}"))
        m += mk(f"""v_mul_f32 v{c+1}, {fx(C0)}, v{a+2}
            v_mul_f32 v{a+2}, v{a+2}, v{a+2}
            v_mul_f32 v{a+2}, {fx(0.044715)}, v{a+2}
            v_mul_f32 v{c+2}, v{c+1}, v{a+2}""")
        m[-1].put = {("v", c + 2): ("C", i)}
        m[-2].put = {("v", a + 2): ("M", i)}; m[-1].need = {("v", a + 2): ("M", i)}
        return rd, m
    DS = o.get("ds", 0)
    def dstore(i, t):
        return mk(f"global_store_dword v{vAST}, v{OUT+t}, s[34:35] offset:{256 * t} sc1", tag=f"st{i}")
    def epilogue(i, packed=False, split=0):
        c = CN + 4 * (i & 1)
        out = mk(f"v_mov_b32 v{OUT+3}, {'v0' if i < 7 else 0}")
        for t in range(3):
            a = ACC + 12 * (i & 1) + 4 * t; s = CS + 4 * t; x = T
            p2 = lambda r: f"v[{r}:{r+1}]"
            if t == split: cut = len(out)
            if packed and t >= split:
                out += mk(f"""v_pk_fma_f32 {p2(a)}, {p2(c)}, {p2(s)}, {p2(a)} op_sel_hi:[0,1,1] neg_lo:[1,0,0] neg_hi:[1,0,0]
                    v_pk_fma_f32 {p2(a+2)}, {p2(c)}, {p2(s+2)}, {p2(a+2)} op_sel_hi:[0,1,1] neg_lo:[1,0,0] neg_hi:[1,0,0]
                    v_pk_mul_f32 {p2(x)}, {p2(a)}, {p2(a)}
                    v_pk_fma_f32 {p2(x)}, {p2(x)}, {p2(c+2)}, {p2(c)} op_sel:[0,0,1] op_sel_hi:[1,0,1]
                    v_pk_mul_f32 {p2(x)}, {p2(x)}, {p2(a)}
                    v_exp_f32 v{x}, v{x}
                    v_exp_f32 v{x+1}, v{x+1}
                    v_pk_mul_f32 {p2(a)}, {p2(a)}, {p2(a+2)}
                    v_pk_fma_f32 {p2(x)}, {p2(x)}, {p2(c+2)}, {p2(c+2)} op_sel:[0,1,1] op_sel_hi:[1,1,1]
                    v_rcp_f32 v{x}, v{x}
                    v_rcp_f32 v{x+1}, v{x+1}""")
                if t == 2 and not DS: out += mk(f"v_permlane32_swap_b32 v{OUT+1}, v{OUT+3}")
                out += mk(f"v_pk_mul_f32 {p2(a)}, {p2(a)}, {p2(x)}\nv_cvt_pk_bf16_f32 v{OUT+t}, v{a}, v{a+1}")
                continue
            first = [I(f"v_fma_f32 v{a+k}, -v{c}, v{s+k}, v{a+k}", need={("v", a + k): ("G", i), ("v", c + 2): ("C", i), ("v", s + k): "CS"}) for k in range(4)]
            out += first[:2] + mk(f"v_mul_f32 v{x}, v{a}, v{a}\nv_mul_f32 v{x+1}, v{a+1}, v{a+1}")
            out += mk(f"""v_fma_f32 v{x}, v{x}, v{c+2}, v{c+1}
                v_fma_f32 v{x+1}, v{x+1}, v{c+2}, v{c+1}
                v_mul_f32 v{x}, v{x}, v{a}
                v_mul_f32 v{x+1}, v{x+1}, v{a+1}
                v_exp_f32 v{x}, v{x}
                v_exp_f32 v{x+1}, v{x+1}""") + first[2:] + mk(f"""v_fma_f32 v{x}, v{x}, v{c+3}, v{c+3}
                v_fma_f32 v{x+1}, v{x+1}, v{c+3}, v{c+3}
                v_rcp_f32 v{x}, v{x}
                v_rcp_f32 v{x+1}, v{x+1}
                v_mul_f32 v{a}, v{a}, v{a+2}
                v_mul_f32 v{a+1}, v{a+1}, v{a+3}
                v_mul_f32 v{a}, v{a}, v{x}
                v_mul_f32 v{a+1}, v{a+1}, v{x+1}
                v_cvt_pk_bf16_f32 v{OUT+t}, v{a}, v{a+1}""")
            if t == 2 and not DS: out[-9:-9] = mk(f"v_permlane32_swap_b32 v{OUT+1}, v{OUT+3}")
            if DS: out += dstore(i, t)
        if DS:
            if packed: out += dstore(i, 0) + dstore(i, 1) + dstore(i, 2)
            return out + mk(f"v_add_u32 v{vAST}, {192 * 256}, v{vAST}")
        out += mk(f"""s_add_u32 s3, s56, {i * AP}
            v_permlane32_swap_b32 v{OUT}, v{OUT+2}
            v_permlane16_swap_b32 v{OUT}, v{OUT+1}
            v_permlane16_swap_b32 v{OUT+2}, v{OUT+3}""")
        out[-1].put = {("v", OUT + 3): ("O", i)}
        if 0 < i < 7: out[-1:-1] = mk(f"@vm st{i-1}")
        out.append(I(f"buffer_store_dwordx4 v[{OUT}:{OUT+3}], v{vAST}, {SRD}, s3 offen sc1", tag=f"st{i}", need={("v", OUT + 3): ("O", i)}))
        return (out[:cut], out[cut:]) if packed else out

    g = Sched(main)
    LEAD = o.get("lead", 3 if CH else 1)
    bar, vcc_busy, consts = {}, [], {}
    for i in range(8):
        s0 = start[i]
        hw = [f"@vm h{i // 2 + 1}"] if i & 1 and i < 7 else []
        slow = i in (1, 3)
        rd, m = stats_in(i)
        if NB:
            so = stats_out(i)
            w0 = o.get("nw1", 36) if slow else 27
            so = g.add(so[:3] + mk(hw) + so[3:], s0 + 24, s0 + w0 + 3, prio=2)
            for x in so[3:]: x["lo"] = s0 + w0 - 1
            r = g.add(rd, s0 + o.get("nr", 43), s0 + 48, after=[(so[-1], 6)], prio=2)
            ck = g.add(mk(f"@lgkm sr{i}") + stats_check(i, rd) + m, s0, start[i + 1] - 1, after=[(r[-1], 5)], prio=1)
            bar[i] = ck[4]; consts[i] = ck[-1]
            for x in ck[:5]: x["hi"] = s0 + 56
            vcc_busy.append((ck[3], ck[4]))
        else:
            so = g.add(stats_out(i), used[i, "s"] + 3, s0 + 30, prio=2)
            bar[i] = g.add(mk(hw + [f"@lgkm sp{i}", "s_barrier"]), s0 + (o.get("bar1", 46) if slow else o.get("bar", 35)), s0 + (52 if slow else 42), after=[(so[-1], 4)], prio=2)[-1]
            r = g.add(rd, s0, s0 + 56, after=[(bar[i], 0)], prio=2)
            consts[i] = g.add(mk(f"@lgkm sr{i}") + m, s0, start[i + 1] - 1, after=[(r[-1], 6)])[-1]
        if i > 0:
            eo = o.get("eo", 6) if CH and i > 1 else 0
            ep = g.add(epilogue(i - 1), s0 + 1 - eo, s0 + (o.get("epe", 70) - eo if i < 7 else o.get("epe7", 62)), after=[(consts[i - 1], 0)] + ([(ep[-1], 1)] if i > 1 else []))
    e7a, e7b = epilogue(7, True, o.get("e7", 0))
    g.add(e7a, used[7, 57] + 3, start[8] - 1, after=[(consts[7], 0), (ep[-1], 1)])
    for b in range(31):
        r = g.add(reads(b + 1), bstart[b], bstart[b + 1] - 1 - LEAD, pace=True, prio=1, after=[(bar[b // 4], 0)] if b % 8 == 7 else None)
        if b == 0: r1 = r
    for b in range(32):
        for q in range(3):
            k = pstart[b // 4, 5 * (b % 4) + 2 * q] - 1
            if b > 0: g.add(mk(f"@lgkm b{b}_{q}"), k, k, prio=3)
    pb = g.add(mk(f"s_mov_b32 s73, {F2C - F2}") + e.poll_issue(vPF, PD, "s73"), o.get("pci", 16), o.get("pci", 16) + 3)
    a = e.poll_check(vPF, PD, "s73")
    cc = g.add([a[0], a[1:]] + mk(f"v_and_b32 v0, 16, v1\nv_cmp_eq_u32 s[28:29], 0, v0\nv_cndmask_b32 v0, v{vTG+1}, v{vTG}, s[28:29]"), 0, start[1] - 1, after=[(pb[-1], o.get("rtb", 32))], prio=2)
    pb2 = g.add(mk(f"s_mov_b32 s73, {F2B - F2}") + e.poll_issue(vPF, PD, "s73"), o.get("pbi", 112), o.get("pbi", 112) + 3, after=[(cc[1], 1)])
    a = e.poll_check(vPF, PD, "s73")
    cb = g.add([a[0], a[1:]] + mk(f"v_and_b32 v{vPF}, 15, v1\nv_lshl_add_u32 v{vPF}, v{vPF}, 6, s70"), 0, 200, after=[(pb2[-1], o.get("rtb", 32))], prio=2)
    e(f"""v_lshl_add_u32 v{T+2}, s{sW}, 10, v{T+6}
        v_lshl_add_u32 v{T+3}, s{sW}, 5, v{T+7}""")
    mv = []
    for c in range(4):
        lo = start[2 * c] + (4 if c == 0 else 0); hi = start[2 * c + 1] + 60
        for ra, ro, wa, wo in ((T + 2, 0, T + 3, 0), (T + 6, 4096, T + 7, 128)):
            mv.append(g.add(mk(f"ds_read_b64_tr_b16 v[{T+4}:{T+5}], v{ra} offset:{10240 * (c % 3) + ro}"), lo, hi, after=[(mv[-1][-1], 2)] if mv else None, prio=1))
            mv.append(g.add(mk(f"ds_write_b64 v{wa}, v[{T+4}:{T+5}] offset:{2816 * c + wo}"), lo, hi + 4, after=[(mv[-1][-1], 12)], prio=1))
    def mix(a, b):
        out = []
        while a:
            out.append(a.pop(0))
            if out[-1].kind == "vm" and b:
                out.append(b.pop(0))
                if out[-1].kind != "vm": out.append(b.pop(0))
        return out + b
    m2, m3 = o.get("m2", 6), o.get("m3", 10)
    parts = [wr[nw0:], chunk(1), grp(45) + dma(vW2, 0, 33, 0, NPK, "pk") + w2_loads(0, 2), mix(chunk(2), w2_loads(2, 2 + m2)), mix(chunk(3), w2_loads(2 + m2, 2 + m2 + m3)), w2_loads(2 + m2 + m3, 35),
             dma(vW2, 5, 58, 10240, 10, "pk"), grp(45) + dma(vW2, NPK, 58, 20480, 15 - NPK, "pk")]
    ld = g.add([x for p in parts for x in p], 0, start[7] + 30)
    first = [sum(len(p) for p in parts[:k]) for k in range(len(parts))]
    for k, a in ((1, cc[1]), (3, cb[1]), (4, bar[2]), (6, bar[4]), (7, bar[6])): ld[first[k]]["after"] = [(a, 0)]
    t0 = o.get("t0", 50)
    t, per = 12.0, (start[6] + (56 if NB else 42) - t0) / (75 + NPK)
    for k, x in enumerate(ld):
        if k == first[1]: t = t0
        vm = x["ins"][0].kind == "vm"
        x["lo"] = int(t) - (0 if vm else 3); x["hi"] = int(t) + (4 if vm else 1)
        if vm: t += 4 if k < first[1] else per if k < first[7] else o.get("pk2", 4)
    s7 = start[7]
    dead = lambda n: used[7, n]
    p0 = g.add(f3_issue(0), start[5] + 10, start[5] + 20)
    c0 = g.add(f3_check(0), 0, start[6], after=[(p0[-1], 40)])
    p1 = g.add(f3_issue(1), s7 + o.get("i1", 0), s7 + o.get("i1", 0) + 4, after=[(c0[-1], 1)])
    c1 = g.add(f3_check(1), 0, s7 + 52, after=[(p1[-1], 40)], prio=2)
    nl7 = o.get("nl7", 12)
    it = g.add(late_loads(0, nl7), s7 + (24 if NB else 14), s7 + o.get("x7e", 68), pace=True, win=3, after=[(c0[-1], 0), (ld[-1], 0)])
    if nl7 > 12: it[12]["after"] = [(c1[-1], 0)]
    n = 0
    for x in it:
        if x["ins"][0].kind == "vm":
            x["lo"] = max(x["lo"], dead(n)); x["hi"] = max(x["hi"], x["lo"]); n += 1
    if o.get("gst"):
        for i in range(1, 8): g.add(e.stamp(3 + i if i < 7 else 13), start[i], start[i], prio=3)
    newer = nw0
    r0 = reads(0)
    head = mk(f"v_mov_b32 v{T+4}, 0\nv_mov_b32 v{T+5}, 0\nds_write_b64 v{vSW}, v[{T+4}:{T+5}]\nds_write_b64 v{vSW}, v[{T+4}:{T+5}] offset:512") if NB else []
    for p in range(5):
        it = mk(f"s_waitcnt vmcnt({newer + 8 - 2 * p})") + r0[2 * p: 2 * p + 2]
        if p < 2: head += it
        else: hb = g.add(it, 5 * (p - 2), 5 * (p - 2) + 2, prio=4)
    hb = g.add(mk("s_barrier"), 11, 13, after=[(hb[0], 0)], prio=4)
    r1[0]["after"] = [(hb[-1], 0)]; mv[0][0]["after"] = [(hb[-1], 0)]
    for k, x in enumerate(r1): x["lo"] = 13 + k
    ld[0]["after"] = ld[0]["after"] + [(hb[-1], 0)]; pb[0]["after"] = [(hb[-1], 0)]
    g.add(mk(f"buffer_store_dwordx2 v[{vTG}:{vTG+1}], v198, {SRD}, 0 offen sc1"), 11, 16, after=[(hb[-1], 0)], prio=4)
    h1 = g.add(hd, 0, 76, after=[(ld[first[1] - 1], 0)])
    ld[first[2]]["after"] = [(h1[-1], 0)]
    pw = f3_prewarm(e)
    g.add(pw, 14, start[1] - 1, after=[(h1[-1], 0), (hb[-1], 0)])
    if o.get("fst"): e(e.stamp(2))
    e.pre_g1 = list(e.p)
    e.g1 = head + g.run(); e.g1m = (main, start)
    e(e.g1)
    if o.get("fst"): e(e.stamp(3))
    if o.get("gst"): o["fst"] = 0
    RD, RR, RU, O2 = 50, 82, 86, 120
    A2 = lambda c: 10 + 20 * (c & 1)
    vPW, vPR, vRR, vOS = TA, TA + 1, TA + 2, TA + 3
    nup = o.get("nup", 0)
    e(f"v_add_u32 v{vSW}, s58, v{vL16}\nv_add_u32 v{T+6}, s33, v{vL16}\n@vm pk")
    e([unpark(n) for n in range(35, 35 + nup)])
    e(e7b)
    nlt = nl7 + o.get("nlt", 2)
    e(late_loads(nl7, nlt))
    setup1 = mk(f"""v_and_b32 v{T+4}, 15, v1
        v_lshrrev_b32 v{T+5}, 4, v1
        v_mul_u32_u24 v{vPW}, 176, v{T+4}
        v_lshrrev_b32 v{T+4}, 1, v{T+5}
        v_lshl_add_u32 v{vPW}, v{T+4}, 4, v{vPW}
        v_and_b32 v{T+4}, 1, v{T+5}
        v_mul_u32_u24 v{T+4}, 2816, v{T+4}
        v_add_u32 v{vPW}, v{vPW}, v{T+4}
        s_mul_i32 s48, s{sW}, 5632
        s_add_u32 s48, s48, {PART}
        v_add_u32 v{vPW}, s48, v{vPW}""")
    setup2 = mk(f"""v_min_u32 v{T+4}, 39, v1
        v_mul_u32_u24 v{T+5}, 6554, v{T+4}
        v_lshrrev_b32 v{T+5}, 16, v{T+5}
        v_mul_u32_u24 v{T+7}, 10, v{T+5}
        v_sub_u32 v{T+4}, v{T+4}, v{T+7}
        s_lshl_b32 s48, s{sW}, 2
        v_add_u32 v{T+5}, s48, v{T+5}
        v_mul_u32_u24 v{vPR}, 176, v{T+5}
        v_lshl_add_u32 v{vPR}, v{T+4}, 4, v{vPR}
        v_add_u32 v{vRR}, {RES}, v{vPR}
        v_mul_u32_u24 v{vOS}, 1280, v{T+5}
        v_lshl_add_u32 v{vOS}, v{T+4}, 4, v{vOS}
        v_cmp_gt_u32 s[50:51], 40, v1
        v_mov_b32 v{T+5}, 0x40000000
        s_mov_b32 s64, s30
        s_mov_b32 s65, s31
        s_mov_b32 s66, {2048 * 1280}
        s_mov_b32 s67, 0x20000
        v_cndmask_b32 v{vOS}, v{T+5}, v{vOS}, s[50:51]
        s_lshl1_add_u32 s46, s62, s72
        s_mul_i32 s46, s46, {16 * 1280}
        s_mul_i32 s48, s68, 160
        s_add_u32 s46, s46, s48""")
    assert PART == 0
    main = []
    NT = o.get("nt", 4)
    first_use, done = {}, {}
    for c in range(4):
        seq = [(k, t) for k in range(12 - NT) for t in range(5)] + [(k, t) for t in range(5) for k in range(12 - NT, 12)]
        if o.get("ch2", 1): seq = [(k, t) for k0 in range(0, 12, NT) for t in (range(5) if (12 - NT - k0) // NT % 2 == 0 or not o.get("bou", 1) else range(4, -1, -1)) for k in range(k0, k0 + NT)]
        for k, t in seq:
            a = A2(c) + 4 * t
            first_use.setdefault((c, k), len(main))
            need = dict(tagput(w2reg[5 * k + t], ("W2", 5 * k + t))); need.update(tagput(actreg[c, k], ("X", c, k)))
            main.append(I(f"{MF} {r4('v', a)}, {r4(*w2reg[5 * k + t])}, {r4(*actreg[c, k])}, " + ("0" if k == 0 else r4('v', a)), need=need))
            if k == 11:
                main[-1].put = tagput(("v", a), ("P", c)); done[c, t] = len(main) - 1
    def part_write(c):
        return [I(f"ds_write_b128 v{vPW}, {r4('v', A2(c) + 4 * t)} offset:{(c & 1) * 22528 + 32 * t}", tag=f"pw{c}", need=tagput(("v", A2(c) + 4 * t), ("P", c))) for t in range(5)]
    def res_read(c):
        rd = mk(f"ds_read_b128 {r4('v', RR)}, v{vRR} offset:{2816 * c}", tag=f"rr{c}")
        un = mk([f"v_lshlrev_b32 v{RU+2*k}, 16, v{RR+k}\nv_and_b32 v{RU+2*k+1}, 0xffff0000, v{RR+k}" for k in range(4)])
        return rd, un
    def part_read(c):
        return mk([f"ds_read_b128 {r4('v', RD + 8 * w + 4 * hf)}, v{vPR} offset:{(c & 1) * 22528 + 5632 * w + 2816 * hf}" for w in range(4) for hf in range(2)], tag=f"pr{c}")
    def finish(c, packed):
        out = [f"s_add_u32 s47, s46, {c * 512 * 1280}"]
        for w in range(4):
            if packed: out += [f"v_pk_add_f32 v[{RU+2*k}:{RU+2*k+1}], v[{RU+2*k}:{RU+2*k+1}], v[{RD+8*w+2*k}:{RD+8*w+2*k+1}]" for k in range(4)]
            else: out += [f"v_add_f32 v{RU+k}, v{RU+k}, v{RD+8*w+k}" for k in range(8)]
        out += [f"v_cvt_pk_bf16_f32 v{O2+k}, v{RU+2*k}, v{RU+2*k+1}" for k in range(4)]
        out += [f"buffer_store_dwordx4 {r4('v', O2)}, v{vOS}, {SRD2}, s47 offen" + (" sc1" if o.get("osc") else "")]
        return mk(out)
    g = Sched(main, dense=True)
    su = g.add(setup1 + setup2, 0, 40)
    sg = g.add(f3_signal(7), o.get("sig7", 36), o.get("sig7", 36) + 3, prio=3)
    up = g.add([unpark(n) for n in range(35 + nup, 60)], 0, 26, pace=True)
    b0 = g.add(mk("@lgkm up\ns_barrier"), 33, 34, after=[(up[-1], 4)])
    ll = g.add(late_loads(nlt, 24), 0, o.get("lle", 46), pace=True, win=2, prio=1)
    p2 = g.add(f3_issue(2), o.get("i2", 34), o.get("i2", 34) + 3, prio=2)
    c2 = g.add(f3_check(2), 0, 100, after=[(p2[-1], o.get("rtt", 36)), (sg[-1], 0)], prio=2)
    x2 = g.add(act_loads(2), o.get("i2", 34) + 38, o.get("x2e", 110), pace=True, win=2, after=[(c2[-1], 0), (ll[-1], 0)], prio=1)
    i3 = o.get("i3", 100); r3 = o.get("rt3", 30)
    p3 = g.add(f3_issue(3), i3, i3 + 3, after=[(c2[-1], 1)], prio=2)
    c3 = g.add(f3_check(3) + [e.stamp(5)] * bool(o.get("fst") and e.stamp(5)), 0, i3 + r3 + 6, after=[(p3[-1], r3)], prio=2)
    x3 = g.add(act_loads(3), 66, 239, after=[(c3[-1], 0), (x2[-1], 0)], prio=2)
    for k, x in enumerate(x3[1:]):
        x["lo"] = i3 + r3 + max(0, k - 3) * o.get("p3", 5); x["hi"] = min(x["lo"] + 6, first_use[3, k] - 2)
    for (c, k), n in first_use.items():
        if n: g.add(mk(f"@vm x{c}_{k}"), n - 1, n - 1, prio=-1)
    prev = su[-1]
    for c in range(4):
        b = 60 * (c + 1)
        rd, un = res_read(c)
        r = g.add(rd, 0, b - 6, after=[(prev, 0)])
        u = g.add(mk(f"@lgkm rr{c}") + un, 0, b - 1 + (10 if c < 3 else 0), after=[(r[-1], 4)])
        pw = part_write(c)
        nin = 5 if c < 3 else 3
        w = g.add(pw[:nin], 0, b + 6, prio=2, after=[(b0[-1], 0)])
        for t in range(nin): w[t]["lo"] = min(done[c, t] + o.get("wd", 6), 239)
        if c < 3:
            br = g.add(mk(f"@lgkm pw{c}\ns_barrier"), 0, b + 14, after=[(w[-1], 5)], prio=2)
            pr = g.add(part_read(c), b + 8, b + 8 + o.get("prs", 10), pace=True, after=[(br[-1], 0)], prio=1)
            prev = g.add(mk(f"@lgkm pr{c}") + finish(c, False), 0, b + 48, after=[(pr[-1], 4), (u[-1], 0)])[-1]
    if o.get("fst"): e(e.stamp(4))
    e.pre_g2 = list(e.p); e.g2 = g.run()
    e(e.g2)
    if o.get("fst"): e(e.stamp(10))
    e(pw[3:]); e("s_waitcnt lgkmcnt(0)\ns_barrier")
    e(part_read(3)); e(finish(3, True))
    if o.get("fst"): e(e.stamp(11)); e("s_waitcnt vmcnt(0)"); e(e.stamp(12))
    e.models = (model_cycles(e.g1), model_cycles(e.g2))
```

```python
import struct, math, sys
from asmlib import I, mk, finalize, Gaps, Sched, model_cycles, align8, align_runs, sizes

NAME = "sequential_preLN__ssm_conv_s4__geglu_ffn__prompt"
def fx(x): return hex(struct.unpack("<I", struct.pack("<f", x))[0])
LOG2E = math.log2(math.e)

EPOCH, DBG = 0, 0xe0000
F1, FW, F2, F2B, F2C = ((4 << 20) + 0x50000 * k for k in range(5))
HOFF = 0x40000
UP = 161 * 256
UT, XT, HT, W1P, W2P, ACT, WS_SIZE = 1 << 20, 4 << 20, 7 << 20, 10 << 20, 14 << 20, 16 << 20, 24 << 20
AP = 192 * 256 + 4096
U0, X0, CH0, CHS = 0, 20480, 36864, 21760
PS, A5, A3, A9, A7 = 832, 0, 3328, 6656, 9984 + 64
KTS = 272
KN = 13376; W4 = 55 * KTS; W4P = 2832; K2 = W4 + 2 * W4P; K3 = K2 + 752
LNU = CH0 + 4 * CHS; LNS = 1344
SLOT = 40960
STP = 3 * SLOT
RES = STP + 2048
RST = 160 * 1024 - 4 * 6144
PART = 0
LDS_BYTES = 160 * 1024
assert LNU + 10752 <= LDS_BYTES and RES + 4 * 2816 <= RST

sW, sCLS, sIDX = 36, 37, 38
SRD = "s[40:43]"; TAG = "s[44:45]"; SRD2 = "s[64:67]"
SPIN = 20000

class K:
    def __init__(self, stop=None, stamps=False, opt=None):
        self.p = []; self.stop = stop; self.stamps = stamps; self.nlab = 0
        self.o = dict(opt or {}); self.fs = self.o.get("fs", 6); self.in_ffn = self.in_ln = False; self.cold = []
    def __call__(self, x, **kw): self.p += mk(x, **kw)
    def lab(self, s):
        self.nlab += 1; return f"L_{s}_{self.nlab}"
    def stamp(self, k):
        if self.o.get("nost") and k and k != self.o.get("st"): return []
        if self.o.get("fst") and not self.in_ffn and (k not in (0, 1, 6, 7, 8, 13) or (k == 1 and self.in_ln)): return []
        return mk(f"s_memrealtime s[{74 + 2 * k}:{75 + 2 * k}]") if self.stamps else []

    vSIG, vTAG = 177, 178
    def signal_setup(self):
        out = mk(f"""s_lshl_b32 s48, s2, {self.fs}
            v_lshrrev_b32 v174, 3, v1
            v_lshl_add_u32 v174, v174, 15, s48
            v_and_b32 v175, 7, v1
            v_lshl_add_u32 v174, v175, 3, v174""")
        if self.fs < 6: out += mk(f"v_lshrrev_b32 v175, {self.fs - 3}, v175\nv_lshl_add_u32 v174, v175, 27, v174")
        return out + mk(f"""s_min_u32 s48, s{sW}, 1
            s_lshl_b32 s48, s48, 30
            v_add_u32 v{self.vSIG}, s48, v174""")
    def prewarm(self):
        return mk(f"""s_mul_i32 s48, s{sW}, {FW - F1}
            s_add_u32 s48, s48, {F1}
            buffer_store_dwordx2 v[2:3], v174, {SRD}, s48 offen sc1
            s_mov_b32 s48, {F2C}
            buffer_store_dwordx2 v[2:3], v{self.vSIG}, {SRD}, s48 offen sc1""")
    def helper_flags(self, dst, region):
        return mk(f"""s_lshl_b32 s48, s{sCLS}, 15
            s_mul_i32 s49, s{sW}, {24 << self.fs}
            s_add_u32 s48, s48, s49
            s_add_u32 s48, s48, {region + (160 << self.fs)}
            v_min_u32 v{dst}, 23, v1
            v_lshl_add_u32 v{dst}, v{dst}, {self.fs}, s48""")
    def extra_lanes(self, dst, code):
        return mk(code + f"""
            v_lshrrev_b32 v{dst}, 3, v0
            v_cmp_eq_u32 vcc, 8, v{dst}
            v_lshl_add_u32 v{dst}, v1, 3, s48
            v_cndmask_b32 v{dst}, v{self.vSIG}, v{dst}, vcc""")
    def hint_setup(self, dst, sub):
        return self.extra_lanes(dst, f"s_lshl_b32 s48, s2, 7\ns_add_u32 s48, s48, {HOFF}\ns_sub_u32 s48, s48, {sub}")
    def hint_wait(self, region):
        L = self.lab("hint")
        return mk(f"""s_sub_u32 s48, s2, 160
            s_lshl_b32 s48, s48, 7
            s_add_u32 s48, s48, {region + HOFF}
            v_mov_b32 v196, s48
            s_cmp_lg_u32 s{sW}, 0
            s_cbranch_scc1 {L}""") + self.poll_issue(196, 192) + self.poll_check(196, 192, slp=4) + mk(f"{L}:\ns_barrier")
    def signal_all(self, region, va=None):
        return mk(f"s_mov_b32 s48, {region}\nbuffer_store_dwordx2 v[{self.vTAG}:{self.vTAG+1}], v{va or self.vSIG}, {SRD}, s48 offen sc1")
    def poll_issue(self, va, vd, so="0"):
        return mk(f"buffer_load_dwordx2 v[{vd}:{vd+1}], v{va}, {SRD}, {so} offen sc1")
    def poll_check(self, va, vd, so="0", slp=2):
        A, B = self.lab("retry"), self.lab("seen")
        self.cold.append(f"""{A}:
    s_mov_b32 s49, 0
{A}_l:
    s_mov_b64 exec, vcc
    s_sleep {self.o.get('slp', slp)}
    buffer_load_dwordx2 v[{vd}:{vd+1}], v{va}, {SRD}, {so} offen sc1
    s_add_u32 s49, s49, 1
    s_waitcnt vmcnt(0)
    v_cmp_ne_u64 vcc, {TAG}, v[{vd}:{vd+1}]
    s_mov_b64 exec, -1
    s_cmp_ge_u32 s49, {SPIN}
    s_cbranch_scc1 {B}
    s_nop 1
    s_cbranch_vccnz {A}_l
    {f"s_mov_b32 s{76 + 2 * len(self.cold)}, s49" if self.o.get("cnt") else ""}
    s_branch {B}""")
        br = I(f"s_cbranch_vccnz {A}")
        br.uses |= {("v", va), ("v", vd), ("v", vd + 1)} | ({("s", int(so[1:]))} if so != "0" else set())
        c = I(f"v_cmp_ne_u64 vcc, {TAG}, v[{vd}:{vd+1}]"); c.put = br.need = {("vcc", 0): A}
        return [c, br] + mk(f"{B}:")

    def prologue(self):
        e = self
        e(f"s_cmp_ge_u32 s2, 256\ns_cbranch_scc1 L_end")
        e(self.stamp(0))
        if e.o.get("cnt"): e([f"s_mov_b32 s{r}, 0" for r in range(76, 102, 2)])
        e(f"""s_load_dwordx16 s[4:19], s[0:1], 0
            s_load_dwordx16 s[20:35], s[0:1], 64
            s_getpc_b64 s[46:47]
            L_pc:
            v_and_b32 v1, 63, v0
            v_lshrrev_b32 v2, 6, v0
            s_lshr_b32 s{sIDX}, s2, 3
            v_readfirstlane_b32 s{sW}, v2
            s_mul_i32 s48, s{sIDX}, 14
            v_min_u32 v3, 13, v0
            v_add_u32 v3, s48, v3
            v_lshlrev_b32 v3, 7, v3
            v_min_u32 v3, L_code_end-{NAME}_kernel-64, v3
            global_load_dword v4, v3, s[46:47]
            s_and_b32 s{sCLS}, s2, 7
            v_lshrrev_b32 v5, 5, v0
            v_and_b32 v6, 31, v0
            s_lshl_b32 s48, s2, 3
            v_add_u32 v7, s48, v5
            v_mul_u32_u24 v7, 1280, v7
            v_lshl_add_u32 v2, v6, 2, v7
            v_lshl_add_u32 v7, v6, 4, v7""")

    def x_loads(self):
        self(f"""global_load_dwordx4 v[10:13], v7, s[4:5]
            global_load_dwordx4 v[14:17], v7, s[4:5] offset:512
            global_load_dword v18, v2, s[4:5] offset:1024
            global_load_dword v19, v2, s[4:5] offset:1152
            s_mov_b32 s40, s34
            s_mov_b32 s41, s35
            s_mov_b32 s42, {WS_SIZE}
            s_mov_b32 s43, 0x20000
            v_mov_b32 v138, {EPOCH}""")
    def epoch_load(self):
        self(f"buffer_load_dword v{self.vTAG+1}, v138, {SRD}, 0 offen sc1")

    def conv_param_loads(self):
        e = self
        e(f"""s_mul_i32 s50, s{sCLS}, 80
            s_lshl2_add_u32 s50, s{sIDX}, s50
            s_add_u32 s50, s50, s{sW}
            s_mul_i32 s48, s50, 384
            v_lshl_add_u32 v34, v1, 2, s48
            v_lshl_add_u32 v35, v1, 1, s48
            s_lshl_b32 s48, s50, 1
            v_mov_b32 v36, s48
            global_load_ushort v32, v36, s[18:19]""")
        for a in range(6):
            e(f"global_load_dword v{20+a}, v34, s[{6+2*a}:{7+2*a}]")
        for a in range(6):
            e(f"global_load_ushort v{26+a}, v35, s[{6+2*a}:{7+2*a}] offset:256")
        e("global_load_ushort v33, v36, s[20:21]")

    def ln_consts(self):
        self(f"""v_mul_u32_u24 v141, {LNS}, v5
            v_add_u32 v141, {LNU}, v141
            v_lshl_add_u32 v140, v6, 2, v141
            v_add_u32 v140, 1024, v140
            v_lshl_add_u32 v141, v6, 4, v141
            v_and_b32 v143, 3, v5
            v_mul_u32_u24 v143, {2 * LNS}, v143
            v_add_u32 v143, {LNU + 1280}, v143
            v_mov_b32 v2, 0
            v_mov_b32 v3, 0
            ds_write_b64 v143, v[2:3]
            v_lshrrev_b32 v139, 2, v5
            v_lshl_add_u32 v143, v139, 1, v143
            v_bfe_u32 v142, v1, 2, 2
            v_mul_u32_u24 v142, {LNS}, v142
            v_lshrrev_b32 v139, 4, v1
            v_lshl_add_u32 v142, v139, 5, v142
            v_and_b32 v139, 3, v1
            v_lshl_add_u32 v142, v139, 3, v142
            s_lshl_b32 s48, s{sW}, 7
            s_add_u32 s48, s48, {LNU}
            v_add_u32 v142, s48, v142
            s_lshr_b32 s51, s2, 2
            s_and_b32 s48, s51, 7
            s_lshl_b32 s49, s2, 1
            s_and_b32 s49, s49, 4
            s_xor_b32 s48, s48, s49
            v_xor_b32 v139, s48, v139
            v_lshrrev_b32 v8, 2, v1
            v_lshlrev_b32 v8, 8, v8
            v_lshl_add_u32 v8, v139, 4, v8
            v_cmp_gt_u32 vcc, 132, v0
            v_mov_b32 v37, 0x40000000
            s_mul_i32 s51, s51, {UP}
            s_and_b32 s48, s2, 1
            v_cndmask_b32 v37, v37, v8, vcc
            s_lshl_b32 s48, s48, 7
            s_add_u32 s51, s51, s48
            s_lshl_b32 s48, s{sW}, 12
            s_add_u32 s51, s51, s48
            s_add_u32 s51, s51, {UT}
            s_add_u32 s52, s51, 16384
            s_add_u32 s53, s51, 32768
            s_mov_b32 s54, 0x3f803f80""")
        self(self.signal_setup()); self(self.prewarm())

    def ln1(self):
        keep, self.p, self.in_ln = self.p, [], True
        e = self
        for i in range(10):
            e(f"v_dot2c_f32_bf16 v2, s54, v{10+i}\nv_dot2c_f32_bf16 v3, v{10+i}, v{10+i}")
        e(self.stamp(1))
        un = [f"v_lshlrev_b32 v{80+2*i}, 16, v{10+i}" for i in range(10)] + [f"v_and_b32 v{81+2*i}, 0xffff0000, v{10+i}" for i in range(10)]
        e(un.pop()); e(un.pop()); e(un.pop())
        for m in ("quad_perm:[1,0,3,2]", "quad_perm:[2,3,0,1]", "row_half_mirror", "row_mirror"):
            e(f"v_add_f32_dpp v2, v2, v2 {m} row_mask:0xf bank_mask:0xf\nv_add_f32_dpp v3, v3, v3 {m} row_mask:0xf bank_mask:0xf")
            e(un.pop())
        e("v_mov_b32 v4, v2\nv_mov_b32 v5, v3"); e(un.pop()); e(un.pop())
        e("v_permlane16_swap_b32 v4, v2\nv_permlane16_swap_b32 v5, v3")
        e(f"""v_add_f32 v2, v2, v4
            v_add_f32 v3, v3, v5
            v_mul_f32 v2, {fx(1/640)}, v2
            v_mul_f32 v3, {fx(1/640)}, v3
            v_fma_f32 v3, -v2, v2, v3
            v_max_f32 v3, 0, v3
            v_cvt_pk_bf16_f32 v2, v2, v3
            v_and_b32 v3, 0xffff0000, v2
            v_add_f32 v3, {fx(1e-5)}, v3
            v_cvt_pk_bf16_f32 v3, v3, v3
            v_lshlrev_b32 v3, 16, v3
            v_sqrt_f32 v3, v3
            v_lshlrev_b32 v2, 16, v2
            v_cvt_pk_bf16_f32 v3, v3, v3
            v_lshlrev_b32 v3, 16, v3
            v_rcp_f32 v4, v3""")
        e(un)
        e("v_mul_f32_e64 v6, -v2, v4")
        for i in range(10):
            e(f"v_pk_fma_f32 v[{80+2*i}:{81+2*i}], v[{80+2*i}:{81+2*i}], v[4:5], v[6:7] op_sel_hi:[1,0,0]")
        for i in range(10):
            e(f"v_cvt_pk_bf16_f32 v{128+i}, v{80+2*i}, v{81+2*i}")
        e("ds_write_b128 v141, v[128:131]\nds_write_b128 v141, v[132:135] offset:512\nds_write2_b32 v140, v136, v137 offset1:32")
        e(f"ds_write_b16_d16_hi v143, v3 offset:{LNS}\nds_write_b16_d16_hi v143, v2 offset:{LNS + 4}")
        e("s_waitcnt lgkmcnt(0)\ns_barrier")
        for k in range(3):
            e(f"""ds_read_b64_tr_b16 v[{100+4*k}:{101+4*k}], v142 offset:{512*k}
                ds_read_b64_tr_b16 v[{102+4*k}:{103+4*k}], v142 offset:{512*k + 4*LNS}""")
        for k in range(3):
            e(f"buffer_store_dwordx4 v[{100+4*k}:{103+4*k}], v{8 if k < 2 else 37}, {SRD}, s{51+k} offen sc1", tag="ln")
        e(self.stamp(2))
        out, self.p, self.in_ln = self.p, keep, False
        return out

    def ln_publish(self):
        return mk(f"""v_readfirstlane_b32 s44, v{self.vTAG+1}
            s_add_u32 s44, s44, 1
            s_xor_b32 s45, s44, 0x5bd1e995
            v_mov_b32 v{self.vTAG}, s44
            v_mov_b32 v{self.vTAG+1}, s45
            @vm ln
            s_barrier""") + self.signal_all(F1) + self.stamp(3)

    TB0 = 200
    vUB, vBB, vHST, vDMA, vPOLL, vST = 200, 208, 209, 210, 211, 212
    vAB, vBW, vR2, vR3, vK2A, vK3A = 216, 217, 218, 220, 222, 223
    vKTX, vKTY, vKNW, vK2W, vK3W, vW4S, vW4D, vW4S3, vW4D3, vZB = range(224, 234)
    vBAND, vL16 = 236, 252

    def lane_table(self):
        e = self
        tab = {r: [0] * 64 for r in range(200, 252)}
        ua = lambda ap, hh, s: 256 * ap + 128 * (hh & 1) + 16 * ((4 * (hh >> 1) + s) ^ (ap & 7))
        for l in range(64):
            col, h, q, r, c, h2 = l & 15, l >> 4, (l >> 2) & 3, l & 3, l & 31, l >> 5
            for j in range(8): tab[e.vUB + j][l] = U0 + 2048 + ua(col - j, h, 0)
            o8 = 2 * col - 1 + h
            tab[e.vBB][l] = U0 + 4096 + ua(o8 >> 2, o8 & 3, 0)
            tab[e.vHST][l] = 40960 * col + 16 * h
            tab[e.vDMA][l] = UT + 40960 + UP * h + 16 * col
            tab[e.vPOLL][l] = F1 + (l << e.fs)
            for s in range(4): tab[e.vST + s][l] = U0 + 2048 + ua(col, h, s)
            tab[e.vAB][l] = 32 * (q - h) + 8 * r
            tab[e.vBW][l] = PS * ((h + 3) & 3) + 8 * (col + ((h + 7) >> 2))
            for mt in range(2):
                v = 2 * r + mt + q
                tab[e.vR2 + mt][l] = (A3 if q & 1 else A5) + PS * (v & 3) + 8 * ((v >> 2) + 2 * h)
                v = 2 * r + mt + 2 * q
                tab[e.vR3 + mt][l] = (A7 if q & 1 else A9) + PS * (v & 3) + 8 * ((v >> 2) + 4 * h)
            tab[e.vK2A][l] = 16 * (h - col); tab[e.vK3A][l] = 8 * (2 * h - col)
            tab[e.vKTX][l] = KTS * (c - 16 if c > 22 else c) + 16 * h2
            tab[e.vKTY][l] = KTS * c + 16 * h2
            tab[e.vKNW][l] = 8 * (2 * c + h2)
            tab[e.vK2W][l] = -(128 * h2 + 4 * c); tab[e.vK3W][l] = -(128 * h2 + 2 * c)
            tab[e.vW4S][l] = 8 * l
            tab[e.vW4D][l] = W4P * (l & 1) + 32 * (l >> 1)
            tab[e.vW4S3][l] = {0: 1032, 1: 1040, 24: 1048, 25: 1056}.get(l, 0)
            tab[e.vW4D3][l] = tab[e.vW4D][l] + 2176 if l < 40 else 0
            tab[e.vZB][l] = {16: KN, 17: KN + 1040, 18: KN + 1056}.get(l, (A5, A3, A9, A7)[q] + PS * r)
            for rr in range(e.vAB, e.vZB + 1): tab[rr][l] += CH0
            for b, w in enumerate((2, 1, 4, 3)):
                for m in range(4):
                    on = lambda k: 0x3F80 if abs(8 * h + k - 4 - col) <= w else 0
                    tab[e.vBAND + 4 * b + m][l] = on(2 * m) | on(2 * m + 1) << 16
        words = [tab[200 + 4 * k + i][l] for k in range(13) for l in range(64) for i in range(4)]
        return "\n".join(".long " + ",".join(hex(x) if x > 99999 else str(x) for x in words[n:n + 16]) for n in range(0, len(words), 16))
    def table_loads(self, ks):
        return [I(f"global_load_dwordx4 v[{200+4*k}:{203+4*k}], v{254 + (k >= 8)}, s[46:47] offset:{1024 * (k % 8) - 4096}") for k in ks]

    def conv_consts_a(self):
        e = self
        e(f"""s_mul_i32 s70, s{sW}, {CHS}
            v_lshlrev_b32 v{e.vL16}, 4, v1
            v_add_u32 v254, L_table-L_pc+4096, v{e.vL16}
            v_add_u32 v255, 8192, v254
            v_mov_b32 v190, 0
            v_mov_b32 v191, 0
            v_mov_b32 v192, 0
            v_mov_b32 v193, 0
            v_lshlrev_b32 v186, 4, v0
            v_add_u32 v187, s70, v{e.vL16}
            v_mov_b32 v188, 0x3f80
            s_mov_b32 m0, s70
            ds_write_b128 v186, v[190:193] offset:{U0}
            ds_write_b128 v187, v[190:193] offset:{CH0 + W4}
            ds_write_b128 v187, v[190:193] offset:{CH0 + W4 + W4P}
            ds_write_b128 v187, v[190:193] offset:{CH0 + K2}
            ds_write_b128 v187, v[190:193] offset:{CH0 + K2 + 112}
            ds_write_addtid_b32 v188 offset:{CH0}
            s_lshl_b32 s59, s{sW}, 12""")
    def conv_fix(self):
        e = self
        a = mk(f"""v_add_u32 v{e.vKTX}, s70, v{e.vKTX}
            v_add_u32 v{e.vKTY}, s70, v{e.vKTY}
            s_lshl_b32 s48, s{sCLS}, 15
            s_lshl_b32 s49, s{sW}, {6 + e.fs}
            s_add_u32 s48, s48, s49
            v_add_u32 v{e.vPOLL}, s48, v{e.vPOLL}
            s_mul_i32 s49, s{sW}, {16 * UP}
            v_add_u32 v176, s49, v{e.vDMA}
            s_lshr_b32 s48, s50, 2
            s_sub_u32 s48, 160, s48
            s_lshl_b32 s48, s48, 8
            v_subrev_u32 v{e.vDMA}, s48, v176
            v_add_u32 v{e.vZB}, s70, v{e.vZB}""")
        b = mk([f"v_add_u32 v{r}, s55, v{r}" for r in list(range(e.vKNW, e.vZB)) + list(range(e.vAB, e.vKTX))])
        b += mk(f"s_lshl_b32 s68, s{sW}, 4") + mk([f"v_xor_b32 v{r}, s68, v{r}" for r in range(e.vUB, e.vBB + 1)])
        b += mk(f"""s_lshl_b32 s68, s50, 2
            s_and_b32 s68, s68, 32
            v_xor_b32 v{e.vHST}, s68, v{e.vHST}
            s_lshl_b32 s68, s50, 6
            v_add_u32 v{e.vHST}, s68, v{e.vHST}
            s_mul_i32 s69, s{sIDX}, {-7 << e.fs}
            s_mul_i32 s48, s{sCLS}, {19 << e.fs}
            s_add_u32 s69, s69, s48""") + e.hint_setup(199, "s69")
        b += mk(f"s_add_u32 s48, s69, {F2B}\nv_add_u32 v{e.vSIG}, s48, v{e.vSIG}") + e.extra_lanes(198, f"s_min_u32 s48, s2, 1\ns_lshl_b32 s48, s48, 30")
        return a, b

    @staticmethod
    def cmul(d, z, w, t):
        return [f"v_pk_mul_f32 v[{t}:{t+1}], v[{z}:{z+1}], v[{w}:{w+1}] op_sel:[1,1] op_sel_hi:[1,0] neg_lo:[1,0]",
                f"v_pk_fma_f32 v[{d}:{d+1}], v[{z}:{z+1}], v[{w}:{w+1}], v[{t}:{t+1}] op_sel_hi:[0,1,1]"]

    def kgen_setup(self, j):
        out = []
        for a in range(6):
            src = 20 + a if j < 2 else 26 + a
            out.append(f"v_and_b32 v{146+a}, 0xffff0000, v{src}" if j == 1 else f"v_lshlrev_b32 v{146+a}, 16, v{src}")
        out += f"""v_mul_f32 v146, s56, v146
            v_mul_f32 v147, s57, v147
            v_mul_f32 v148, s58, v148
            v_mul_f32 v149, s58, v149
            v_mul_f32 v152, 0x41000000, v146
            v_mul_f32 v153, 0xc1000000, v147
            v_mul_f32 v154, 0x43800000, v146
            v_mul_f32 v155, 0x43800000, v147
            v_fract_f32 v147, v147
            v_fract_f32 v153, v153
            v_fract_f32 v155, v155
            v_exp_f32 v146, v146
            v_mul_f32 v44, v150, v148
            v_cos_f32 v38, v147
            v_mul_f32 v45, v150, v149
            v_sin_f32 v39, v147
            v_fma_f32 v44, -v151, v149, v44
            v_exp_f32 v152, v152
            v_fmac_f32 v45, v151, v148
            v_cos_f32 v40, v153
            v_mul_f32 v38, v146, v38
            v_sin_f32 v41, v153
            v_mul_f32 v39, v146, v39
            v_exp_f32 v154, v154
            v_mul_f32 v40, v152, v40
            v_cos_f32 v42, v155
            v_mul_f32 v41, v152, v41
            v_sin_f32 v43, v155
            v_mul_f32 v42, v154, v42
            v_mul_f32 v43, v154, v43""".split("\n")
        return mk(out)

    def kgen_tables(self):
        e = self
        W1, W8, W256 = 38, 40, 42
        rows = [0, 1, 2, 3, 4, 5, 6, 7, 256, 258, 260, 1288, 260, 262, 264, 1800, 516, 520, 1032, None, 772, 776, 1544]
        xs = [(("x", 0), None, None)] + [(("x", x), ("x", x - 1), "w1") for x in range(1, 9)] + [(("x", x), ("x", x - 256), "w256") for x in (256, 258, 260, 262, 264, 516, 520, 772, 776, 1032, 1288, 1544, 1800)]
        ys = [(("y", 1), None, None)] + [(("y", c), ("y", c - 1), "w8") for c in range(2, 32)]
        ny, nx = e.o.get("ky", 8), e.o.get("kx", 5)
        batches = [ys[len(ys) * k // ny: len(ys) * (k + 1) // ny] for k in range(ny)] + [xs[len(xs) * k // nx: len(xs) * (k + 1) // nx] for k in range(nx)]
        last = {}
        for b, its in enumerate(batches):
            for d, s, w in its:
                last[d] = max(last.get(d, b), b)
                if s: last[s] = b
        reg = {"w1": W1, "w8": W8, "w256": W256, ("y", 1): W8, ("x", 0): 44}
        free = [46, 48, 50, 52, 54, 56, 62, 168, 170, 172, 174, 144]
        out = []
        for b, its in enumerate(batches):
            mul, cvt, st = [], [], []
            for k, (d, s, w) in enumerate(its):
                if s:
                    reg[d] = free.pop(0)
                    mul += e.cmul(reg[d], reg[s], reg[w], 58 + 2 * (k & 1))
                if d != ("x", 8):
                    o = 156 + len(cvt)
                    cvt.append(f"v_cvt_pk_bf16_f32 v{o}, v{reg[d]}, v{reg[d]+1}")
                    for r in ([d[1]] if d[0] == "y" else [32 + n for n, x in enumerate(rows) if x == d[1]]):
                        st.append(f"ds_write_addtid_b32 v{o} offset:{CH0 + KTS * r}")
            for d in [d for d, l in last.items() if l == b and d not in (("y", 1), ("x", 0))]: free.append(reg[d])
            out.append((mk(mul), mk(cvt), mk(st)))
        return out, ny

    def kgen(self):
        e = self
        e(f"""v_lshlrev_b32 v32, 16, v32""")
        e(f"""
            v_mul_f32 v32, {fx(LOG2E)}, v32
            v_exp_f32 v32, v32
            v_lshlrev_b32 v33, 16, v33
            v_cvt_pk_bf16_f32 v32, v32, v32
            v_lshlrev_b32 v32, 16, v32
            v_mul_f32 v34, {fx(LOG2E)}, v32
            v_mul_f32 v35, 0.15915494, v32
            v_readfirstlane_b32 s58, v32
            v_readfirstlane_b32 s56, v34
            v_readfirstlane_b32 s57, v35
            s_mov_b32 s55, s70""")
        drip = []
        def wdrip():
            w = e.w1_pack_issue(); drip.extend(w[k:k + 4] for k in range(0, 16, 4))
        ho = e.o.get("ho", 3)
        if ho: drip.extend([i] for i in e.table_loads(range(9, 13)))
        elif e.o.get("wl", 1) == 1: wdrip()
        def pub():
            if e.o.get("wl", 1) == 2: wdrip()
            return (e.walk("B", 0) if e.o.get("wkb", 3) == 5 else []) + e.ln_publish()
        def gather():
            a, b = e.gather(); drip.extend(b)
            for k, i in enumerate(e.table_loads(range(9, 13)) if not ho else []): drip[-4 + k] = drip[-4 + k][:3] + [i] + drip[-4 + k][3:]
            return a
        def pack():
            drip.extend([i] for i in e.w1_pack_stores())
            return e.w1_pack_perm() + e.stamp(9)
        hooks = {e.o.get("pub", 7): pub,
                 e.o.get("p1i", 23): lambda: e.poll_issue(e.vPOLL, 18),
                 e.o.get("pk", 17): pack,
                 e.o.get("p1c", 29): gather,
                 e.o.get("pw", 32): lambda: e.w1_publish(163) + e.stamp(12)}
        fix, e.late = e.conv_fix()
        hooks[e.o.get("fix", 6)] = lambda: fix
        if ho: hooks[e.o.get("pk", 17)] = hooks[e.o.get("pw", 32)] = lambda: []
        assert len(hooks) == 6 and e.o.get("pk", 17) < e.o.get("p1c", 29)
        xrd = lambda: mk([f"ds_read_b128 v[{64+8*ks}:{67+8*ks}], v{e.vKTX} offset:{32*ks + 32*KTS}" for ks in range(8)])
        yrd = lambda: mk([f"ds_read_b128 v[{68+8*ks}:{71+8*ks}], v{e.vKTY} offset:{32*ks}" for ks in range(8)])
        mfs = lambda j: [I(f"v_mfma_f32_32x32x16_bf16 v[128:143], v[{64+8*ks}:{67+8*ks}], v[{68+8*ks}:{71+8*ks}], " + ("0" if j == 0 and ks == 0 else "v[128:143]")) for ks in range(8)]
        n, mf, xr, ids = 0, [], [], e.ffn_ids()
        for j in range(3):
            e(e.kgen_setup(j))
            pend, yr = [], yrd()
            tb, ny = e.kgen_tables()
            for b, (mul, cvt, st) in enumerate(tb):
                e(mul)
                for _ in range(-(-len(mf) // (ny + 1 - b)) if b <= ny else 0):
                    e(mf.pop(0)); e(ids.pop(0))
                e(pend)
                for _ in range(min(len(xr), -(-8 // ny))): e(xr.pop(0))
                if b >= ny:
                    assert not mf and not xr
                    for _ in range(-(-len(yr) // (len(tb) - b))): e(yr.pop(0))
                if drip: e(drip.pop(0))
                if n in hooks: e(hooks[n]())
                e(cvt)
                pend = st; n += 1
            e(pend)
            xr, mf = xrd(), mfs(j)
            for _ in range(2 if j < 2 else 8): e(xr.pop(0))
        e(f"ds_write_b128 v{e.vZB}, v[190:193]")
        assert not drip
        e(e.stamp(11))
        e(e.helper_flags(e.vPOLL, F1))
        fwi = mk(f"s_mov_b32 s70, {FW - F1}") + e.poll_issue(e.vPOLL, 234, "s70")
        if e.o.get("fwi", 1) == 0: e(fwi)
        e(ids); e(e.late[:16])
        for k, m in enumerate(mf):
            e(m); e(e.late[16 + 5 * k: 21 + 5 * k])
        assert len(e.late) <= 56
        R = 128
        e(f"""v_cmp_eq_u32 vcc, 0, v1
            s_mov_b32 s71, 0xffff
            v_cndmask_b32 v33, 0, v33, vcc
            v_add_f32 v{R}, v{R}, v33
            v_cvt_pk_bf16_f32 v20, v{R}, v{R+1}
            v_cvt_pk_bf16_f32 v21, v{R+2}, v{R+3}
            ds_write_b64 v{e.vKNW}, v[20:21] offset:{KN + 16}""")
        e(e.w4_reads(0))
        e(f"""v_cvt_pk_bf16_f32 v22, v{R+4}, v{R+4}
            v_cvt_pk_bf16_f32 v23, v{R+5}, v{R+6}
            v_cvt_pk_bf16_f32 v24, v{R+6}, v{R+6}
            v_cvt_pk_bf16_f32 v25, v{R+6}, 0
            v_cvt_pk_bf16_f32 v26, 0, v{R+9}
            v_cvt_pk_bf16_f32 v27, v{R+9}, 0
            v_cvt_pk_bf16_f32 v28, v{R+9}, v{R+8}
            v_cvt_pk_bf16_f32 v29, v{R+10}, v{R+7}
            ds_write_b64 v{e.vKNW}, v[22:23] offset:{KN + 16 + 512}
            ds_write_b32 v{e.vK2W}, v28 offset:{K2 + 508}
            ds_write_b16 v{e.vK3W}, v29 offset:{K3 + 254}
            ds_write_b16_d16_hi v{e.vK3W}, v29 offset:{K3 + 190}
            s_mov_b32 exec_lo, 0
            s_mov_b32 exec_hi, 0x80000000
            ds_write_b64 v{e.vKNW}, v[24:25] offset:{KN + 16 + 1024 - 504}
            ds_write2_b32 v{e.vK3W}, v26, v27 offset0:0 offset1:1
            s_mov_b64 exec, -1""".replace(f"ds_write2_b32 v{e.vK3W}, v26, v27 offset0:0 offset1:1", f"ds_write_b32 v{e.vKNW}, v26 offset:{KN + 16 + 1044 - 504}\nds_write_b32 v{e.vKNW}, v27 offset:{KN + 16 + 1048 - 504}"))
        if e.o.get("pw", 32) == 99: e(e.w1_publish(163) + e.stamp(12))
        e(e.w4_build(0))
        if e.o.get("fwi", 1) == 1: e(fwi)
        e.fwi = fwi
        e(self.stamp(5))

    W4S, W4O = 92, 128
    def w4_reads(self, rnd):
        e = self
        a, off = (e.vW4S, KN + 8 + 512 * rnd) if rnd < 2 else (e.vW4S3, KN)
        r = e.W4S + 4 * (rnd & 1)
        return mk(f"ds_read_b64 v[{r}:{r+1}], v{a} offset:{off}\nds_read_b64 v[{r+2}:{r+3}], v{a} offset:{off + 8}", tag=f"w4r{rnd}")
    def w4_build(self, rnd):
        e = self
        p0, p1, o0, o1 = (e.W4S + 4 * (rnd & 1) + i for i in range(4))
        d = e.W4O
        a, off = (e.vW4D, W4 + 128 + 1024 * rnd) if rnd < 2 else (e.vW4D3, W4)
        return mk(f"""v_bfi_b32 v{d}, s71, v{o0}, v{p1}
            v_bfi_b32 v{d+1}, s71, v{p1}, v{p0}
            v_alignbit_b32 v{d+2}, v{o0}, v{o0}, 16
            v_alignbit_b32 v{d+3}, v{p1}, v{p1}, 16
            v_bfi_b32 v{d+4}, s71, v{o1}, v{o0}
            v_mov_b32 v{d+5}, v{d}
            v_alignbit_b32 v{d+6}, v{o1}, v{o1}, 16
            v_mov_b32 v{d+7}, v{d+2}
            ds_write_b128 v{a}, v[{d}:{d+3}] offset:{off}
            ds_write_b128 v{a}, v[{d+4}:{d+7}] offset:{off + 16}""")

    def gather(self):
        e = self
        out = e.stamp(10) + e.poll_check(e.vPOLL, 18) + e.stamp(4)
        items = []
        for lds, va in ((U0 + 4096, e.vDMA), (X0, 176)):
            for k in range(4):
                items.append(mk(f"s_add_u32 m0, s59, {lds + 1024 * k}") + mk(f"global_load_lds_dwordx4 v{va}, s[34:35] sc1", tag="u") +
                             mk("s_mov_b32 m0, s70") + (mk(f"v_add_u32 v{va}, {4 * UP}, v{va}") if k < 3 else []))
        return out, items

    def w1_loads(self):
        out = []
        for n in range(60):
            gq, k = n // 15, n % 15
            b = 4 + 4 * gq + 2 * (k // 8)
            out.append(I(f"global_load_dwordx4 a[{4*n}:{4*n+3}], v{self.vL16}, s[{b}:{b+1}] offset:{1024 * (k % 8) - 4096} sc1", tag="w1", put={("a", 4 * n): "W1"}))
        return [out[n] for n in self.W1_ORDER]

    W1_ORDER = [n for n in range(60) if n // 3 % 5 < 4] + [n for n in range(60) if n // 3 % 5 == 4]
    def ffn_ids(self):
        nb = self.o.get("xm", 2)
        return mk(f"""s_and_b32 s62, s{sCLS}, {(1 << (nb - 1)) - 1}
            s_lshl_b32 s62, s62, {5 - nb}
            s_lshr_b32 s67, s{sIDX}, {nb}
            s_add_u32 s62, s62, s67
            s_lshr_b32 s63, s{sCLS}, {nb - 1}
            s_and_b32 s67, s{sIDX}, {(1 << nb) - 1}
            s_lshl{nb}_add_u32 s63, s63, s67
            s_lshl2_add_u32 s60, s63, s{sW}
            s_mul_i32 s60, s60, 61440
            s_add_u32 s60, s60, {W1P + 4096}
            s_add_u32 s39, s{sW}, {"s62" if self.o.get("rot", 0) else 0}
            s_and_b32 s39, s39, 3""") + [i for gq in range(4) for i in mk(f"""s_add_u32 s67, s39, {gq}
            s_and_b32 s67, s67, 3
            s_mul_i32 s67, s67, 15360
            s_add_u32 s67, s67, s60
            s_add_u32 s{4+4*gq}, s34, s67
            s_addc_u32 s{5+4*gq}, s35, 0
            s_add_u32 s{6+4*gq}, s{4+4*gq}, 8192
            s_addc_u32 s{7+4*gq}, s{5+4*gq}, 0""")]

    def fw_poll_addr(self, va):
        return mk(f"""s_lshl_b32 s48, s{sCLS}, 12
            s_add_u32 s48, s48, {FW + 160 * 16}
            v_lshl_add_u32 v{va}, v1, 4, s48
            v_add_u32 v{va+1}, 512, v{va}""")

    def conv(self):
        e = self; o = e.o
        ACC = lambda t, mt: 144 + 8 * t + 4 * mt
        BR, AR, XB, XD, XC, K2F, K3F, AX, XU = 2, 50, 100, 108, 124, 68, 128, 100, 180
        main = []
        def mf(acc, A, B, need, zero=False):
            main.append(I(f"v_mfma_f32_16x16x32_bf16 v[{acc}:{acc+3}], v[{A}:{A+3}], v[{B}:{B+3}], " + ("0" if zero else f"v[{acc}:{acc+3}]"), need=need))
        def rd(txt, reg, n, tag, grp):
            return I(txt, tag=grp, put={("v", reg + i): tag for i in range(n)})
        def nd(*items): return {("v", reg + i): tag for reg, n, tag in items for i in range(n)}
        start, reads, pos = [], [], {}
        boxes = [(T, b) for T in range(6) for b in range(4) if not (b >= 2 and T >= 4)]
        arr = (A5, A3, A9, A7)
        nbox, box_at = 0, []
        early = o.get("t0e", 1)
        J = list(range(4, 16)) + [2, 3, 0, 1] if early else list(range(2, 16)) + [0, 1]
        J2 = [0, 1, 2, 3, 12, 13, 14, 15]
        for s, j in enumerate(J):
            grp = f"s{s}"
            start.append(len(main)); R = []
            b0 = BR + 16 * (s % 3)
            steps = [(0, 4 * j, (0, 1))]
            if j == 0: steps += [(1, 64, (0, 1)), (2, 76, (0, 1))]
            if j == 1: steps += [(1, 68, (0,)), (2, 80, (0,))]
            def bread(reg, jj, i):
                return rd(f"ds_read_b128 v[{reg}:{reg+3}], v{e.vUB + (jj & 7)} offset:{4096 * i + 2048 - 2048 * (jj >> 3)}", reg, 4, ("B", jj, i), grp)
            def areads(a0, o0, jj, iF, mts):
                base = W4 + 128 + 32 * o0
                return [rd(f"ds_read_b64 v[{a0+k}:{a0+k+1}], v{e.vAB} offset:{off}", a0 + k, 2, ("A", jj, iF, k), grp)
                        for k, off in ((0, base + W4P), (2, base), (4, base + W4P - 32)) if not (k == 0 and mts == (0,))]
            def mm(t, mt, a0, jj, iF, breg):
                A = a0 + 2 - 2 * mt
                pos.setdefault((t, mt), []).append(len(main))
                mf(ACC(t, mt), A, breg, nd((A, 2, ("A", jj, iF, 2 - 2 * mt)), (A + 2, 2, ("A", jj, iF, 4 - 2 * mt)), (breg, 4, ("B", jj, t - iF))))
            skip0 = early and s >= 8
            for i in range(4):
                if i or not skip0 or j < 2: R.append(bread(b0 + 4 * i, j, i))
            for iF, o0, mts in steps:
                a0 = AR + 6 * (s % 3) if iF == 0 else AX - 6 + 6 * iF + 12 * j
                ar = areads(a0, o0, j, iF, mts)
                R = ar + R if iF == 0 else R + ar
                for t in range(iF, 4):
                    if t == 0 and skip0: continue
                    for mt in mts: mm(t, mt, a0, j, iF, b0 + 4 * (t - iF))
                    if t == 0 and early:
                        a2, b2 = 68 + 6 * (s % 3), (86, 136, 140)[s % 3]
                        R = R[:4] + areads(a2, 4 * J2[s], J2[s], 0, (0, 1)) + [bread(b2, J2[s], 0)] + R[4:]
                        for mt in range(2): mm(0, mt, a2, J2[s], 0, b2)
            for _ in range(min(2, 20 - nbox)):
                T, b = boxes[nbox]
                xb = XB + 4 * (T & 1); xd = XD + 4 * (nbox & 3)
                if b == 0:
                    R.append(rd(f"ds_read_b128 v[{xb}:{xb+3}], v{e.vBB} offset:{2048 * T}", xb, 4, ("XB", T), grp if T < 5 else "xb5"))
                mf(xd, e.vBAND + 4 * b, xb, nd((xb, 4, ("XB", T))), zero=True)
                xc = XC + 2 * (nbox & 1)
                main[-1].put = nd((xd, 4, ("XD", nbox)))
                box_at.append((len(main) - 1, [
                    I(f"v_cvt_pk_bf16_f32 v{xc}, v{xd}, v{xd+1}", need=nd((xd, 2, ("XD", nbox))), put=nd((xc, 1, ("XC", nbox)))),
                    I(f"v_cvt_pk_bf16_f32 v{xc+1}, v{xd+2}, v{xd+3}", need=nd((xd + 2, 2, ("XD", nbox))), put=nd((xc + 1, 1, ("XC", nbox)))),
                    I(f"ds_write_b64 v{e.vBW}, v[{xc}:{xc+1}] offset:{arr[b] + 128 * T}", need=nd((xc, 2, ("XC", nbox))))]))
                nbox += 1
            reads.append(R)
        far = [("2", 0), ("2", 2), ("3", 0), ("2", 4), ("2", 6), ("2", 8), ("2", 10), ("3", 2)]
        kreads = []
        for phi in range(1, 9):
            kreads.append(rd(f"ds_read_b128 v[{K2F+4*(phi-1)}:{K2F+4*(phi-1)+3}], v{e.vK2A} offset:{K2 + 752 - 64 * phi}", K2F + 4 * (phi - 1), 4, ("K2", phi), None))
        for phi in range(3, 7):
            for k in range(2):
                r_ = K3F + 4 * (phi - 3) + 2 * k
                kreads.append(rd(f"ds_read_b64 v[{r_}:{r_+1}], v{e.vK3A} offset:{K3 + 504 - 64 * phi + 8 * k}", r_, 2, ("K3", phi), None))
        for s, (reg, k0) in enumerate(far, 16):
            start.append(len(main)); R = []
            b0 = BR + 16 * (s % 3)
            for kk in range(2):
                ks = k0 + kk
                for mt in range(2):
                    a0 = b0 + 8 * kk + 4 * mt
                    va, st, hf = (e.vR2 + mt, 64, 8) if reg == "2" else (e.vR3 + mt, 128, 16)
                    for k in range(2):
                        R.append(rd(f"ds_read_b64_tr_b16 v[{a0+2*k}:{a0+2*k+1}], v{va} offset:{st * ks + hf * k}", a0 + 2 * k, 2, ("F", reg, ks, mt), f"s{s}"))
                    for t in range(1, 4):
                        phi = 4 * t - ks if reg == "2" else 2 * t - ks
                        if (1 <= phi <= 8 if reg == "2" else 3 <= phi <= 6):
                            kf = K2F + 4 * (phi - 1) if reg == "2" else K3F + 4 * (phi - 3)
                            pos[t, mt].append(len(main))
                            mf(ACC(t, mt), a0, kf, nd((a0, 4, ("F", reg, ks, mt)), (kf, 4, ("K" + reg, phi))))
            reads.append(R)
        ns = len(reads); start.append(len(main))
        xb5 = [r for r in reads[9] if r.tag == "xb5"]; reads[9] = [r for r in reads[9] if r.tag != "xb5"]
        g = Sched(main)
        SO = X0 - U0 - 2048
        g.pre = [I(f"ds_read_b128 v[{ACC(t, mt)}:{ACC(t, mt)+3}], v{e.vST + 2 + mt} offset:{SO + 4096 * t}", tag="s0") for t in range(4) for mt in range(2)]
        g.pre = reads[0] + g.pre + reads[1] + e.w4_reads(1) + e.w4_reads(2) + mk("@lgkm s0")
        w41 = g.add(e.w4_build(1), 2, start[2 if early else 3] - 1, prio=1)
        w42 = g.add(e.w4_build(2), 2, start[9], after=[(w41[-1], 0)])
        for s in range(ns - 2):
            g.add(reads[s + 2], start[s], start[s + 1] + (2 if s < 19 else 0), prio=2, pace=True)
            g.add(mk(f"@lgkm s{s+1}"), start[s + 1] - 1, start[s + 1] - 1, prio=3)
        g.add(mk(f"@lgkm s{ns-1}"), start[ns - 1] - 1, start[ns - 1] - 1, prio=3)
        g.add(xb5, start[8], start[8] + 3, prio=2)
        prev = [None, None]
        for n, (k, ins) in enumerate(box_at):
            prev[n & 1] = g.add(ins, k + 3, k + 14, after=[(prev[n & 1], 0)] if prev[n & 1] else None, prio=1)[-1]
        g.add(kreads[3::-1] + kreads[7:3:-1], start[o.get("k2s", 11)], start[16] - 4, pace=True, win=5, after=[(w42[-1], 0)])
        g.add(kreads[8:], start[15], start[18] - 4, pace=True, win=5)
        last = None
        for t in range(4):
            s = o.get("xs", 7) + 2 * t
            chain = lambda mt, k: pos[t, mt][k]
            if early and t == 0:
                s = o.get("xs0", 4); chain = lambda mt, k, last=False: pos[0, mt][2 * k + 1]
            r = g.add([I(f"ds_read_b128 v[{XU}:{XU+3}], v{e.vUB} offset:{2048 + 4096 * t}", tag=f"xr{t}")] +
                      [I(f"ds_read_b128 v[{XU+4+4*mt}:{XU+7+4*mt}], v{e.vST + mt} offset:{SO + 4096 * t}", tag=f"xr{t}") for mt in range(2)],
                      0, chain(0, s - 1) - 6, after=[(last, 0)] if last else None, prio=1)
            for mt in range(2):
                p = chain(mt, s - 1 + mt); q = pos[t, mt][pos[t, mt].index(p) + 1]
                un = g.add(mk(([f"@lgkm xr{t}"] if mt == 0 else []) + [f"v_lshlrev_b32 v{XU+12+2*k}, 16, v{XU+2*mt+k}\nv_and_b32 v{XU+13+2*k}, 0xffff0000, v{XU+2*mt+k}" for k in range(2)]),
                           0, p + 2, after=[(r[-1], 5)] if mt == 0 else [(last, 0)])
                last = g.add(mk([f"v_fmac_f32 v{ACC(t, mt)+k}, v{XU+4+4*mt+k}, v{XU+12+k}" for k in range(4)]), p + 3, q - 2, after=[(un[-1], 0)], prio=2)[-1]
        def hstore(t):
            oo = 86 if early and t == 0 else XU + 4 * t
            return mk([f"s_mov_b32 s68, {HT + 16 * 40960 * t}"] + [f"v_cvt_pk_bf16_f32 v{oo+k}, v{ACC(t, k >> 1) + 2 * (k & 1)}, v{ACC(t, k >> 1) + 2 * (k & 1) + 1}" for k in range(4)]) + \
                mk(f"buffer_store_dwordx4 v[{oo}:{oo+3}], v{e.vHST}, {SRD}, s68 offen sc1", tag=f"hs{min(t, 2)}")
        for t in range(3):
            p = max(pos[t, 0][-1], pos[t, 1][-1])
            st = g.add(hstore(t), p + 3, p + 8, after=[(last, 0)] if t or not early else None, prio=2)[-1]
            if t or not early: last = st
            if t == 0:
                sga = g.add(mk(f"""s_add_u32 s48, s69, {F2}
                    @vm hs0
                    s_barrier
                    buffer_store_dwordx2 v[{e.vTAG}:{e.vTAG+1}], v199, {SRD}, s48 offen sc1""") + e.stamp(8), 0, len(main) - 1, after=[(st, o.get("sga", 44))], prio=2)
        w1 = e.w1_loads(); n1 = o.get("w1n", 42)
        fwc = o.get("fwc", 16)
        chk = e.poll_check(e.vPOLL, 234, "s70")
        if o.get("fwi", 1) > 1: g.add(e.fwi, o.get("fwi", 1), o.get("fwi", 1) + 2, prio=2)
        if fwc >= 0:
            c = g.add([chk[0], chk[1:], I("s_barrier")], fwc, fwc + 4, prio=2)
        wl = g.add(w1[:n1], fwc + 5, start[o.get("w1e", 22)], pace=True, win=3, after=[(c[-1], 0)] if fwc >= 0 else None)
        if fwc < 0: e(chk)
        if o.get("wkb", 3) == 2: e(e.walk("B", 0))
        e("@vm u\ns_barrier")
        e(e.stamp(6))
        import gen_ffn as F
        sa, sb = F.setup(e)
        x = g.add(sa[:-4], start[16], start[21])
        f2i = o.get("f2i", -4)
        if f2i < 0: g.add(e.poll_issue(0, F.PD), len(main) + f2i, len(main) + f2i, after=[(x[-1], 1)], prio=2)
        e.pre_conv = list(e.p); e.conv_stream = g.run(); e.conv_steps = (main, start)
        e(e.conv_stream)
        e(e.stamp(7))
        e(sa[-4:]); e(hstore(3))
        if e.stop == "conv": return
        g = Sched(F.colsums(e, 4)[:48], dense=True)
        g.add(sb, 0, 47)
        if n1 < 48: g.add(w1[n1:48], 0, 4 * (48 - n1), pace=True, prio=1)
        if f2i >= 0: g.add(e.poll_issue(0, F.PD), f2i, f2i, prio=2)
        st = g.run()
        k = [n for n, i in enumerate(st) if i.kind == "mfma"][o.get("f2c", 20)]
        e(st[:k])
        if o.get("wkb", 3) == 0: e(e.walk("B", 0))
        e(e.stamp(13))
        e(e.poll_check(0, F.PD)); e(e.stamp(1) if o.get("fst") else [])
        sig = mk(f"s_mov_b32 s48, {F2C - F2B}\nbuffer_store_dwordx2 v[{e.vTAG}:{e.vTAG+1}], v{e.vSIG}, {SRD}, s48 offen sc1")
        e("@vm hs1\ns_barrier"); e(sig)
        rest, c0 = st[k:], F.chunk(0)
        while c0:
            e(c0.pop(0))
            if e.p[-1].kind == "vm":
                while rest:
                    e(rest.pop(0))
                    if rest and rest[0].kind == "mfma":
                        e(rest.pop(0)); break
        e(rest)
        if o.get("wkb", 3) == 1: e(e.walk("B", 0))

    def w1_pack_loads(self):
        out = mk(f"""s_lshl2_add_u32 s71, s2, s{sW}
            s_min_u32 s71, s71, 959
            s_mul_i32 s72, s71, 5462
            s_lshr_b32 s72, s72, 16
            s_mul_i32 s48, s72, 12
            s_sub_u32 s71, s71, s48
            s_mul_i32 s48, s72, {8 * 3072}
            s_lshl_b32 s49, s71, 8
            s_add_u32 s48, s48, s49
            s_add_u32 s48, s48, 3072
            v_lshl_add_u32 v196, v6, 2, s48
            v_mov_b32 v197, 0
            v_lshl_add_u64 v[194:195], v[196:197], 0, s[26:27]
            s_mov_b32 exec_hi, 0
            v_lshl_add_u64 v[194:195], v[196:197], 0, s[24:25]
            s_mov_b32 exec_hi, -1
            s_mov_b32 s48, 9216
            s_mov_b32 s49, 0
            v_lshl_add_u64 v[196:197], v[194:195], 0, s[48:49]
            v_lshl_add_u64 v[198:199], v[196:197], 0, s[48:49]""")
        return out
    def w1_pack_issue(self):
        out = []
        for j in range(8):
            for hf in range(2):
                a = 194 + 2 * (j // 3)
                out += mk(f"global_load_dword v{236+8*hf+j}, v[{a}:{a+1}], off offset:{3072 * (j % 3 - 1) + 128 * hf}")
        return out
    def w1_pack_addr(self):
        out = mk(f"""s_lshl_b32 s48, s71, 4
            v_bfe_u32 v160, v1, 3, 2
            v_lshl_add_u32 v160, v160, 1, s48
            s_lshr_b32 s48, s72, 2
            s_mul_i32 s48, s48, 3072
            s_and_b32 s49, s72, 3
            s_lshl_b32 s49, s49, 8
            s_add_u32 s48, s48, s49
            s_add_u32 s48, s48, {W1P}
            v_and_b32 v161, 1, v1
            v_lshl_add_u32 v161, v161, 4, s48
            v_bfe_u32 v162, v1, 1, 2
            v_lshl_add_u32 v161, v162, 6, v161
            v_and_b32 v162, 32, v1
            v_add_u32 v161, v161, v162
            s_mov_b32 s49, 57
            s_mov_b32 s72, 0x05040100
            s_mov_b32 s73, 0x07060302""")
        for t in range(4):
            out += mk(f"""v_mul_u32_u24 v162, 21846, v160
                v_lshrrev_b32 v162, 16, v162
                v_mad_u32_u24 v162, v162, s49, v160
                v_lshl_add_u32 v{164+t}, v162, 10, v161""")
            if t < 3: out += mk(f"v_add_u32 v160, {7 if t == 1 else 1}, v160")
        return out
    def w1_pack_perm(self):
        return mk([f"v_perm_b32 v{2+4*t+jj}, v{236+8*(t>>1)+2*jj+1}, v{236+8*(t>>1)+2*jj}, s{72+(t&1)}" for t in range(4) for jj in range(4)])
    def w1_pack_stores(self):
        return mk([f"global_store_dwordx4 v{164+t}, v[{2+4*t}:{5+4*t}], s[34:35] sc1" for t in range(4)], tag="w1p")
    def w1_pack(self):
        return self.w1_pack_perm() + self.w1_pack_stores() + self.stamp(9)
    def w1_publish(self, va=None):
        return mk("@vm w1p\ns_barrier") + self.signal_all(FW, va)

    def hp_base(self):
        return mk(f"""s_sub_u32 s50, s2, 160
            v_and_b32 v196, 31, v1
            v_lshlrev_b32 v196, 2, v196
            v_mov_b32 v197, 0
            v_lshl_add_u64 v[198:199], v[196:197], 0, s[26:27]
            s_mov_b32 exec_hi, 0
            v_lshl_add_u64 v[198:199], v[196:197], 0, s[24:25]
            s_mov_b32 exec_hi, -1""") + [i for k in range(3) for i in self.hp_unit(k)]
    def hp_unit(self, k):
        su = 60 + 2 * k
        if k < 2:
            return mk(f"""s_lshl3_add_u32 s{su}, s50, s{sW}
                s_add_u32 s{su}, s{su}, {4 * k}
                s_mul_i32 s66, s50, 2731
                s_lshr_b32 s66, s66, 16
                s_mul_i32 s66, s66, 48
                s_add_u32 s{su}, s{su}, s66
                s_mul_i32 s{su+1}, s{su}, 5462
                s_lshr_b32 s{su+1}, s{su+1}, 16""")
        return mk(f"""s_lshr_b32 s66, s{sW}, 1
            s_and_b32 s69, s{sW}, 1
            s_lshl1_add_u32 s{su}, s50, s66
            s_mul_i32 s66, s{su}, 1366
            s_lshr_b32 s66, s66, 16
            s_add_u32 s66, s66, 1
            s_mul_i32 s66, s66, 192
            s_add_u32 s{su}, s{su}, s66
            s_mul_i32 s{su+1}, s{su}, 5462
            s_lshr_b32 s{su+1}, s{su+1}, 16""")
    def hp_loads(self, k, opt=False):
        su = 60 + 2 * k
        out = mk(f"""s_mov_b32 s49, 0
            s_mul_i32 s48, s{su+1}, {8 * 3072 - 12 * 256}
            s_lshl_b32 s67, s{su}, 8
            s_add_u32 s48, s48, s67
            s_add_u32 s48, s48, 3072
            {"s_lshl_b32 s67, s69, 7" if k == 2 else ""}
            {"s_add_u32 s48, s48, s67" if k == 2 else ""}
            v_lshl_add_u64 v[190:191], v[198:199], 0, s[48:49]
            s_add_u32 s48, s48, 9216
            v_lshl_add_u64 v[192:193], v[198:199], 0, s[48:49]
            s_add_u32 s48, s48, 9216
            v_lshl_add_u64 v[194:195], v[198:199], 0, s[48:49]""", opt=opt)
        for j in range(8):
            for hf in range(2 if k < 2 else 1):
                a = 190 + 2 * (j // 3)
                out += mk(f"global_load_dword v{200+16*k+8*hf+j}, v[{a}:{a+1}], off offset:{3072 * (j % 3 - 1) + 128 * hf}", opt=opt)
        return out
    def hp_addr(self, k):
        su = 60 + 2 * k
        out = []
        if k == 0:
            out += mk(f"""v_bfe_u32 v180, v1, 3, 2
                v_and_b32 v181, 1, v1
                v_lshlrev_b32 v181, 4, v181
                v_bfe_u32 v182, v1, 1, 2
                v_lshl_add_u32 v181, v182, 6, v181
                v_and_b32 v182, 32, v1
                v_add_u32 v181, v181, v182
                s_mov_b32 s68, 57
                s_mov_b32 s72, 0x05040100
                s_mov_b32 s73, 0x07060302""")
        out += mk(f"""s_mul_i32 s48, s{su+1}, 12
            s_sub_u32 s48, s{su}, s48
            s_lshl_b32 s48, s48, 4
            {"s_lshl3_add_u32 s48, s69, s48" if k == 2 else ""}
            v_lshl_add_u32 v183, v180, 1, s48
            s_lshr_b32 s48, s{su+1}, 2
            s_mul_i32 s48, s48, 3072
            s_and_b32 s67, s{su+1}, 3
            s_lshl_b32 s67, s67, 8
            s_add_u32 s48, s48, s67
            s_add_u32 s48, s48, {W1P}
            v_add_u32 v184, s48, v181""")
        for t in range(4 if k < 2 else 2):
            out += mk(f"""v_mul_u32_u24 v182, 21846, v183
                v_lshrrev_b32 v182, 16, v182
                v_mad_u32_u24 v182, v182, s68, v183
                v_lshl_add_u32 v{160+4*k+t}, v182, 10, v184""")
            if t < 3: out += mk(f"v_add_u32 v183, {7 if t == 1 else 1}, v183")
        return out
    def hp_pack(self, k, opt=False):
        r, o = 200 + 16 * k, 52 + 16 * k
        return mk([f"v_perm_b32 v{o+4*t+jj}, v{r+8*(t>>1)+2*jj+1}, v{r+8*(t>>1)+2*jj}, s{72+(t&1)}" for t in range(4 if k < 2 else 2) for jj in range(4)], opt=opt) + \
            mk([f"global_store_dwordx4 v{160+4*k+t}, v[{o+4*t}:{o+4*t+3}], s[34:35] sc1" for t in range(4 if k < 2 else 2)], tag="w1p" if k < 2 else "w2p", opt=opt)
    def low_waves(self, ins):
        L = self.lab("lw")
        return mk(f"s_cmp_ge_u32 s{sW}, 2\ns_cbranch_scc1 {L}") + ins + mk(f"{L}:")

    def w2_consts(self):
        e = self
        e(f"""s_sub_u32 s50, s2, 160
            v_lshlrev_b32 v{e.vL16}, 4, v1
            s_lshr_b32 s55, s50, 1
            s_and_b32 s56, s50, 1
            s_mul_i32 s48, s55, {32 * 1280}
            s_mul_i32 s49, s56, 640
            s_add_u32 s48, s48, s49
            s_mul_i32 s49, s{sW}, {8 * 1280}
            s_add_u32 s48, s48, s49
            s_lshl2_add_u32 s56, s56, s{sW}
            s_mul_i32 s56, s56, 48
            s_add_u32 s55, s55, s56
            s_mul_i32 s56, s{sW}, 5120""")
        for n in range(5):
            e(f"""v_add_u32 v20, {64 * n}, v1
                v_mul_u32_u24 v21, 1639, v20
                v_lshrrev_b32 v21, 16, v21
                v_mul_u32_u24 v21, 640, v21
                v_lshl_add_u32 v21, v20, 4, v21
                v_add_u32 v{24+n}, s48, v21""")
        e(f"""v_bfe_u32 v20, v1, 2, 2
            v_bfe_u32 v21, v1, 4, 1
            v_lshl_add_u32 v20, v20, 1, v21
            v_lshrrev_b32 v21, 5, v1
            v_lshl_add_u32 v20, v21, 4, v20
            v_mul_u32_u24 v20, 640, v20
            v_and_b32 v21, 3, v1
            v_lshl_add_u32 v20, v21, 3, v20
            s_mul_i32 s48, s{sW}, 160
            v_add_u32 v20, s48, v20""")

    def helper_main(self):
        e = self
        import gen_ffn as F
        dma = [i for n in range(5) for i in mk(f"s_add_u32 m0, s56, {1024 * n}") + mk(f"global_load_lds_dwordx4 v{24+n}, s[28:29]", tag="w2l")]
        e.epoch_load(); e(e.hp_base()); e.ln_consts()
        ln = e.ln1(); he = e.o.get("he", 1)
        e(ln[:20])
        for k in range(he): e(e.hp_loads(k))
        e(ln[20:])
        for k in range(he, 2): e(e.hp_loads(k))
        e(e.ln_publish())
        for k in range(3): e(e.hp_addr(k))
        e.w2_consts()
        second = e.hp_loads(2) + dma; h2 = e.o.get("h2", 0)
        if h2 == 2: e(second)
        e(e.hp_pack(0)); e(e.hp_pack(1)); e(e.stamp(9))
        if h2 == 1: e(second)
        e("@vm w1p\ns_barrier"); e(e.signal_all(FW))
        e(e.stamp(4))
        if h2 == 0: e(second)
        e(e.ffn_ids())
        e(e.helper_flags(180, FW))
        e(f"""s_mul_i32 s64, s55, 5120
            s_add_u32 s64, s64, {W2P}
            s_add_u32 s65, s64, 4096
            s_lshl_b32 s48, s50, 7
            s_add_u32 s48, s48, {F2 + HOFF}
            v_mov_b32 v197, s48
            v_mov_b32 v198, 0x40000000
            @vm w2l""")
        e(e.poll_issue(180, 192))
        e("s_barrier")
        for t in range(5):
            e(f"ds_read_b64_tr_b16 v[{32+4*t}:{33+4*t}], v20 offset:{32*t}\nds_read_b64_tr_b16 v[{34+4*t}:{35+4*t}], v20 offset:{32*t + 8*640}")
        e(e.hp_pack(2))
        e([f"buffer_store_dwordx4 v[{32+4*t}:{35+4*t}], v{e.vL16}, {SRD}, s{64 + t // 4} offen offset:{1024 * (t & 3)} sc1" for t in range(5)], tag="w2p")
        e(e.stamp(10))
        e(e.walk("B", 1))
        e(e.poll_check(180, 192, slp=4))
        e("s_barrier")
        e(e.stamp(6))
        sa, sb = F.setup(e)
        w1, cs, fill = e.w1_loads()[:48], F.colsums(e)[:48], sa + sb
        lag = 14
        for n in range(48 + lag):
            if n == lag: e("@vm w2p\ns_barrier"); e(e.signal_all(F2)); e(e.stamp(5))
            if n < 48: e(w1[n])
            if n == 47: e(e.poll_issue(197, 192))
            if n >= lag: e(cs[n - lag])
            e(fill[:9]); fill = fill[9:]
        e(e.stamp(7))
        e(e.poll_check(197, 192, slp=4))
        e(e.stamp(13))
        e(e.poll_issue(0, F.PD)); e(e.poll_check(0, F.PD)); e("s_barrier"); e(e.stamp(1) if e.o.get("fst") else [])
        e(F.chunk(0))

    def walk(self, grp, role):
        if not self.o.get("wk", 1): return []
        out = mk(f"s_mov_b64 exec, 0\ns_mov_b32 s1, {role}")
        for w in range(3): out += mk(f"s_cmp_eq_u32 s{sW}, {w}\ns_cbranch_scc1 L_pad{grp}_{w}")
        out += mk(f"s_branch L_pad{grp}_3\nL_walked{grp}_{role}:")
        if grp == "B" and role == 0: out += mk("s_cmp_eq_u32 s1, 1\ns_cbranch_scc1 L_walkedB_1")
        return out + mk("s_mov_b64 exec, -1")
    def place_pads(self, prog, base):
        sz = sizes(prog)
        first = {grp: next(n for n, i in enumerate(prog) if i.text == f"L_walked{grp}_0:") for grp in "AB"}
        end = next(n for n, i in enumerate(prog) if i.mn == "s_endpgm")
        out, off, want, pads = [], base, [], {"A": [], "B": []}
        step = self.o.get("wks", 0)
        for n, i in enumerate(prog):
            if off // 4096 != (off + sz[n]) // 4096 and first["A"] < n < end:
                want = [(off + sz[n]) // 4096 * 4096 + k * step for k in range(2 if step else 1)]
            out.append(i); off += sz[n]
            near = [x.kind for x in prog[n + 1:n + 5]]
            if want and off >= want[0] and sz[n] and (i.kind == "mfma" or "mfma" not in near) and n + 1 < end:
                grp = "A" if n < first["B"] else "B"
                lab, br = I(f"L_pad{grp}_{len(pads[grp])}:"), I("s_cbranch_execz L_x")
                pads[grp].append(br); out += [lab, br]; off += 4; want.pop(0)
        tail = []
        for grp, ps in pads.items():
            for k, br in enumerate(ps):
                br.text = f"s_cbranch_execz L_pad{grp}_{k + 4}" if k + 4 < len(ps) else f"s_cbranch_execz L_back{grp}"
            k = next(n for n, i in enumerate(out) if i.text == f"L_walked{grp}_0:")
            back = [I(f"L_pad{grp}_{j}:") for j in range(len(ps), 4)] + [I(f"L_back{grp}:")]
            out[k:k] = back
        return out

    def finish_stamps(self):
        e = self
        if not e.stamps: return
        if e.o.get("nost") and not e.o.get("cnt"): e("s_waitcnt vmcnt(0)\ns_memrealtime s[100:101]")
        e(f"""s_waitcnt lgkmcnt(0)
            s_lshl2_add_u32 s48, s2, s{sW}
            s_lshl_b32 s48, s48, 6
            s_add_u32 s48, s48, {DBG}
            v_mov_b32 v2, s48""")
        for k in range(14):
            e(f"v_mov_b32 v3, s{74 + 2 * k}\nbuffer_store_dword v3, v2, {SRD}, 0 offen offset:{4 * k}")

    def build(self):
        e = self
        e.prologue(); e.x_loads()
        e(f"s_cmp_ge_u32 s{sIDX}, 20\ns_cbranch_scc1 L_helper")
        head = list(e.p)
        e.conv_param_loads(); e.epoch_load()
        if e.o.get("wkb", 3) == 4: e(e.walk("B", 0))
        if e.o.get("ho", 3): e.ln_consts()
        else: e(e.w1_pack_loads()); e.ln_consts(); e(e.w1_pack_addr()); e(e.hint_setup(163, 0))
        e.conv_consts_a()
        wkb = e.o.get("wkb", 3)
        if wkb < 3: e(e.walk("A", 0))
        else: e("L_walkedA_0:")
        if wkb == 3: e(e.walk("B", 0))
        tl = e.table_loads([6, 2, 8, 0, 1, 3, 4, 5, 7])
        ln = e.ln1()
        k = e.o.get("tbl", 20)
        e(ln[:k]); e(tl)
        if e.o.get("wl", 1) == 0: e(e.w1_pack_issue())
        e(ln[k:])
        e.kgen(); e.conv()
        a, sa = finalize(e.p)
        e.p = list(head); e("L_helper:")
        e.helper_main()
        e("s_branch L_join")
        b, sb = finalize(e.p)
        k = next(n for n, i in enumerate(b) if i.text == "L_helper:")
        e.p = []
        e("L_join:")
        if e.stop != "conv":
            import gen_ffn
            e.in_ffn = True
            gen_ffn.ffn(e)
        e.finish_stamps()
        c, sc = finalize(e.p)
        self.stats = (sa, sb, sc)
        allp = a + c + mk('L_end:\ns_endpgm') + b[k:]
        if e.o.get("al", 1):
            ks = [n for n, i in enumerate(allp) if i.kind == "valu" and i.mn.startswith("v_pk_") and n < len(a)]
            allp, n = align_runs(allp, ks[0], ks[-1] + 40, e.o.get("alr", 6)); self.stats += (n,)
        if "tr0" in e.o:
            ms = [n for n, i in enumerate(allp) if i.kind == "mfma"][e.o["tr0"]::e.o["trs"]][:13]
            allp = [i for i in allp if "s[100:101]" not in i.text]
            for k, n in reversed(list(enumerate(ms))): allp.insert(n + 1, I(f"s_memtime s[{76 + 2 * k}:{77 + 2 * k}]"))
        if e.o.get("wk", 1): allp = e.place_pads(allp, 0x300)
        body = "\n".join(("" if i.kind == "meta" else "    ") + i.text for i in allp if i.kind != "pseudo")
        return f"""; @launch grid=(256,1,1) block=(256,1,1) lds={LDS_BYTES}
; One persistent workgroup per CU. Hand-offs between workgroups go through write-through stores into d_ws and
.amdgcn_target "amdgcn-amd-amdhsa--gfx950"
.text
.p2align 12
.globl {NAME}_kernel
.p2align 8
.type {NAME}_kernel,@function
{NAME}_kernel:
{body}
{chr(10).join(self.cold)}
.p2align 7
L_table:
{self.lane_table()}
L_code_end:
.section .rodata,"a"
.p2align 6
.amdhsa_kernel {NAME}_kernel
  .amdhsa_next_free_vgpr 512
  .amdhsa_next_free_sgpr 102
  .amdhsa_accum_offset 256
  .amdhsa_group_segment_fixed_size 0
  .amdhsa_kernarg_size 128
  .amdhsa_user_sgpr_count 2
  .amdhsa_user_sgpr_kernarg_segment_ptr 1
  .amdhsa_system_sgpr_workgroup_id_x 1
.end_amdhsa_kernel
"""

if __name__ == "__main__":
    opt = {a.split("=")[0]: int(a.split("=")[1]) for a in sys.argv[4:]}
    k = K(stop=sys.argv[2] if len(sys.argv) > 2 and sys.argv[2] != "-" else None, stamps=len(sys.argv) > 3 and sys.argv[3] == "stamps", opt=opt)
    open(sys.argv[1], "w").write(k.build())
    print(k.stats, getattr(k, 'models', None))
```

```python
import math
from asmlib import I, mk, Gaps, Sched, model_cycles
import gen as G
from gen import fx, SRD, SRD2, sW, sCLS, sIDX, SLOT, STP, RST, RES, PART, HT, ACT, W2P, F2, F2B, F2C, AP

C0 = -2 * 0.7978845608028654 * math.log2(math.e)
vL16 = 252
TA = 2
FRG = 10
ACC = 50
S1, S2 = 74, 78
CS, ONES = 82, 94
CN = 98
T = 106
OUT = 120
vAST, vSW, vSR, vPF = 124, 125, 126, 127
W2E = 128
vSG, vTG = 116, 118
vPK = 117
PD = 254
MF = "v_mfma_f32_16x16x32_bf16"

def r4(kind, n): return f"{kind}[{n}:{n+3}]"

vW2, vX = 253, 117
NPK = 6

def setup(e):
    a = mk(f"""s_mul_i32 s57, s62, {SLOT}
        s_mul_i32 s58, s39, 10240
        s_add_u32 s57, s57, s58
        s_add_u32 s57, s57, {HT}
        s_mul_i32 s58, s58, 3
        v_add_u32 v{vPK}, s57, v{vL16}
        s_lshl_b32 s46, s{sCLS}, 15
        s_mul_i32 s47, s39, {40 << e.fs}
        s_add_u32 s47, s47, s46
        s_add_u32 s47, s47, {F2}
        v_min_u32 v{vPF}, 39, v1
        v_lshl_add_u32 v{vPF}, v{vPF}, {e.fs}, s47
        s_mul_i32 s47, s{sW}, {24 << e.fs}
        s_add_u32 s47, s47, s46
        s_add_u32 s47, s47, {F2 + (120 << e.fs)}
        v_cmp_lt_u32 s[28:29], 39, v1
        v_lshl_add_u32 v0, v1, {e.fs}, s47
        v_cndmask_b32 v0, v{vPF}, v0, s[28:29]
        v_mov_b32 v{ONES}, 0x3f803f80
        v_mov_b32 v{ONES+1}, 0x3f803f80
        v_mov_b32 v{ONES+2}, 0x3f803f80
        v_mov_b32 v{ONES+3}, 0x3f803f80""")
    b = []
    for k in range(1, 4): b.append(mk(f"s_add_u32 s{20+2*k}, s34, {4096 * k}\ns_addc_u32 s{21+2*k}, s35, 0"))
    b += mk(f"""s_mov_b64 s[20:21], s[34:35]
        s_and_b32 s68, s63, 7
        s_lshr_b32 s72, s63, 3
        v_mov_b32 v{vTG}, s44
        v_mov_b32 v{vTG+1}, s45
        v_and_b32 v{T}, 15, v1
        v_lshrrev_b32 v{T+1}, 4, v1
        v_bfe_u32 v{T+2}, v1, 2, 2
        v_and_b32 v{T+3}, 3, v1
        v_lshlrev_b32 v{T+4}, 9, v{T+1}
        v_lshl_add_u32 v{T+4}, v{T+2}, 6, v{T+4}
        v_lshl_add_u32 v{T+4}, v{T+3}, 3, v{T+4}
        v_and_b32 v{T+5}, 1, v{T+1}
        v_lshl_add_u32 v{T+4}, v{T+5}, 5, v{T+4}""")
    for gq in range(4):
        b += mk(f"""s_add_u32 s47, s39, {gq}
            s_and_b32 s47, s47, 3
            s_mul_i32 s47, s47, 30720
            v_add_u32 v{TA+gq}, s47, v{T+4}
            v_xor_b32 v{TA+4+gq}, 32, v{TA+gq}""")
    b += mk(f"""v_mov_b32 v{OUT+3}, 0
        v_cmp_eq_u32 s[50:51], v{T+1}, v{T+2}
        v_cmp_gt_u32 s[52:53], 48, v1
        s_lshl_b32 s47, s{sW}, 3
        s_add_u32 s47, s47, {STP}
        v_lshl_add_u32 v{vSW}, v{T}, 5, s47
        v_mov_b32 v{T+5}, {STP + 1024}
        v_lshl_add_u32 v{T+5}, v1, 3, v{T+5}
        v_cndmask_b32 v{vSW}, v{T+5}, v{vSW}, s[50:51]
        v_lshlrev_b32 v{vSR}, 5, v{T}
        v_add_u32 v{vSR}, {STP}, v{vSR}
        v_mov_b32 v{T+5}, 0x40000000
        v_cmp_gt_u32 s[50:51], 16, v1
        s_mul_i32 s56, s62, {9 * AP}
        s_add_u32 s60, s56, {ACT}
        s_lshl2_add_u32 s47, s63, s{sW}
        s_mul_i32 s56, s47, 768
        s_add_u32 s56, s56, s60
        s_mul_i32 s61, s47, {64 - 768}
        s_add_u32 s61, s61, {192 * 256 - 16 * 48}
        v_add_u32 v{vSG}, s61, v{vL16}
        v_cndmask_b32 v{vAST}, v{vSG}, v{vL16}, s[52:53]
        v_cmp_gt_u32 s[52:53], 52, v1
        s_add_u32 s61, s61, {16 * 48}
        v_lshrrev_b32 v{vSG}, 3, v1
        v_mul_u32_u24 v{vSG}, {AP - 64}, v{vSG}
        v_lshl_add_u32 v{vSG}, v1, 3, v{vSG}
        v_add_u32 v{vSG}, s61, v{vSG}
        v_cndmask_b32 v{vAST}, v{T+5}, v{vAST}, s[52:53]
        v_cndmask_b32 v{vSG}, v{T+5}, v{vSG}, s[50:51]
        v_cmp_eq_u32 s[50:51], 1, v{T+3}
        v_cmp_eq_u32 s[52:53], 2, v{T+3}
        v_cmp_eq_u32 s[54:55], 3, v{T+3}
        s_lshl2_add_u32 s59, s68, s{sW}
        s_mul_i32 s59, s59, {12 * 5120}
        s_add_u32 s59, s59, {W2P}
        s_mul_i32 s47, s72, {AP}
        s_add_u32 s60, s60, s47
        s_mul_i32 s47, s{sW}, {48 * 256}
        s_add_u32 s60, s60, s47
        s_lshr_b32 s47, s68, 1
        s_mul_i32 s47, s47, 30720
        s_and_b32 s46, s68, 1
        s_mul_i32 s46, s46, 5120
        s_add_u32 s47, s47, s46
        v_lshl_add_u32 v{T+6}, v{T+1}, 2, v{T+2}
        v_lshlrev_b32 v{T+6}, 6, v{T+6}
        v_lshl_add_u32 v{T+6}, v{T+3}, 3, v{T+6}
        v_lshrrev_b32 v{T+7}, 1, v{T+1}
        v_xor_b32 v{T+7}, s72, v{T+7}
        v_lshl_add_u32 v{T+6}, v{T+7}, 5, v{T+6}
        v_add_u32 v{T+6}, s47, v{T+6}
        v_mul_u32_u24 v{T+7}, 176, v{T}
        v_lshl_add_u32 v{T+7}, v{T+1}, 3, v{T+7}
        v_add_u32 v{T+7}, {RES}, v{T+7}
        s_mul_i32 s33, s{sW}, {1024 * NPK}
        s_add_u32 s33, s33, {RST}
        s_mov_b32 s32, {fx(1/640)}
        v_mov_b32 v{T+8}, {fx(1e-5)}""")
    return a, b

def code_touch(e, lines, dst):
    L = e.lab("pc")
    return [mk(f"s_getpc_b64 s[28:29]\n{L}:")] + mk(f"""s_mul_i32 s71, s{sIDX}, {128 * lines}
        v_min_u32 v{dst}, {lines - 1}, v1
        v_lshl_add_u32 v{dst}, v{dst}, 7, s71
        v_min_u32 v{dst}, L_table-{L}, v{dst}
        global_load_dword v{dst}, v{dst}, s[28:29]""")

def f3_prewarm(e):
    return mk(f"""v_lshrrev_b32 v{T}, 3, v1
        v_and_b32 v{T+1}, 7, v1
        v_mul_u32_u24 v{T}, {AP}, v{T}
        v_lshl_add_u32 v{T}, v{T+1}, 3, v{T}
        s_add_u32 s48, s56, s61
        s_add_u32 s48, s48, {AP}
        buffer_store_dwordx2 v[{ONES}:{ONES+1}], v{T}, {SRD}, s48 offen sc1""")

def w1_before(e):
    return e.o.get("w1b", 45)

def colsums(e, run=1):
    o = e.W1_ORDER
    o = [o[3 * (k0 + k) + t] for k0 in range(0, 20, run) for t in range(3) for k in range(run)]
    return [I(f"{MF} {r4('v', CS + 4 * (n % 3))}, {r4('a', 4 * n)}, {r4('v', ONES)}, " + ("0" if n < 3 else r4('v', CS + 4 * (n % 3))), need={("a", 4 * n): "W1"}) for n in o]

def dma(va, k0, m0base, m0off, n, tag):
    out = []
    for k in range(k0, k0 + n):
        if k % 4 == 0 or k == k0: out += mk(f"s_add_u32 m0, s{m0base}, {m0off + 1024 * (k - k % 4 - k0)}")
        b = 20 + 2 * (k // 4)
        out += mk(f"global_load_lds_dwordx4 v{va}, s[{b}:{b+1}] offset:{1024 * (k % 4)} sc1", tag=tag)
    return out

def chunk(c):
    return dma(vPK, 0, 58, (c % 3) * 10240, 10, f"h{c}") + (mk(f"v_add_u32 v{vPK}, {16 * SLOT}, v{vPK}") if c < 3 else [])

def ffn(e):
    o = e.o
    wr = e.w1_loads()[48:]
    nw0 = o.get("nw0", 5)
    e(wr[:nw0])
    if o.get("ds", 0):
        e(f"""v_lshlrev_b32 v{vAST}, 4, v{T}
            v_lshl_add_u32 v{vAST}, v{T+1}, 2, v{vAST}
            v_add_u32 v{vAST}, s56, v{vAST}""")
    hd = mk(f"""s_mul_i32 s48, s{sW}, {1024 - 48 * 256}
        s_add_u32 s70, s60, s48
        s_add_u32 s70, s70, {AP + 192 * 256}
        {"s_add_u32 s46, s62, s63" if o.get("rot2", 0) else "s_mov_b32 s46, 0"}""")
    for gq in range(4):
        hd += mk(f"""s_add_u32 s48, s46, {gq}
            s_and_b32 s48, s48, 3
            s_mul_i32 s71, s48, 15360
            s_add_u32 s{4+gq}, s59, s71
            s_mul_i32 s71, s48, 3072
            s_add_u32 s71, s71, s60""") + [mk(f"s_add_u32 s{8+2*gq}, s34, s71\ns_addc_u32 s{9+2*gq}, s35, 0")]

    late = [("x", c, k) for c in range(2) for k in range(12)]
    late += [("w", n, 0) for n in range(35, 60)]
    w2reg = {n: ("v", W2E + 4 * n) if n < 31 else ("a", 240 + 4 * (n - 31)) for n in range(35)}
    actreg = {}
    for n, (kind, a, b) in enumerate(late):
        if kind == "w": w2reg[a] = ("a", 4 * n)
        else: actreg[a, b] = ("a", 4 * n)
    for k in range(11): actreg[2, k] = ("a", 4 * (49 + k))
    actreg[2, 11] = ("a", 0)
    for k in range(12): actreg[3, k] = ("a", 4 * (k + 1))
    def tagput(reg, tag): return {(reg[0], reg[1] + i): tag for i in range(4)}
    grp = lambda n: mk(f"v_add_u32 v{vW2}, s{4 + n // 15}, v{vL16}")
    def w2_load(n):
        k = n % 15; b = 20 + 2 * (k // 4)
        return (grp(n) if k == 0 else []) + [I(f"global_load_dwordx4 {r4(*w2reg[n])}, v{vW2}, s[{b}:{b+1}] offset:{1024 * (k % 4)} sc1", put=tagput(w2reg[n], ("W2", n)))]
    def act_load(c, k):
        b = 8 + 2 * (k // 3); va = (vL16, vX, vW2, vX)[c]
        pre = mk(f"v_add_u32 v{va}, {2 * c * AP}, v{vL16}") if c and k == 0 else []
        return pre + [I(f"global_load_dwordx4 {r4(*actreg[c, k])}, v{va}, s[{b}:{b+1}] offset:{1024 * (k % 3)} sc1", tag=f"x{c}_{k}", put=tagput(actreg[c, k], ("X", c, k)))]
    def unpark(n):
        a, off = (vSW, 10240 + 1024 * (n - 35)) if n < 45 else (T + 6, 1024 * (n - 45)) if n < 45 + NPK else (vSW, 20480 + 1024 * (n - 45 - NPK))
        return I(f"ds_read_b128 {r4(*w2reg[n])}, v{a} offset:{off}", tag="up", put=tagput(w2reg[n], ("W2", n)))
    w2_loads = lambda a, b: [x for n in range(a, b) for x in w2_load(n)]
    act_loads = lambda c: [x for k in range(12) for x in act_load(c, k)]
    late_loads = lambda a, b: [x for kind, p, q in late[a:b] for x in (w2_load(p) if kind == "w" else act_load(p, q))]
    def f3_issue(c): return mk(f"s_mov_b32 s73, {2 * c * AP}") + e.poll_issue(vPF, PD, "s73")
    def f3_check(c):
        a = e.poll_check(vPF, PD, "s73")
        return [a[0], a[1:]]
    def f3_signal(i):
        return mk(f"@vm st{i}\ns_add_u32 s61, s56, {AP * i}\nbuffer_store_dwordx2 v[{vTG}:{vTG+1}], v{vSG}, {SRD}, s61 offen sc1")

    main, start, bstart, pstart = [], [], [], {}
    def frag(i, p): return FRG + 20 * ((p // 5) & 1) + 4 * (p % 5)
    def ftag(i, p): return {("v", frag(i, p) + k): ("H", i, p) for k in range(4)}
    CH = o.get("ch", 1)
    used = {}
    for i in range(8):
        start.append(len(main))
        for b in range(4):
            bstart.append(len(main))
            ps = range(5 * b, 5 * b + 5); ts = ([-2, -1] if b == 0 else []) + ([2, 1, 0] if o.get("bou", 1) and b % 2 == 0 else [0, 1, 2])
            chain = CH and (i, b) != (0, 0)
            for p, t in ([(p, t) for t in ts for p in ps] if chain else [(p, t) for p in ps for t in ts]):
                pstart.setdefault((i, p), len(main))
                f = r4("v", frag(i, p))
                if t < 0:
                    S, A = (S2, f) if t == -2 else (S1, r4("v", ONES))
                    main.append(I(f"{MF} {r4('v', S)}, {A}, {f}, " + ("0" if p == 0 else r4('v', S)), need=ftag(i, p), put=tagput(("v", S), ("S", i, p))))
                    used[i, "s"] = len(main) - 1
                else:
                    a = ACC + 12 * (i & 1) + 4 * t
                    main.append(I(f"{MF} {r4('v', a)}, {r4('a', 12 * p + 4 * t)}, {f}, " + ("0" if p == 0 else r4('v', a)), need=ftag(i, p)))
                    if p == 19: main[-1].put = tagput(("v", a), ("G", i))
                    used[i, 3 * p + t] = len(main) - 1
            if i == 0:
                main.extend(colsums(e)[48 + 3 * b: 51 + 3 * b])
                if b == 3:
                    for t in range(3): main[t - 3].put = tagput(("v", CS + 4 * t), "CS")
    start.append(len(main)); bstart.append(len(main))
    def reads(b):
        i, gq = b // 4, b % 4
        slot = (i // 2) % 3
        base = TA + 4 * (i & 1) + gq
        out = []
        for p in range(5 * gq, 5 * gq + 5):
            f = frag(i, p); off = 10240 * slot + 2048 * (p % 5)
            out.append(I(f"ds_read_b64_tr_b16 v[{f}:{f+1}], v{base} offset:{off}", tag=f"b{b}_{p % 5 // 2}", put={("v", f): ("H", i, p), ("v", f + 1): ("H", i, p)}))
            out.append(I(f"ds_read_b64_tr_b16 v[{f+2}:{f+3}], v{base} offset:{off + 256}", tag=f"b{b}_{p % 5 // 2}", put={("v", f + 2): ("H", i, p), ("v", f + 3): ("H", i, p)}))
        return out
    NB = o.get("nb", 0)
    def stats_check(i, rd):
        a = S1; neg = not (i >> 1) & 1
        A, B = e.lab("again"), e.lab("ready")
        comb = f"""v_bitop3_b32 v{T+9}, v{a+1}, v{a+3}, v{a+5} bitop3:{'0x80' if neg else '0xfe'}
            v_{'and' if neg else 'or'}_b32 v{T+9}, v{T+9}, v{a+7}
            v_cmp_{'le' if neg else 'gt'}_i32 vcc, 0, v{T+9}"""
        e.cold.append(f"""{A}:
    s_mov_b32 s49, 0
{A}_l:
    {rd[0].text}
    {rd[1].text}
    s_add_u32 s49, s49, 1
    s_waitcnt lgkmcnt(0)
    {comb}
    s_cmp_ge_u32 s49, {G.SPIN * 8}
    s_cbranch_scc1 {B}
    s_nop 1
    s_cbranch_vccnz {A}_l
    s_branch {B}""")
        br = I(f"s_cbranch_vccnz {A}")
        br.uses |= {("v", a + k) for k in range(8)} | {("v", T + 9)}; br.defs |= {("v", a + k) for k in range(8)}
        out = mk(comb); out[-1].put = br.need = {("vcc", 0): A}
        return out + [[br] + mk(f"{B}:")]
    def stats_out(i):
        sg = "-" if NB and not (i >> 1) & 1 else ""
        out = mk(f"""v_cndmask_b32 v{S1+1}, v{S2}, v{S2+1}, s[50:51]
            v_cndmask_b32 v{S1+1}, v{S1+1}, v{S2+2}, s[52:53]
            v_cndmask_b32 v{S1+1}, {sg}abs(v{S1+1}), {sg}abs(v{S2+3}), s[54:55]""") + mk(f"ds_write_b64 v{vSW}, v[{S1}:{S1+1}] offset:{512 * (i & 1)}", tag=f"sp{i}")
        out[0].need = {("v", S2): ("S", i, 4)}; out[3].need = {("v", S1): ("S", i, 4)}
        return out
    def stats_in(i):
        c = CN + 4 * (i & 1); a = S1
        rd = mk(f"ds_read_b128 v[{a}:{a+3}], v{vSR} offset:{512 * (i & 1)}\nds_read_b128 v[{a+4}:{a+7}], v{vSR} offset:{512 * (i & 1) + 16}", tag=f"sr{i}")
        m = mk(f"""v_add_f32 v{a}, v{a}, v{a+2}
            v_add_f32 v{a+1}, v{a+1}, v{a+3}
            v_add_f32 v{a+4}, v{a+4}, v{a+6}
            v_add_f32 v{a+5}, v{a+5}, v{a+7}
            v_add_f32 v{a}, v{a}, v{a+4}
            v_add_f32 v{a+1}, v{a+1}, v{a+5}""")
        if o.get("mim", 0):
            m += mk(f"""v_mul_f32 v{a}, {fx(1/640)}, v{a}
                v_mul_f32 v{a+1}, {fx(1/640)}, v{a+1}
                v_fma_f32 v{a+1}, -v{a}, v{a}, v{a+1}
                v_max_f32 v{a+1}, 0, v{a+1}
                v_cvt_pk_bf16_f32 v{a}, v{a}, v{a+1}
                v_and_b32 v{a+1}, 0xffff0000, v{a}
                v_add_f32 v{a+1}, {fx(1e-5)}, v{a+1}
                v_cvt_pk_bf16_f32 v{a+1}, v{a+1}, v{a+1}
                v_lshlrev_b32 v{a+1}, 16, v{a+1}
                v_sqrt_f32 v{a+1}, v{a+1}
                v_lshlrev_b32 v{c}, 16, v{a}
                v_cvt_pk_bf16_f32 v{a+1}, v{a+1}, v{a+1}
                v_lshlrev_b32 v{a+1}, 16, v{a+1}
                v_rcp_f32 v{a+2}, v{a+1}
                v_mul_f32 v{c+3}, v{a+1}, v{a+1}""")
        else:
            m += mk(f"""v_mul_f32 v{c}, {fx(1/640)}, v{a}
                v_fmaak_f32 v{a+1}, s33, v{a+1}, {fx(1e-5)}
                v_fma_f32 v{a+1}, -v{c}, v{c}, v{a+1}
                v_max_f32 v{c+3}, {fx(1e-5)}, v{a+1}
                v_rsq_f32 v{a+2}, v{c+3}""".replace("v_fmaak_f32 v%d, s33, v%d, %s" % (a + 1, a + 1, fx(1e-5)), f"v_fma_f32 v{a+1}, abs(v{a+1}), s32, v{T+8}"))
        m += mk(f"""v_mul_f32 v{c+1}, {fx(C0)}, v{a+2}
            v_mul_f32 v{a+2}, v{a+2}, v{a+2}
            v_mul_f32 v{a+2}, {fx(0.044715)}, v{a+2}
            v_mul_f32 v{c+2}, v{c+1}, v{a+2}""")
        m[-1].put = {("v", c + 2): ("C", i)}
        m[-2].put = {("v", a + 2): ("M", i)}; m[-1].need = {("v", a + 2): ("M", i)}
        return rd, m
    DS = o.get("ds", 0)
    def dstore(i, t):
        return mk(f"global_store_dword v{vAST}, v{OUT+t}, s[34:35] offset:{256 * t} sc1", tag=f"st{i}")
    def epilogue(i, packed=False):
        c = CN + 4 * (i & 1)
        out = mk(f"v_mov_b32 v{OUT+3}, {'v0' if i < 7 else 0}")
        for t in range(3):
            a = ACC + 12 * (i & 1) + 4 * t; s = CS + 4 * t; x = T
            p2 = lambda r: f"v[{r}:{r+1}]"
            if packed:
                out += mk(f"""v_pk_fma_f32 {p2(a)}, {p2(c)}, {p2(s)}, {p2(a)} op_sel_hi:[0,1,1] neg_lo:[1,0,0] neg_hi:[1,0,0]
                    v_pk_fma_f32 {p2(a+2)}, {p2(c)}, {p2(s+2)}, {p2(a+2)} op_sel_hi:[0,1,1] neg_lo:[1,0,0] neg_hi:[1,0,0]
                    v_pk_mul_f32 {p2(x)}, {p2(a)}, {p2(a)}
                    v_pk_fma_f32 {p2(x)}, {p2(x)}, {p2(c+2)}, {p2(c)} op_sel:[0,0,1] op_sel_hi:[1,0,1]
                    v_pk_mul_f32 {p2(x)}, {p2(x)}, {p2(a)}
                    v_exp_f32 v{x}, v{x}
                    v_exp_f32 v{x+1}, v{x+1}
                    v_pk_mul_f32 {p2(a)}, {p2(a)}, {p2(a+2)}
                    v_pk_fma_f32 {p2(x)}, {p2(x)}, {p2(c+2)}, {p2(c+2)} op_sel:[0,1,1] op_sel_hi:[1,1,1]
                    v_rcp_f32 v{x}, v{x}
                    v_rcp_f32 v{x+1}, v{x+1}""")
                if t == 2 and not DS: out += mk(f"v_permlane32_swap_b32 v{OUT+1}, v{OUT+3}")
                out += mk(f"v_pk_mul_f32 {p2(a)}, {p2(a)}, {p2(x)}\nv_cvt_pk_bf16_f32 v{OUT+t}, v{a}, v{a+1}")
                continue
            first = [I(f"v_fma_f32 v{a+k}, -v{c}, v{s+k}, v{a+k}", need={("v", a + k): ("G", i), ("v", c + 2): ("C", i), ("v", s + k): "CS"}) for k in range(4)]
            out += first[:2] + mk(f"v_mul_f32 v{x}, v{a}, v{a}\nv_mul_f32 v{x+1}, v{a+1}, v{a+1}")
            out += mk(f"""v_fma_f32 v{x}, v{x}, v{c+2}, v{c+1}
                v_fma_f32 v{x+1}, v{x+1}, v{c+2}, v{c+1}
                v_mul_f32 v{x}, v{x}, v{a}
                v_mul_f32 v{x+1}, v{x+1}, v{a+1}
                v_exp_f32 v{x}, v{x}
                v_exp_f32 v{x+1}, v{x+1}""") + first[2:] + mk(f"""v_fma_f32 v{x}, v{x}, v{c+3}, v{c+3}
                v_fma_f32 v{x+1}, v{x+1}, v{c+3}, v{c+3}
                v_rcp_f32 v{x}, v{x}
                v_rcp_f32 v{x+1}, v{x+1}
                v_mul_f32 v{a}, v{a}, v{a+2}
                v_mul_f32 v{a+1}, v{a+1}, v{a+3}
                v_mul_f32 v{a}, v{a}, v{x}
                v_mul_f32 v{a+1}, v{a+1}, v{x+1}
                v_cvt_pk_bf16_f32 v{OUT+t}, v{a}, v{a+1}""")
            if t == 2 and not DS: out[-9:-9] = mk(f"v_permlane32_swap_b32 v{OUT+1}, v{OUT+3}")
            if DS: out += dstore(i, t)
        if DS:
            if packed: out += dstore(i, 0) + dstore(i, 1) + dstore(i, 2)
            return out + mk(f"v_add_u32 v{vAST}, {192 * 256}, v{vAST}")
        out += mk(f"""s_add_u32 s3, s56, {i * AP}
            v_permlane32_swap_b32 v{OUT}, v{OUT+2}
            v_permlane16_swap_b32 v{OUT}, v{OUT+1}
            v_permlane16_swap_b32 v{OUT+2}, v{OUT+3}""")
        out[-1].put = {("v", OUT + 3): ("O", i)}
        if 0 < i < 7: out[-1:-1] = mk(f"@vm st{i-1}")
        out.append(I(f"buffer_store_dwordx4 v[{OUT}:{OUT+3}], v{vAST}, {SRD}, s3 offen sc1", tag=f"st{i}", need={("v", OUT + 3): ("O", i)}))
        return out

    g = Sched(main)
    LEAD = o.get("lead", 3 if CH else 1)
    bar, vcc_busy, consts = {}, [], {}
    for i in range(8):
        s0 = start[i]
        hw = [f"@vm h{i // 2 + 1}"] if i & 1 and i < 7 else []
        slow = i in (1, 3)
        rd, m = stats_in(i)
        if NB:
            so = stats_out(i)
            w0 = o.get("nw1", 36) if slow else 27
            so = g.add(so[:3] + mk(hw) + so[3:], s0 + 24, s0 + w0 + 3, prio=2)
            for x in so[3:]: x["lo"] = s0 + w0 - 1
            r = g.add(rd, s0 + o.get("nr", 43), s0 + 48, after=[(so[-1], 6)], prio=2)
            ck = g.add(mk(f"@lgkm sr{i}") + stats_check(i, rd) + m, s0, start[i + 1] - 1, after=[(r[-1], 5)], prio=1)
            bar[i] = ck[4]; consts[i] = ck[-1]
            for x in ck[:5]: x["hi"] = s0 + 56
            vcc_busy.append((ck[3], ck[4]))
        else:
            so = g.add(stats_out(i), used[i, "s"] + 3, s0 + 30, prio=2)
            bar[i] = g.add(mk(hw + [f"@lgkm sp{i}", "s_barrier"]), s0 + (o.get("bar1", 46) if slow else o.get("bar", 35)), s0 + (52 if slow else 42), after=[(so[-1], 4)], prio=2)[-1]
            r = g.add(rd, s0, s0 + 56, after=[(bar[i], 0)], prio=2)
            consts[i] = g.add(mk(f"@lgkm sr{i}") + m, s0, start[i + 1] - 1, after=[(r[-1], 6)])[-1]
        if i > 0:
            eo = o.get("eo", 6) if CH and i > 1 else 0
            ep = g.add(epilogue(i - 1), s0 + 1 - eo, s0 + (o.get("epe", 70) - eo if i < 7 else o.get("epe7", 62)), after=[(consts[i - 1], 0)] + ([(ep[-1], 1)] if i > 1 else []))
    for b in range(31):
        r = g.add(reads(b + 1), bstart[b], bstart[b + 1] - 1 - LEAD, pace=True, prio=1, after=[(bar[b // 4], 0)] if b % 8 == 7 else None)
        if b == 0: r1 = r
    for b in range(32):
        for q in range(3):
            k = pstart[b // 4, 5 * (b % 4) + 2 * q] - 1
            if b > 0: g.add(mk(f"@lgkm b{b}_{q}"), k, k, prio=3)
    pb = g.add(mk(f"s_mov_b32 s73, {F2C - F2}") + e.poll_issue(vPF, PD, "s73"), o.get("pci", 16), o.get("pci", 16) + 3)
    a = e.poll_check(vPF, PD, "s73")
    cc = g.add([a[0], a[1:]] + mk(f"v_and_b32 v0, 16, v1\nv_cmp_eq_u32 s[28:29], 0, v0\nv_cndmask_b32 v0, v{vTG+1}, v{vTG}, s[28:29]"), 0, start[1] - 1, after=[(pb[-1], o.get("rtb", 32))], prio=2)
    pb2 = g.add(mk(f"s_mov_b32 s73, {F2B - F2}") + e.poll_issue(vPF, PD, "s73"), o.get("pbi", 112), o.get("pbi", 112) + 3, after=[(cc[1], 1)])
    a = e.poll_check(vPF, PD, "s73")
    cb = g.add([a[0], a[1:]] + mk(f"v_and_b32 v{vPF}, 15, v1\nv_lshl_add_u32 v{vPF}, v{vPF}, 6, s70"), 0, 200, after=[(pb2[-1], o.get("rtb", 32))], prio=2)
    e(f"""v_lshl_add_u32 v{T+2}, s{sW}, 10, v{T+6}
        v_lshl_add_u32 v{T+3}, s{sW}, 5, v{T+7}""")
    mv = []
    for c in range(4):
        lo = start[2 * c] + (4 if c == 0 else 0); hi = start[2 * c + 1] + 60
        for ra, ro, wa, wo in ((T + 2, 0, T + 3, 0), (T + 6, 4096, T + 7, 128)):
            mv.append(g.add(mk(f"ds_read_b64_tr_b16 v[{T+4}:{T+5}], v{ra} offset:{10240 * (c % 3) + ro}"), lo, hi, after=[(mv[-1][-1], 2)] if mv else None, prio=1))
            mv.append(g.add(mk(f"ds_write_b64 v{wa}, v[{T+4}:{T+5}] offset:{2816 * c + wo}"), lo, hi + 4, after=[(mv[-1][-1], 12)], prio=1))
    def mix(a, b):
        out = []
        while a:
            out.append(a.pop(0))
            if out[-1].kind == "vm" and b:
                out.append(b.pop(0))
                if out[-1].kind != "vm": out.append(b.pop(0))
        return out + b
    m2, m3 = o.get("m2", 6), o.get("m3", 10)
    parts = [wr[nw0:], chunk(1), grp(45) + dma(vW2, 0, 33, 0, NPK, "pk") + w2_loads(0, 2), mix(chunk(2), w2_loads(2, 2 + m2)), mix(chunk(3), w2_loads(2 + m2, 2 + m2 + m3)), w2_loads(2 + m2 + m3, 35),
             dma(vW2, 5, 58, 10240, 10, "pk"), grp(45) + dma(vW2, NPK, 58, 20480, 15 - NPK, "pk")]
    ld = g.add([x for p in parts for x in p], 0, start[7] + 30)
    first = [sum(len(p) for p in parts[:k]) for k in range(len(parts))]
    for k, a in ((1, cc[1]), (3, cb[1]), (4, bar[2]), (6, bar[4]), (7, bar[6])): ld[first[k]]["after"] = [(a, 0)]
    t0 = o.get("t0", 50)
    t, per = 12.0, (start[6] + (56 if NB else 42) - t0) / (75 + NPK)
    for k, x in enumerate(ld):
        if k == first[1]: t = t0
        vm = x["ins"][0].kind == "vm"
        x["lo"] = int(t) - (0 if vm else 3); x["hi"] = int(t) + (4 if vm else 1)
        if vm: t += 4 if k < first[1] else per if k < first[7] else o.get("pk2", 4)
    s7 = start[7]
    dead = lambda n: used[7, n]
    p0 = g.add(f3_issue(0), start[5] + 10, start[5] + 20)
    c0 = g.add(f3_check(0), 0, start[6], after=[(p0[-1], 40)])
    p1 = g.add(f3_issue(1), s7 + o.get("i1", 0), s7 + o.get("i1", 0) + 4, after=[(c0[-1], 1)])
    c1 = g.add(f3_check(1), 0, s7 + 52, after=[(p1[-1], 40)], prio=2)
    nl7 = o.get("nl7", 12)
    it = g.add(late_loads(0, nl7), s7 + (24 if NB else 14), s7 + o.get("x7e", 68), pace=True, win=3, after=[(c0[-1], 0), (ld[-1], 0)])
    if nl7 > 12: it[12]["after"] = [(c1[-1], 0)]
    n = 0
    for x in it:
        if x["ins"][0].kind == "vm":
            x["lo"] = max(x["lo"], dead(n)); x["hi"] = max(x["hi"], x["lo"]); n += 1
    if o.get("gst"):
        for i in range(1, 8): g.add(e.stamp(3 + i if i < 7 else 13), start[i], start[i], prio=3)
    newer = nw0
    r0 = reads(0)
    head = mk(f"v_mov_b32 v{T+4}, 0\nv_mov_b32 v{T+5}, 0\nds_write_b64 v{vSW}, v[{T+4}:{T+5}]\nds_write_b64 v{vSW}, v[{T+4}:{T+5}] offset:512") if NB else []
    for p in range(5):
        it = mk(f"s_waitcnt vmcnt({newer + 8 - 2 * p})") + r0[2 * p: 2 * p + 2]
        if p < 2: head += it
        else: hb = g.add(it, 5 * (p - 2), 5 * (p - 2) + 2, prio=4)
    hb = g.add(mk("s_barrier"), 11, 13, after=[(hb[0], 0)], prio=4)
    r1[0]["after"] = [(hb[-1], 0)]; mv[0][0]["after"] = [(hb[-1], 0)]
    for k, x in enumerate(r1): x["lo"] = 13 + k
    ld[0]["after"] = ld[0]["after"] + [(hb[-1], 0)]; pb[0]["after"] = [(hb[-1], 0)]
    g.add(mk(f"buffer_store_dwordx2 v[{vTG}:{vTG+1}], v198, {SRD}, 0 offen sc1"), 11, 16, after=[(hb[-1], 0)], prio=4)
    h1 = g.add(hd, 0, 76, after=[(ld[first[1] - 1], 0)])
    ld[first[2]]["after"] = [(h1[-1], 0)]
    pw = f3_prewarm(e)
    g.add(pw, 14, start[1] - 1, after=[(h1[-1], 0), (hb[-1], 0)])
    if o.get("fst"): e(e.stamp(2))
    e.pre_g1 = list(e.p)
    e.g1 = head + g.run(); e.g1m = (main, start)
    e(e.g1)
    if o.get("fst"): e(e.stamp(3))
    if o.get("gst"): o["fst"] = 0
    RD, RR, RU, O2 = 50, 82, 86, 120
    A2 = lambda c: 10 + 20 * (c & 1)
    vPW, vPR, vRR, vOS = TA, TA + 1, TA + 2, TA + 3
    nup = o.get("nup", 4)
    e(f"v_add_u32 v{vSW}, s58, v{vL16}\nv_add_u32 v{T+6}, s33, v{vL16}\n@vm pk")
    e([unpark(n) for n in range(35, 35 + nup)])
    e(epilogue(7, True))
    nlt = nl7 + o.get("nlt", 2)
    e(late_loads(nl7, nlt))
    e(f"""v_and_b32 v{T+4}, 15, v1
        v_lshrrev_b32 v{T+5}, 4, v1
        v_mul_u32_u24 v{vPW}, 176, v{T+4}
        v_lshrrev_b32 v{T+4}, 1, v{T+5}
        v_lshl_add_u32 v{vPW}, v{T+4}, 4, v{vPW}
        v_and_b32 v{T+4}, 1, v{T+5}
        v_mul_u32_u24 v{T+4}, 2816, v{T+4}
        v_add_u32 v{vPW}, v{vPW}, v{T+4}
        s_mul_i32 s48, s{sW}, 5632
        s_add_u32 s48, s48, {PART}
        v_add_u32 v{vPW}, s48, v{vPW}""")
    setup2 = mk(f"""v_min_u32 v{T+4}, 39, v1
        v_mul_u32_u24 v{T+5}, 6554, v{T+4}
        v_lshrrev_b32 v{T+5}, 16, v{T+5}
        v_mul_u32_u24 v{T+7}, 10, v{T+5}
        v_sub_u32 v{T+4}, v{T+4}, v{T+7}
        s_lshl_b32 s48, s{sW}, 2
        v_add_u32 v{T+5}, s48, v{T+5}
        v_mul_u32_u24 v{vPR}, 176, v{T+5}
        v_lshl_add_u32 v{vPR}, v{T+4}, 4, v{vPR}
        v_add_u32 v{vRR}, {RES}, v{vPR}
        v_mul_u32_u24 v{vOS}, 1280, v{T+5}
        v_lshl_add_u32 v{vOS}, v{T+4}, 4, v{vOS}
        v_cmp_gt_u32 s[50:51], 40, v1
        v_mov_b32 v{T+5}, 0x40000000
        s_mov_b32 s64, s30
        s_mov_b32 s65, s31
        s_mov_b32 s66, {2048 * 1280}
        s_mov_b32 s67, 0x20000
        v_cndmask_b32 v{vOS}, v{T+5}, v{vOS}, s[50:51]
        s_lshl1_add_u32 s46, s62, s72
        s_mul_i32 s46, s46, {16 * 1280}
        s_mul_i32 s48, s68, 160
        s_add_u32 s46, s46, s48""")
    assert PART == 0
    main = []
    NT = o.get("nt", 4)
    first_use, done = {}, {}
    for c in range(4):
        seq = [(k, t) for k in range(12 - NT) for t in range(5)] + [(k, t) for t in range(5) for k in range(12 - NT, 12)]
        if o.get("ch2", 1): seq = [(k, t) for k0 in range(0, 12, NT) for t in (range(5) if (12 - NT - k0) // NT % 2 == 0 or not o.get("bou", 1) else range(4, -1, -1)) for k in range(k0, k0 + NT)]
        for k, t in seq:
            a = A2(c) + 4 * t
            first_use.setdefault((c, k), len(main))
            need = dict(tagput(w2reg[5 * k + t], ("W2", 5 * k + t))); need.update(tagput(actreg[c, k], ("X", c, k)))
            main.append(I(f"{MF} {r4('v', a)}, {r4(*w2reg[5 * k + t])}, {r4(*actreg[c, k])}, " + ("0" if k == 0 else r4('v', a)), need=need))
            if k == 11:
                main[-1].put = tagput(("v", a), ("P", c)); done[c, t] = len(main) - 1
    def part_write(c):
        return [I(f"ds_write_b128 v{vPW}, {r4('v', A2(c) + 4 * t)} offset:{(c & 1) * 22528 + 32 * t}", tag=f"pw{c}", need=tagput(("v", A2(c) + 4 * t), ("P", c))) for t in range(5)]
    def res_read(c):
        rd = mk(f"ds_read_b128 {r4('v', RR)}, v{vRR} offset:{2816 * c}", tag=f"rr{c}")
        un = mk([f"v_lshlrev_b32 v{RU+2*k}, 16, v{RR+k}\nv_and_b32 v{RU+2*k+1}, 0xffff0000, v{RR+k}" for k in range(4)])
        return rd, un
    def part_read(c):
        return mk([f"ds_read_b128 {r4('v', RD + 8 * w + 4 * hf)}, v{vPR} offset:{(c & 1) * 22528 + 5632 * w + 2816 * hf}" for w in range(4) for hf in range(2)], tag=f"pr{c}")
    def finish(c, packed):
        out = [f"s_add_u32 s47, s46, {c * 512 * 1280}"]
        for w in range(4):
            if packed: out += [f"v_pk_add_f32 v[{RU+2*k}:{RU+2*k+1}], v[{RU+2*k}:{RU+2*k+1}], v[{RD+8*w+2*k}:{RD+8*w+2*k+1}]" for k in range(4)]
            else: out += [f"v_add_f32 v{RU+k}, v{RU+k}, v{RD+8*w+k}" for k in range(8)]
        out += [f"v_cvt_pk_bf16_f32 v{O2+k}, v{RU+2*k}, v{RU+2*k+1}" for k in range(4)]
        out += [f"buffer_store_dwordx4 {r4('v', O2)}, v{vOS}, {SRD2}, s47 offen" + (" sc1" if o.get("osc") else "")]
        return mk(out)
    g = Sched(main, dense=True)
    su = g.add(setup2, 0, 40)
    sg = g.add(f3_signal(7), o.get("sig7", 30), o.get("sig7", 30) + 3, prio=3)
    up = g.add([unpark(n) for n in range(35 + nup, 60)], 0, 26, pace=True)
    b0 = g.add(mk("@lgkm up\ns_barrier"), 33, 34, after=[(up[-1], 4)])
    ll = g.add(late_loads(nlt, 24), 0, o.get("lle", 46), pace=True, win=2, prio=1)
    p2 = g.add(f3_issue(2), o.get("i2", 24), o.get("i2", 24) + 3, prio=2)
    c2 = g.add(f3_check(2), 0, 100, after=[(p2[-1], o.get("rtt", 36)), (sg[-1], 0)], prio=2)
    x2 = g.add(act_loads(2), o.get("i2", 24) + 38, o.get("x2e", 110), pace=True, win=2, after=[(c2[-1], 0), (ll[-1], 0)], prio=1)
    i3 = o.get("i3", 100); r3 = o.get("rt3", 30)
    p3 = g.add(f3_issue(3), i3, i3 + 3, after=[(c2[-1], 1)], prio=2)
    c3 = g.add(f3_check(3) + [e.stamp(5)] * bool(o.get("fst") and e.stamp(5)), 0, i3 + r3 + 6, after=[(p3[-1], r3)], prio=2)
    x3 = g.add(act_loads(3), 66, 239, after=[(c3[-1], 0), (x2[-1], 0)], prio=2)
    for k, x in enumerate(x3[1:]):
        x["lo"] = i3 + r3 + max(0, k - 3) * o.get("p3", 4); x["hi"] = min(x["lo"] + 6, first_use[3, k] - 2)
    for (c, k), n in first_use.items():
        if n: g.add(mk(f"@vm x{c}_{k}"), n - 1, n - 1, prio=-1)
    prev = su[-1]
    for c in range(4):
        b = 60 * (c + 1)
        rd, un = res_read(c)
        r = g.add(rd, 0, b - 6, after=[(prev, 0)])
        u = g.add(mk(f"@lgkm rr{c}") + un, 0, b - 1 + (10 if c < 3 else 0), after=[(r[-1], 4)])
        pw = part_write(c)
        nin = 5 if c < 3 else 3
        w = g.add(pw[:nin], 0, b + 6, prio=2, after=[(b0[-1], 0)])
        for t in range(nin): w[t]["lo"] = min(done[c, t] + o.get("wd", 6), 239)
        if c < 3:
            br = g.add(mk(f"@lgkm pw{c}\ns_barrier"), 0, b + 14, after=[(w[-1], 5)], prio=2)
            pr = g.add(part_read(c), b + 8, b + 8 + o.get("prs", 10), pace=True, after=[(br[-1], 0)], prio=1)
            prev = g.add(mk(f"@lgkm pr{c}") + finish(c, False), 0, b + 48, after=[(pr[-1], 4), (u[-1], 0)])[-1]
    if o.get("fst"): e(e.stamp(4))
    e.pre_g2 = list(e.p); e.g2 = g.run()
    e(e.g2)
    if o.get("fst"): e(e.stamp(10))
    e(pw[3:]); e("s_waitcnt lgkmcnt(0)\ns_barrier")
    e(part_read(3)); e(finish(3, True))
    if o.get("fst"): e(e.stamp(11)); e("s_waitcnt vmcnt(0)"); e(e.stamp(12))
    e.models = (model_cycles(e.g1), model_cycles(e.g2))
```

```python
import struct, math, sys
from asmlib import I, mk, finalize, Gaps, Sched, model_cycles, align8, align_runs, sizes

NAME = "sequential_preLN__ssm_conv_s4__geglu_ffn__prompt"
def fx(x): return hex(struct.unpack("<I", struct.pack("<f", x))[0])
LOG2E = math.log2(math.e)

EPOCH, DBG = 0, 0xe0000
F1, FW, F2, F2B, F2C = ((4 << 20) + 0x50000 * k for k in range(5))
HOFF = 0x40000
UP = 161 * 256
UT, XT, HT, W1P, W2P, ACT, WS_SIZE = 1 << 20, 4 << 20, 7 << 20, 10 << 20, 14 << 20, 16 << 20, 24 << 20
AP = 192 * 256 + 4096
U0, X0, CH0, CHS = 0, 20480, 36864, 21760
PS, A5, A3, A9, A7 = 832, 0, 3328, 6656, 9984 + 64
KTS = 272
KN = 13376; W4 = 55 * KTS; W4P = 2832; K2 = W4 + 2 * W4P; K3 = K2 + 752
LNU = CH0 + 4 * CHS; LNS = 1344
SLOT = 40960
STP = 3 * SLOT
RES = STP + 2048
RST = 160 * 1024 - 4 * 6144
PART = 0
LDS_BYTES = 160 * 1024
assert LNU + 10752 <= LDS_BYTES and RES + 4 * 2816 <= RST

sW, sCLS, sIDX = 36, 37, 38
SRD = "s[40:43]"; TAG = "s[44:45]"; SRD2 = "s[64:67]"
SPIN = 20000

class K:
    def __init__(self, stop=None, stamps=False, opt=None):
        self.p = []; self.stop = stop; self.stamps = stamps; self.nlab = 0
        self.o = dict(opt or {}); self.fs = self.o.get("fs", 6); self.in_ffn = self.in_ln = False; self.cold = []
    def __call__(self, x, **kw): self.p += mk(x, **kw)
    def lab(self, s):
        self.nlab += 1; return f"L_{s}_{self.nlab}"
    def stamp(self, k):
        if self.o.get("nost") and k and k != self.o.get("st"): return []
        if self.o.get("fst") and not self.in_ffn and (k not in (0, 1, 6, 7, 8, 13) or (k == 1 and self.in_ln)): return []
        return mk(f"s_memrealtime s[{74 + 2 * k}:{75 + 2 * k}]") if self.stamps else []

    vSIG, vTAG = 177, 178
    def signal_setup(self):
        out = mk(f"""s_lshl_b32 s48, s2, {self.fs}
            v_lshrrev_b32 v174, 3, v1
            v_lshl_add_u32 v174, v174, 15, s48
            v_and_b32 v175, 7, v1
            v_lshl_add_u32 v174, v175, 3, v174""")
        if self.fs < 6: out += mk(f"v_lshrrev_b32 v175, {self.fs - 3}, v175\nv_lshl_add_u32 v174, v175, 27, v174")
        return out + mk(f"""s_min_u32 s48, s{sW}, 1
            s_lshl_b32 s48, s48, 30
            v_add_u32 v{self.vSIG}, s48, v174""")
    def prewarm(self):
        return mk(f"""s_mul_i32 s48, s{sW}, {FW - F1}
            s_add_u32 s48, s48, {F1}
            buffer_store_dwordx2 v[2:3], v174, {SRD}, s48 offen sc1
            s_mov_b32 s48, {F2C}
            buffer_store_dwordx2 v[2:3], v{self.vSIG}, {SRD}, s48 offen sc1""")
    def helper_flags(self, dst, region):
        return mk(f"""s_lshl_b32 s48, s{sCLS}, 15
            s_mul_i32 s49, s{sW}, {24 << self.fs}
            s_add_u32 s48, s48, s49
            s_add_u32 s48, s48, {region + (160 << self.fs)}
            v_min_u32 v{dst}, 23, v1
            v_lshl_add_u32 v{dst}, v{dst}, {self.fs}, s48""")
    def extra_lanes(self, dst, code):
        return mk(code + f"""
            v_lshrrev_b32 v{dst}, 4, v0
            v_cmp_eq_u32 vcc, 4, v{dst}
            v_lshl_add_u32 v{dst}, v1, 3, s48
            v_cndmask_b32 v{dst}, v{self.vSIG}, v{dst}, vcc""")
    def hint_setup(self, dst, sub):
        return self.extra_lanes(dst, f"s_lshl_b32 s48, s2, 7\ns_add_u32 s48, s48, {HOFF}\ns_sub_u32 s48, s48, {sub}")
    def hint_wait(self, region):
        L = self.lab("hint")
        return mk(f"""s_sub_u32 s48, s2, 160
            s_lshl_b32 s48, s48, 7
            s_add_u32 s48, s48, {region + HOFF}
            v_mov_b32 v196, s48
            s_cmp_lg_u32 s{sW}, 0
            s_cbranch_scc1 {L}""") + self.poll_issue(196, 192) + self.poll_check(196, 192, slp=4) + mk(f"{L}:\ns_barrier")
    def signal_all(self, region, va=None):
        return mk(f"s_mov_b32 s48, {region}\nbuffer_store_dwordx2 v[{self.vTAG}:{self.vTAG+1}], v{va or self.vSIG}, {SRD}, s48 offen sc1")
    def poll_issue(self, va, vd, so="0"):
        return mk(f"buffer_load_dwordx2 v[{vd}:{vd+1}], v{va}, {SRD}, {so} offen sc1")
    def poll_check(self, va, vd, so="0", slp=2):
        A, B = self.lab("retry"), self.lab("seen")
        self.cold.append(f"""{A}:
    s_mov_b32 s49, 0
{A}_l:
    s_mov_b64 exec, vcc
    s_sleep {self.o.get('slp', slp)}
    buffer_load_dwordx2 v[{vd}:{vd+1}], v{va}, {SRD}, {so} offen sc1
    s_add_u32 s49, s49, 1
    s_waitcnt vmcnt(0)
    v_cmp_ne_u64 vcc, {TAG}, v[{vd}:{vd+1}]
    s_mov_b64 exec, -1
    s_cmp_ge_u32 s49, {SPIN}
    s_cbranch_scc1 {B}
    s_nop 1
    s_cbranch_vccnz {A}_l
    {f"s_mov_b32 s{76 + 2 * len(self.cold)}, s49" if self.o.get("cnt") else ""}
    s_branch {B}""")
        br = I(f"s_cbranch_vccnz {A}")
        br.uses |= {("v", va), ("v", vd), ("v", vd + 1)} | ({("s", int(so[1:]))} if so != "0" else set())
        c = I(f"v_cmp_ne_u64 vcc, {TAG}, v[{vd}:{vd+1}]"); c.put = br.need = {("vcc", 0): A}
        return [c, br] + mk(f"{B}:")

    def prologue(self):
        e = self
        e(f"s_cmp_ge_u32 s2, 256\ns_cbranch_scc1 L_end")
        e(self.stamp(0))
        if e.o.get("cnt"): e([f"s_mov_b32 s{r}, 0" for r in range(76, 102, 2)])
        e(f"""s_load_dwordx16 s[4:19], s[0:1], 0
            s_load_dwordx16 s[20:35], s[0:1], 64
            s_getpc_b64 s[46:47]
            L_pc:
            v_and_b32 v1, 63, v0
            v_lshrrev_b32 v2, 6, v0
            s_lshr_b32 s{sIDX}, s2, 3
            v_readfirstlane_b32 s{sW}, v2
            s_mul_i32 s48, s{sIDX}, 14
            v_min_u32 v3, 13, v0
            v_add_u32 v3, s48, v3
            v_lshlrev_b32 v3, 7, v3
            v_min_u32 v3, L_code_end-{NAME}_kernel-64, v3
            global_load_dword v4, v3, s[46:47]
            s_and_b32 s{sCLS}, s2, 7
            v_lshrrev_b32 v5, 5, v0
            v_and_b32 v6, 31, v0
            s_lshl_b32 s48, s2, 3
            v_add_u32 v7, s48, v5
            v_mul_u32_u24 v7, 1280, v7
            v_lshl_add_u32 v2, v6, 2, v7
            v_lshl_add_u32 v7, v6, 4, v7""")

    def x_loads(self):
        self(f"""global_load_dwordx4 v[10:13], v7, s[4:5]
            global_load_dwordx4 v[14:17], v7, s[4:5] offset:512
            global_load_dword v18, v2, s[4:5] offset:1024
            global_load_dword v19, v2, s[4:5] offset:1152
            s_mov_b32 s40, s34
            s_mov_b32 s41, s35
            s_mov_b32 s42, {WS_SIZE}
            s_mov_b32 s43, 0x20000
            v_mov_b32 v138, {EPOCH}""")
    def epoch_load(self):
        self(f"buffer_load_dword v{self.vTAG+1}, v138, {SRD}, 0 offen sc1")

    def conv_param_loads(self):
        e = self
        e(f"""s_mul_i32 s50, s{sCLS}, 80
            s_lshl2_add_u32 s50, s{sIDX}, s50
            s_add_u32 s50, s50, s{sW}
            s_mul_i32 s48, s50, 384
            v_lshl_add_u32 v34, v1, 2, s48
            v_lshl_add_u32 v35, v1, 1, s48
            s_lshl_b32 s48, s50, 1
            v_mov_b32 v36, s48
            global_load_ushort v32, v36, s[18:19]""")
        for a in range(6):
            e(f"global_load_dword v{20+a}, v34, s[{6+2*a}:{7+2*a}]")
        for a in range(6):
            e(f"global_load_ushort v{26+a}, v35, s[{6+2*a}:{7+2*a}] offset:256")
        e("global_load_ushort v33, v36, s[20:21]")

    def ln_consts(self):
        self(f"""v_mul_u32_u24 v141, {LNS}, v5
            v_add_u32 v141, {LNU}, v141
            v_lshl_add_u32 v140, v6, 2, v141
            v_add_u32 v140, 1024, v140
            v_lshl_add_u32 v141, v6, 4, v141
            v_and_b32 v143, 3, v5
            v_mul_u32_u24 v143, {2 * LNS}, v143
            v_add_u32 v143, {LNU + 1280}, v143
            v_mov_b32 v2, 0
            v_mov_b32 v3, 0
            ds_write_b64 v143, v[2:3]
            v_lshrrev_b32 v139, 2, v5
            v_lshl_add_u32 v143, v139, 1, v143
            v_bfe_u32 v142, v1, 2, 2
            v_mul_u32_u24 v142, {LNS}, v142
            v_lshrrev_b32 v139, 4, v1
            v_lshl_add_u32 v142, v139, 5, v142
            v_and_b32 v139, 3, v1
            v_lshl_add_u32 v142, v139, 3, v142
            s_lshl_b32 s48, s{sW}, 7
            s_add_u32 s48, s48, {LNU}
            v_add_u32 v142, s48, v142
            s_lshr_b32 s51, s2, 2
            s_and_b32 s48, s51, 7
            s_lshl_b32 s49, s2, 1
            s_and_b32 s49, s49, 4
            s_xor_b32 s48, s48, s49
            v_xor_b32 v139, s48, v139
            v_lshrrev_b32 v8, 2, v1
            v_lshlrev_b32 v8, 8, v8
            v_lshl_add_u32 v8, v139, 4, v8
            v_cmp_gt_u32 vcc, 132, v0
            v_mov_b32 v37, 0x40000000
            s_mul_i32 s51, s51, {UP}
            s_and_b32 s48, s2, 1
            v_cndmask_b32 v37, v37, v8, vcc
            s_lshl_b32 s48, s48, 7
            s_add_u32 s51, s51, s48
            s_lshl_b32 s48, s{sW}, 12
            s_add_u32 s51, s51, s48
            s_add_u32 s51, s51, {UT}
            s_add_u32 s52, s51, 16384
            s_add_u32 s53, s51, 32768
            s_mov_b32 s54, 0x3f803f80""")
        self(self.signal_setup()); self(self.prewarm())

    def ln1(self):
        keep, self.p, self.in_ln = self.p, [], True
        e = self
        for i in range(10):
            e(f"v_dot2c_f32_bf16 v2, s54, v{10+i}\nv_dot2c_f32_bf16 v3, v{10+i}, v{10+i}")
        e(self.stamp(1))
        un = [f"v_lshlrev_b32 v{80+2*i}, 16, v{10+i}" for i in range(10)] + [f"v_and_b32 v{81+2*i}, 0xffff0000, v{10+i}" for i in range(10)]
        e(un.pop()); e(un.pop()); e(un.pop())
        for m in ("quad_perm:[1,0,3,2]", "quad_perm:[2,3,0,1]", "row_half_mirror", "row_mirror"):
            e(f"v_add_f32_dpp v2, v2, v2 {m} row_mask:0xf bank_mask:0xf\nv_add_f32_dpp v3, v3, v3 {m} row_mask:0xf bank_mask:0xf")
            e(un.pop())
        e("v_mov_b32 v4, v2\nv_mov_b32 v5, v3"); e(un.pop()); e(un.pop())
        e("v_permlane16_swap_b32 v4, v2\nv_permlane16_swap_b32 v5, v3")
        e(f"""v_add_f32 v2, v2, v4
            v_add_f32 v3, v3, v5
            v_mul_f32 v2, {fx(1/640)}, v2
            v_mul_f32 v3, {fx(1/640)}, v3
            v_fma_f32 v3, -v2, v2, v3
            v_max_f32 v3, 0, v3
            v_cvt_pk_bf16_f32 v2, v2, v3
            v_and_b32 v3, 0xffff0000, v2
            v_add_f32 v3, {fx(1e-5)}, v3
            v_cvt_pk_bf16_f32 v3, v3, v3
            v_lshlrev_b32 v3, 16, v3
            v_sqrt_f32 v3, v3
            v_lshlrev_b32 v2, 16, v2
            v_cvt_pk_bf16_f32 v3, v3, v3
            v_lshlrev_b32 v3, 16, v3
            v_rcp_f32 v4, v3""")
        e(un)
        e("v_mul_f32_e64 v6, -v2, v4")
        for i in range(10):
            e(f"v_pk_fma_f32 v[{80+2*i}:{81+2*i}], v[{80+2*i}:{81+2*i}], v[4:5], v[6:7] op_sel_hi:[1,0,0]")
        for i in range(10):
            e(f"v_cvt_pk_bf16_f32 v{128+i}, v{80+2*i}, v{81+2*i}")
        e("ds_write_b128 v141, v[128:131]\nds_write_b128 v141, v[132:135] offset:512\nds_write2_b32 v140, v136, v137 offset1:32")
        e(f"ds_write_b16_d16_hi v143, v3 offset:{LNS}\nds_write_b16_d16_hi v143, v2 offset:{LNS + 4}")
        e("s_waitcnt lgkmcnt(0)\ns_barrier")
        for k in range(3):
            e(f"""ds_read_b64_tr_b16 v[{100+4*k}:{101+4*k}], v142 offset:{512*k}
                ds_read_b64_tr_b16 v[{102+4*k}:{103+4*k}], v142 offset:{512*k + 4*LNS}""")
        for k in range(3):
            e(f"buffer_store_dwordx4 v[{100+4*k}:{103+4*k}], v{8 if k < 2 else 37}, {SRD}, s{51+k} offen sc1", tag="ln")
        e(self.stamp(2))
        out, self.p, self.in_ln = self.p, keep, False
        return out

    def ln_publish(self):
        return mk(f"""v_readfirstlane_b32 s44, v{self.vTAG+1}
            s_add_u32 s44, s44, 1
            s_xor_b32 s45, s44, 0x5bd1e995
            v_mov_b32 v{self.vTAG}, s44
            v_mov_b32 v{self.vTAG+1}, s45
            @vm ln
            s_barrier""") + self.signal_all(F1) + self.stamp(3)

    TB0 = 200
    vUB, vBB, vHST, vDMA, vPOLL, vST = 200, 208, 209, 210, 211, 212
    vAB, vBW, vR2, vR3, vK2A, vK3A = 216, 217, 218, 220, 222, 223
    vKTX, vKTY, vKNW, vK2W, vK3W, vW4S, vW4D, vW4S3, vW4D3, vZB = range(224, 234)
    vBAND, vL16 = 236, 252

    def lane_table(self):
        e = self
        tab = {r: [0] * 64 for r in range(200, 252)}
        ua = lambda ap, hh, s: 256 * ap + 128 * (hh & 1) + 16 * ((4 * (hh >> 1) + s) ^ (ap & 7))
        for l in range(64):
            col, h, q, r, c, h2 = l & 15, l >> 4, (l >> 2) & 3, l & 3, l & 31, l >> 5
            for j in range(8): tab[e.vUB + j][l] = U0 + 2048 + ua(col - j, h, 0)
            o8 = 2 * col - 1 + h
            tab[e.vBB][l] = U0 + 4096 + ua(o8 >> 2, o8 & 3, 0)
            tab[e.vHST][l] = 40960 * col + 16 * h
            tab[e.vDMA][l] = UT + 40960 + UP * h + 16 * col
            tab[e.vPOLL][l] = F1 + (l << e.fs)
            for s in range(4): tab[e.vST + s][l] = U0 + 2048 + ua(col, h, s)
            tab[e.vAB][l] = 32 * (q - h) + 8 * r
            tab[e.vBW][l] = PS * ((h + 3) & 3) + 8 * (col + ((h + 7) >> 2))
            for mt in range(2):
                v = 2 * r + mt + q
                tab[e.vR2 + mt][l] = (A3 if q & 1 else A5) + PS * (v & 3) + 8 * ((v >> 2) + 2 * h)
                v = 2 * r + mt + 2 * q
                tab[e.vR3 + mt][l] = (A7 if q & 1 else A9) + PS * (v & 3) + 8 * ((v >> 2) + 4 * h)
            tab[e.vK2A][l] = 16 * (h - col); tab[e.vK3A][l] = 8 * (2 * h - col)
            tab[e.vKTX][l] = KTS * (c - 16 if c > 22 else c) + 16 * h2
            tab[e.vKTY][l] = KTS * c + 16 * h2
            tab[e.vKNW][l] = 8 * (2 * c + h2)
            tab[e.vK2W][l] = -(128 * h2 + 4 * c); tab[e.vK3W][l] = -(128 * h2 + 2 * c)
            tab[e.vW4S][l] = 8 * l
            tab[e.vW4D][l] = W4P * (l & 1) + 32 * (l >> 1)
            tab[e.vW4S3][l] = {0: 1032, 1: 1040, 24: 1048, 25: 1056}.get(l, 0)
            tab[e.vW4D3][l] = tab[e.vW4D][l] + 2176 if l < 40 else 0
            tab[e.vZB][l] = {16: KN, 17: KN + 1040, 18: KN + 1056}.get(l, (A5, A3, A9, A7)[q] + PS * r)
            for rr in range(e.vAB, e.vZB + 1): tab[rr][l] += CH0
            for b, w in enumerate((2, 1, 4, 3)):
                for m in range(4):
                    on = lambda k: 0x3F80 if abs(8 * h + k - 4 - col) <= w else 0
                    tab[e.vBAND + 4 * b + m][l] = on(2 * m) | on(2 * m + 1) << 16
        words = [tab[200 + 4 * k + i][l] for k in range(13) for l in range(64) for i in range(4)]
        return "\n".join(".long " + ",".join(hex(x) if x > 99999 else str(x) for x in words[n:n + 16]) for n in range(0, len(words), 16))
    def table_loads(self, ks):
        return [I(f"global_load_dwordx4 v[{200+4*k}:{203+4*k}], v{254 + (k >= 8)}, s[46:47] offset:{1024 * (k % 8) - 4096}") for k in ks]

    def conv_consts_a(self):
        e = self
        e(f"""s_mul_i32 s70, s{sW}, {CHS}
            v_lshlrev_b32 v{e.vL16}, 4, v1
            v_add_u32 v254, L_table-L_pc+4096, v{e.vL16}
            v_add_u32 v255, 8192, v254
            v_mov_b32 v190, 0
            v_mov_b32 v191, 0
            v_mov_b32 v192, 0
            v_mov_b32 v193, 0
            v_lshlrev_b32 v186, 4, v0
            v_add_u32 v187, s70, v{e.vL16}
            v_mov_b32 v188, 0x3f80
            s_mov_b32 m0, s70
            ds_write_b128 v186, v[190:193] offset:{U0}
            ds_write_b128 v187, v[190:193] offset:{CH0 + W4}
            ds_write_b128 v187, v[190:193] offset:{CH0 + W4 + W4P}
            ds_write_b128 v187, v[190:193] offset:{CH0 + K2}
            ds_write_b128 v187, v[190:193] offset:{CH0 + K2 + 112}
            ds_write_addtid_b32 v188 offset:{CH0}
            s_lshl_b32 s59, s{sW}, 12""")
    def conv_fix(self):
        e = self
        a = mk(f"""v_add_u32 v{e.vKTX}, s70, v{e.vKTX}
            v_add_u32 v{e.vKTY}, s70, v{e.vKTY}
            s_lshl_b32 s48, s{sCLS}, 15
            s_lshl_b32 s49, s{sW}, {6 + e.fs}
            s_add_u32 s48, s48, s49
            v_add_u32 v{e.vPOLL}, s48, v{e.vPOLL}
            s_mul_i32 s49, s{sW}, {16 * UP}
            v_add_u32 v176, s49, v{e.vDMA}
            s_lshr_b32 s48, s50, 2
            s_sub_u32 s48, 160, s48
            s_lshl_b32 s48, s48, 8
            v_subrev_u32 v{e.vDMA}, s48, v176
            v_add_u32 v{e.vZB}, s70, v{e.vZB}""")
        b = mk([f"v_add_u32 v{r}, s55, v{r}" for r in list(range(e.vKNW, e.vZB)) + list(range(e.vAB, e.vKTX))])
        b += mk(f"s_lshl_b32 s68, s{sW}, 4") + mk([f"v_xor_b32 v{r}, s68, v{r}" for r in range(e.vUB, e.vBB + 1)])
        b += mk(f"""s_lshl_b32 s68, s50, 2
            s_and_b32 s68, s68, 32
            v_xor_b32 v{e.vHST}, s68, v{e.vHST}
            s_lshl_b32 s68, s50, 6
            v_add_u32 v{e.vHST}, s68, v{e.vHST}
            s_mul_i32 s69, s{sIDX}, {-7 << e.fs}
            s_mul_i32 s48, s{sCLS}, {19 << e.fs}
            s_add_u32 s69, s69, s48""") + e.hint_setup(199, "s69")
        b += mk(f"s_add_u32 s48, s69, {F2B}\nv_add_u32 v{e.vSIG}, s48, v{e.vSIG}") + e.extra_lanes(198, f"s_min_u32 s48, s2, 1\ns_lshl_b32 s48, s48, 30")
        return a, b

    @staticmethod
    def cmul(d, z, w, t):
        return [f"v_pk_mul_f32 v[{t}:{t+1}], v[{z}:{z+1}], v[{w}:{w+1}] op_sel:[1,1] op_sel_hi:[1,0] neg_lo:[1,0]",
                f"v_pk_fma_f32 v[{d}:{d+1}], v[{z}:{z+1}], v[{w}:{w+1}], v[{t}:{t+1}] op_sel_hi:[0,1,1]"]

    def kgen_setup(self, j):
        out = []
        for a in range(6):
            src = 20 + a if j < 2 else 26 + a
            out.append(f"v_and_b32 v{146+a}, 0xffff0000, v{src}" if j == 1 else f"v_lshlrev_b32 v{146+a}, 16, v{src}")
        out += f"""v_mul_f32 v146, s56, v146
            v_mul_f32 v147, s57, v147
            v_mul_f32 v148, s58, v148
            v_mul_f32 v149, s58, v149
            v_mul_f32 v152, 0x41000000, v146
            v_mul_f32 v153, 0xc1000000, v147
            v_mul_f32 v154, 0x43800000, v146
            v_mul_f32 v155, 0x43800000, v147
            v_fract_f32 v147, v147
            v_fract_f32 v153, v153
            v_fract_f32 v155, v155
            v_exp_f32 v146, v146
            v_mul_f32 v44, v150, v148
            v_cos_f32 v38, v147
            v_mul_f32 v45, v150, v149
            v_sin_f32 v39, v147
            v_fma_f32 v44, -v151, v149, v44
            v_exp_f32 v152, v152
            v_fmac_f32 v45, v151, v148
            v_cos_f32 v40, v153
            v_mul_f32 v38, v146, v38
            v_sin_f32 v41, v153
            v_mul_f32 v39, v146, v39
            v_exp_f32 v154, v154
            v_mul_f32 v40, v152, v40
            v_cos_f32 v42, v155
            v_mul_f32 v41, v152, v41
            v_sin_f32 v43, v155
            v_mul_f32 v42, v154, v42
            v_mul_f32 v43, v154, v43""".split("\n")
        return mk(out)

    def kgen_tables(self):
        e = self
        W1, W8, W256 = 38, 40, 42
        rows = [0, 1, 2, 3, 4, 5, 6, 7, 256, 258, 260, 1288, 260, 262, 264, 1800, 516, 520, 1032, None, 772, 776, 1544]
        xs = [(("x", 0), None, None)] + [(("x", x), ("x", x - 1), "w1") for x in range(1, 9)] + [(("x", x), ("x", x - 256), "w256") for x in (256, 258, 260, 262, 264, 516, 520, 772, 776, 1032, 1288, 1544, 1800)]
        ys = [(("y", 1), None, None)] + [(("y", c), ("y", c - 1), "w8") for c in range(2, 32)]
        ny, nx = e.o.get("ky", 8), e.o.get("kx", 5)
        batches = [ys[len(ys) * k // ny: len(ys) * (k + 1) // ny] for k in range(ny)] + [xs[len(xs) * k // nx: len(xs) * (k + 1) // nx] for k in range(nx)]
        last = {}
        for b, its in enumerate(batches):
            for d, s, w in its:
                last[d] = max(last.get(d, b), b)
                if s: last[s] = b
        reg = {"w1": W1, "w8": W8, "w256": W256, ("y", 1): W8, ("x", 0): 44}
        free = [46, 48, 50, 52, 54, 56, 62, 168, 170, 172, 174, 144]
        out = []
        for b, its in enumerate(batches):
            mul, cvt, st = [], [], []
            for k, (d, s, w) in enumerate(its):
                if s:
                    reg[d] = free.pop(0)
                    mul += e.cmul(reg[d], reg[s], reg[w], 58 + 2 * (k & 1))
                if d != ("x", 8):
                    o = 156 + len(cvt)
                    cvt.append(f"v_cvt_pk_bf16_f32 v{o}, v{reg[d]}, v{reg[d]+1}")
                    for r in ([d[1]] if d[0] == "y" else [32 + n for n, x in enumerate(rows) if x == d[1]]):
                        st.append(f"ds_write_addtid_b32 v{o} offset:{CH0 + KTS * r}")
            for d in [d for d, l in last.items() if l == b and d not in (("y", 1), ("x", 0))]: free.append(reg[d])
            out.append((mk(mul), mk(cvt), mk(st)))
        return out, ny

    def kgen(self):
        e = self
        e(f"""v_lshlrev_b32 v32, 16, v32""")
        e(f"""
            v_mul_f32 v32, {fx(LOG2E)}, v32
            v_exp_f32 v32, v32
            v_lshlrev_b32 v196, 16, v33
            v_cvt_pk_bf16_f32 v32, v32, v32
            v_lshlrev_b32 v32, 16, v32
            v_mul_f32 v34, {fx(LOG2E)}, v32
            v_mul_f32 v35, 0.15915494, v32
            v_readfirstlane_b32 s58, v32
            v_readfirstlane_b32 s56, v34
            v_readfirstlane_b32 s57, v35
            s_mov_b32 s55, s70""")
        drip = []
        def wdrip():
            w = e.w1_pack_issue(); drip.extend(w[k:k + 4] for k in range(0, 16, 4))
        ho = e.o.get("ho", 3)
        if ho and not e.o.get("one", 0): drip.extend([[]] * e.o.get("tbd", 0) + [[i] for i in e.tl_rest])
        elif e.o.get("wl", 1) == 1: wdrip()
        def pub():
            if e.o.get("wl", 1) == 2: wdrip()
            return (e.walk("B", 0) if e.o.get("wkb", 3) == 5 else []) + e.ln_publish()
        def gather():
            a, b = e.gather(); drip.extend(b)
            for k, i in enumerate(e.table_loads(range(9, 13)) if not ho else []): drip[-4 + k] = drip[-4 + k][:3] + [i] + drip[-4 + k][3:]
            return a
        def pack():
            drip.extend([i] for i in e.w1_pack_stores())
            return e.w1_pack_perm() + e.stamp(9)
        hooks = {e.o.get("pub", 7): pub,
                 e.o.get("p1i", 25): lambda: e.poll_issue(e.vPOLL, 18),
                 e.o.get("pk", 17): pack,
                 e.o.get("p1c", 30): gather,
                 e.o.get("pw", 32): lambda: e.w1_publish(163) + e.stamp(12)}
        fix, e.late = e.conv_fix()
        hooks[e.o.get("fix", 6)] = lambda: fix
        if ho: hooks[e.o.get("pk", 17)] = hooks[e.o.get("pw", 32)] = lambda: []
        assert len(hooks) == 6 and e.o.get("pk", 17) < e.o.get("p1c", 30)
        one = e.o.get("one", 0)
        e.w1q = e.w1_loads(); e.early = lambda n=1: [e.w1q.pop(0) for _ in range(n if one else 0)]
        wb = 99
        if one:
            drip[:] = [[i] for i in e.table_loads([0, 1, 3, 4, 5, 7])]
            def pack1():
                drip.extend([i] for i in e.w1_pack_stores() + e.table_loads(range(9, 13)))
                return e.w1_pack_perm() + e.stamp(9)
            def gather1():
                a, b = e.gather(); drip.extend(b[k] + b[k + 1] for k in range(0, 8, 2))
                return a
            def open1():
                out = list(ids) + mk("s_barrier"); ids.clear()
                return out
            wb = e.o.get("wb", 36)
            hooks = {e.o.get("fix", 6): lambda: fix, e.o.get("ln", 7): e.ln1, e.o.get("pk", 8): pack1,
                     e.o.get("pub", 19): lambda: mk("@vm w1p") + e.ln_publish(),
                     e.o.get("p1i", 27): lambda: e.poll_issue(e.vPOLL, 18), e.o.get("p1c", 32): gather1, wb: open1}
            assert len(hooks) == 7 and 34 <= wb < 39 and wb > e.o.get("p1c", 32)
        xrd = lambda: mk([f"ds_read_b128 v[{64+8*ks}:{67+8*ks}], v{e.vKTX} offset:{32*ks + 32*KTS}" for ks in range(8)])
        yrd = lambda: mk([f"ds_read_b128 v[{68+8*ks}:{71+8*ks}], v{e.vKTY} offset:{32*ks}" for ks in range(8)])
        mfs = lambda j: [I(f"v_mfma_f32_32x32x16_bf16 v[128:143], v[{64+8*ks}:{67+8*ks}], v[{68+8*ks}:{71+8*ks}], " + ("0" if j == 0 and ks == 0 else "v[128:143]")) for ks in range(8)]
        n, mf, xr, ids = 0, [], [], e.ffn_ids()
        for j in range(3):
            e(e.kgen_setup(j))
            pend, yr = [], yrd()
            tb, ny = e.kgen_tables()
            for b, (mul, cvt, st) in enumerate(tb):
                e(mul)
                for _ in range(-(-len(mf) // (ny + 1 - b)) if b <= ny else 0):
                    e(mf.pop(0)); e(ids.pop(0))
                e(pend)
                for _ in range(min(len(xr), -(-8 // ny))): e(xr.pop(0))
                if b >= ny:
                    assert not mf and not xr
                    for _ in range(-(-len(yr) // (len(tb) - b))): e(yr.pop(0))
                for _ in range(e.o.get("dr", 1) if n > 20 else 1):
                    if drip: e(drip.pop(0))
                if n > wb: e(e.early())
                if n in hooks: e(hooks[n]())
                e(cvt)
                pend = st; n += 1
            e(pend)
            xr, mf = xrd(), mfs(j)
            for _ in range(2 if j < 2 else 8): e(xr.pop(0))
        e(f"ds_write_b128 v{e.vZB}, v[190:193]")
        assert not drip
        e(e.stamp(11))
        if not one: e(e.helper_flags(e.vPOLL, F1))
        fwi = [] if one else mk(f"s_mov_b32 s70, {FW - F1}") + e.poll_issue(e.vPOLL, 234, "s70")
        if e.o.get("fwi", 1) == 0: e(fwi)
        e.fwi, e.ids, e.mf = fwi, ids, mf
    def kpost(self, first):
        e = self
        cp = e.o.get("cp", 2)
        take = lambda n: [first.pop(0) for _ in range(min(n, len(first)))]
        e(e.ids); e(e.late[15:25])
        if cp == 2: e("@vm u\ns_barrier")
        rest = e.late[:15] + e.late[25:]
        for k, m in enumerate(e.mf):
            e(m)
            if cp == 2 and k >= 3: e(take(e.o.get("cpm", 2)))
            e(rest[5 * k: 5 * k + 5])
        assert len(rest) <= 40
        if cp == 1: e("@vm u\ns_barrier")
        e(take(e.o.get("cp0", 8)))
        R = 128
        e(f"""v_cmp_eq_u32 vcc, 0, v1
            s_mov_b32 s71, 0xffff
            v_cndmask_b32 v196, 0, v196, vcc
            v_add_f32 v{R}, v{R}, v196
            v_cvt_pk_bf16_f32 v180, v{R}, v{R+1}
            v_cvt_pk_bf16_f32 v181, v{R+2}, v{R+3}
            ds_write_b64 v{e.vKNW}, v[180:181] offset:{KN + 16}""")
        e(e.w4_reads(0)); e(take(e.o.get('cp1', 5)))
        e(f"""v_cvt_pk_bf16_f32 v182, v{R+4}, v{R+4}
            v_cvt_pk_bf16_f32 v183, v{R+5}, v{R+6}
            v_cvt_pk_bf16_f32 v184, v{R+6}, v{R+6}
            v_cvt_pk_bf16_f32 v185, v{R+6}, 0
            v_cvt_pk_bf16_f32 v186, 0, v{R+9}
            v_cvt_pk_bf16_f32 v187, v{R+9}, 0
            v_cvt_pk_bf16_f32 v188, v{R+9}, v{R+8}
            v_cvt_pk_bf16_f32 v189, v{R+10}, v{R+7}
            ds_write_b64 v{e.vKNW}, v[182:183] offset:{KN + 16 + 512}
            ds_write_b32 v{e.vK2W}, v188 offset:{K2 + 508}
            ds_write_b16 v{e.vK3W}, v189 offset:{K3 + 254}
            ds_write_b16_d16_hi v{e.vK3W}, v189 offset:{K3 + 190}
            s_mov_b32 exec_lo, 0
            s_mov_b32 exec_hi, 0x80000000
            ds_write_b64 v{e.vKNW}, v[184:185] offset:{KN + 16 + 1024 - 504}
            ds_write2_b32 v{e.vK3W}, v186, v187 offset0:0 offset1:1
            s_mov_b64 exec, -1""".replace(f"ds_write2_b32 v{e.vK3W}, v186, v187 offset0:0 offset1:1", f"ds_write_b32 v{e.vKNW}, v186 offset:{KN + 16 + 1044 - 504}\nds_write_b32 v{e.vKNW}, v187 offset:{KN + 16 + 1048 - 504}"))
        if e.o.get("pw", 32) == 99: e(e.w1_publish(163) + e.stamp(12))
        e(e.w4_build(0)); e(take(99))
        if e.o.get("fwi", 1) == 1: e(e.fwi)
        e(self.stamp(5))

    W4S, W4O = 92, 128
    def w4_reads(self, rnd):
        e = self
        a, off = (e.vW4S, KN + 8 + 512 * rnd) if rnd < 2 else (e.vW4S3, KN)
        r = e.W4S + 4 * (rnd & 1)
        return mk(f"ds_read_b64 v[{r}:{r+1}], v{a} offset:{off}\nds_read_b64 v[{r+2}:{r+3}], v{a} offset:{off + 8}", tag=f"w4r{rnd}")
    def w4_build(self, rnd):
        e = self
        p0, p1, o0, o1 = (e.W4S + 4 * (rnd & 1) + i for i in range(4))
        d = e.W4O
        a, off = (e.vW4D, W4 + 128 + 1024 * rnd) if rnd < 2 else (e.vW4D3, W4)
        return mk(f"""v_bfi_b32 v{d}, s71, v{o0}, v{p1}
            v_bfi_b32 v{d+1}, s71, v{p1}, v{p0}
            v_alignbit_b32 v{d+2}, v{o0}, v{o0}, 16
            v_alignbit_b32 v{d+3}, v{p1}, v{p1}, 16
            v_bfi_b32 v{d+4}, s71, v{o1}, v{o0}
            v_mov_b32 v{d+5}, v{d}
            v_alignbit_b32 v{d+6}, v{o1}, v{o1}, 16
            v_mov_b32 v{d+7}, v{d+2}
            ds_write_b128 v{a}, v[{d}:{d+3}] offset:{off}
            ds_write_b128 v{a}, v[{d+4}:{d+7}] offset:{off + 16}""")

    def gather(self):
        e = self
        out = e.stamp(10) + e.poll_check(e.vPOLL, 18) + e.stamp(4)
        items = []
        for lds, va in ((U0 + 4096, e.vDMA), (X0, 176)):
            for k in range(4):
                items.append(mk(f"s_add_u32 m0, s59, {lds + 1024 * k}") + mk(f"global_load_lds_dwordx4 v{va}, s[34:35] sc1", tag="u") +
                             mk("s_mov_b32 m0, s70") + (mk(f"v_add_u32 v{va}, {4 * UP}, v{va}") if k < 3 else []))
        return out, items

    def w1_loads(self):
        out = []
        for n in range(60):
            gq, k = n // 15, n % 15
            b = 4 + 4 * gq + 2 * (k // 8)
            out.append(I(f"global_load_dwordx4 a[{4*n}:{4*n+3}], v{self.vL16}, s[{b}:{b+1}] offset:{1024 * (k % 8) - 4096} sc1", tag="w1", put={("a", 4 * n): "W1"}))
        return [out[n] for n in self.W1_ORDER]

    W1_ORDER = [n for n in range(60) if n // 3 % 5 < 4] + [n for n in range(60) if n // 3 % 5 == 4]
    def ffn_ids(self):
        nb = self.o.get("xm", 2)
        return mk(f"""s_and_b32 s62, s{sCLS}, {(1 << (nb - 1)) - 1}
            s_lshl_b32 s62, s62, {5 - nb}
            s_lshr_b32 s67, s{sIDX}, {nb}
            s_add_u32 s62, s62, s67
            s_lshr_b32 s63, s{sCLS}, {nb - 1}
            s_and_b32 s67, s{sIDX}, {(1 << nb) - 1}
            s_lshl{nb}_add_u32 s63, s63, s67
            s_lshl2_add_u32 s60, s63, s{sW}
            s_mul_i32 s60, s60, 61440
            s_add_u32 s60, s60, {W1P + 4096}
            s_add_u32 s39, s{sW}, {"s62" if self.o.get("rot", 0) else 0}
            s_and_b32 s39, s39, 3""") + [i for gq in range(4) for i in mk(f"""s_add_u32 s67, s39, {gq}
            s_and_b32 s67, s67, 3
            s_mul_i32 s67, s67, 15360
            s_add_u32 s67, s67, s60
            s_add_u32 s{4+4*gq}, s34, s67
            s_addc_u32 s{5+4*gq}, s35, 0
            s_add_u32 s{6+4*gq}, s{4+4*gq}, 8192
            s_addc_u32 s{7+4*gq}, s{5+4*gq}, 0""")]

    def fw_poll_addr(self, va):
        return mk(f"""s_lshl_b32 s48, s{sCLS}, 12
            s_add_u32 s48, s48, {FW + 160 * 16}
            v_lshl_add_u32 v{va}, v1, 4, s48
            v_add_u32 v{va+1}, 512, v{va}""")

    def conv(self):
        e = self; o = e.o
        ACC = lambda t, mt: 144 + 8 * t + 4 * mt
        BR, AR, XB, XD, XC, K2F, K3F, AX, XU = 2, 50, 100, 108, 124, 68, 128, 100, 180
        main = []
        import gen_ffn as F
        ncs = o.get("ncs", 0)
        csq = F.colsums(e, o.get("csr", 2), "a")[:ncs]; cs_at = []
        def cs_fill(s):
            n = {True: o.get("csn", 3), False: 0}[s >= o.get("css", 8)]
            for _ in range(min(n, len(csq))):
                cs_at.append(len(main)); main.append(csq.pop(0))
        def mf(acc, A, B, need, zero=False):
            main.append(I(f"v_mfma_f32_16x16x32_bf16 v[{acc}:{acc+3}], v[{A}:{A+3}], v[{B}:{B+3}], " + ("0" if zero else f"v[{acc}:{acc+3}]"), need=need))
        def rd(txt, reg, n, tag, grp):
            return I(txt, tag=grp, put={("v", reg + i): tag for i in range(n)})
        def nd(*items): return {("v", reg + i): tag for reg, n, tag in items for i in range(n)}
        start, reads, pos = [], [], {}
        boxes = [(T, b) for T in range(6) for b in range(4) if not (b >= 2 and T >= 4)]
        arr = (A5, A3, A9, A7)
        nbox, box_at = 0, []
        early = o.get("t0e", 1)
        J = list(range(4, 16)) + [2, 3, 0, 1] if early else list(range(2, 16)) + [0, 1]
        J2 = [0, 1, 2, 3, 12, 13, 14, 15]
        for s, j in enumerate(J):
            grp = f"s{s}"
            start.append(len(main)); R = []
            b0 = BR + 16 * (s % 3)
            steps = [(0, 4 * j, (0, 1))]
            if j == 0: steps += [(1, 64, (0, 1)), (2, 76, (0, 1))]
            if j == 1: steps += [(1, 68, (0,)), (2, 80, (0,))]
            def bread(reg, jj, i):
                return rd(f"ds_read_b128 v[{reg}:{reg+3}], v{e.vUB + (jj & 7)} offset:{4096 * i + 2048 - 2048 * (jj >> 3)}", reg, 4, ("B", jj, i), grp)
            def areads(a0, o0, jj, iF, mts):
                base = W4 + 128 + 32 * o0
                return [rd(f"ds_read_b64 v[{a0+k}:{a0+k+1}], v{e.vAB} offset:{off}", a0 + k, 2, ("A", jj, iF, k), grp)
                        for k, off in ((0, base + W4P), (2, base), (4, base + W4P - 32)) if not (k == 0 and mts == (0,))]
            def mm(t, mt, a0, jj, iF, breg):
                A = a0 + 2 - 2 * mt
                pos.setdefault((t, mt), []).append(len(main))
                mf(ACC(t, mt), A, breg, nd((A, 2, ("A", jj, iF, 2 - 2 * mt)), (A + 2, 2, ("A", jj, iF, 4 - 2 * mt)), (breg, 4, ("B", jj, t - iF))))
            skip0 = early and s >= 8
            for i in range(4):
                if i or not skip0 or j < 2: R.append(bread(b0 + 4 * i, j, i))
            for iF, o0, mts in steps:
                a0 = AR + 6 * (s % 3) if iF == 0 else AX - 6 + 6 * iF + 12 * j
                ar = areads(a0, o0, j, iF, mts)
                R = ar + R if iF == 0 else R + ar
                for t in range(iF, 4):
                    if t == 0 and skip0: continue
                    for mt in mts: mm(t, mt, a0, j, iF, b0 + 4 * (t - iF))
                    if t == 0 and early:
                        a2, b2 = 68 + 6 * (s % 3), (86, 140, 136)[s % 3]
                        R = R[:4] + areads(a2, 4 * J2[s], J2[s], 0, (0, 1)) + [bread(b2, J2[s], 0)] + R[4:]
                        for mt in range(2): mm(0, mt, a2, J2[s], 0, b2)
            for _ in range(min(2, 20 - nbox)):
                T, b = boxes[nbox]
                xb = XB + 4 * (T & 1); xd = XD + 4 * (nbox & 3)
                if b == 0:
                    R.append(rd(f"ds_read_b128 v[{xb}:{xb+3}], v{e.vBB} offset:{2048 * T}", xb, 4, ("XB", T), grp if T < 5 else "xb5"))
                mf(xd, e.vBAND + 4 * b, xb, nd((xb, 4, ("XB", T))), zero=True)
                xc = XC + 2 * (nbox & 1)
                main[-1].put = nd((xd, 4, ("XD", nbox)))
                box_at.append((len(main) - 1, [
                    I(f"v_cvt_pk_bf16_f32 v{xc}, v{xd}, v{xd+1}", need=nd((xd, 2, ("XD", nbox))), put=nd((xc, 1, ("XC", nbox)))),
                    I(f"v_cvt_pk_bf16_f32 v{xc+1}, v{xd+2}, v{xd+3}", need=nd((xd + 2, 2, ("XD", nbox))), put=nd((xc + 1, 1, ("XC", nbox)))),
                    I(f"ds_write_b64 v{e.vBW}, v[{xc}:{xc+1}] offset:{arr[b] + 128 * T}", need=nd((xc, 2, ("XC", nbox))))]))
                nbox += 1
            cs_fill(s)
            reads.append(R)
        far = [("2", 0), ("2", 2), ("3", 0), ("2", 4), ("2", 6), ("2", 8), ("2", 10), ("3", 2)]
        kreads = []
        for phi in range(1, 9):
            kreads.append(rd(f"ds_read_b128 v[{K2F+4*(phi-1)}:{K2F+4*(phi-1)+3}], v{e.vK2A} offset:{K2 + 752 - 64 * phi}", K2F + 4 * (phi - 1), 4, ("K2", phi), None))
        for phi in range(3, 7):
            for k in range(2):
                r_ = K3F + 4 * (phi - 3) + 2 * k
                kreads.append(rd(f"ds_read_b64 v[{r_}:{r_+1}], v{e.vK3A} offset:{K3 + 504 - 64 * phi + 8 * k}", r_, 2, ("K3", phi), None))
        for s, (reg, k0) in enumerate(far, 16):
            start.append(len(main)); R = []
            b0 = BR + 16 * (s % 3)
            for kk in range(2):
                ks = k0 + kk
                for mt in range(2):
                    a0 = b0 + 8 * kk + 4 * mt
                    va, st, hf = (e.vR2 + mt, 64, 8) if reg == "2" else (e.vR3 + mt, 128, 16)
                    for k in range(2):
                        R.append(rd(f"ds_read_b64_tr_b16 v[{a0+2*k}:{a0+2*k+1}], v{va} offset:{st * ks + hf * k}", a0 + 2 * k, 2, ("F", reg, ks, mt), f"s{s}"))
                    for t in range(1, 4):
                        phi = 4 * t - ks if reg == "2" else 2 * t - ks
                        if (1 <= phi <= 8 if reg == "2" else 3 <= phi <= 6):
                            kf = K2F + 4 * (phi - 1) if reg == "2" else K3F + 4 * (phi - 3)
                            pos[t, mt].append(len(main))
                            mf(ACC(t, mt), a0, kf, nd((a0, 4, ("F", reg, ks, mt)), (kf, 4, ("K" + reg, phi))))
            if s < 21: cs_fill(s)
            reads.append(R)
        assert not csq
        ns = len(reads); start.append(len(main))
        xb5 = [r for r in reads[9] if r.tag == "xb5"]; reads[9] = [r for r in reads[9] if r.tag != "xb5"]
        g = Sched(main)
        SO = X0 - U0 - 2048
        g.pre = [I(f"ds_read_b128 v[{ACC(t, mt)}:{ACC(t, mt)+3}], v{e.vST + 2 + mt} offset:{SO + 4096 * t}", tag="s0") for t in range(4) for mt in range(2)]
        init = g.pre
        if o.get("cp", 2):
            isa = lambda r: r.mn == "ds_read_b64"
            e.conv_first = [r for r in reads[0] if not isa(r)][:2] + init[:2]
            b0r = [r for r in reads[0] if not isa(r)][2:]
            for t in range(1, 4): e.conv_first += [b0r[t - 1]] + init[2 * t: 2 * t + 2]
            e.conv_first += b0r[3:] + [r for r in reads[1] if not isa(r)]
            g.pre = [r for r in reads[0] if isa(r)] + e.w4_reads(1) + [r for r in reads[1] if isa(r)] + e.w4_reads(2) + mk("@lgkm s0")
        else:
            g.pre = reads[0] + init + reads[1] + e.w4_reads(1) + e.w4_reads(2) + mk("@lgkm s0")
        w41 = g.add(e.w4_build(1), 2, start[2 if early else 3] - 1, prio=1)
        w42 = g.add(e.w4_build(2), 2, start[9], after=[(w41[-1], 0)])
        for s in range(ns - 2):
            g.add(reads[s + 2], start[s], start[s + 1] + (2 if s < 19 else 0), prio=2, pace=True)
            g.add(mk(f"@lgkm s{s+1}"), start[s + 1] - 1, start[s + 1] - 1, prio=3)
        g.add(mk(f"@lgkm s{ns-1}"), start[ns - 1] - 1, start[ns - 1] - 1, prio=3)
        g.add(xb5, start[8], start[8] + 3, prio=2)
        prev = [None, None]
        for n, (k, ins) in enumerate(box_at):
            prev[n & 1] = g.add(ins, k + 3, k + 14, after=[(prev[n & 1], 0)] if prev[n & 1] else None, prio=1)[-1]
        g.add(kreads[3::-1] + kreads[7:3:-1], start[o.get("k2s", 13)], start[16] - 4, pace=True, win=5, after=[(w42[-1], 0)])
        g.add(kreads[8:], start[15], start[18] - 4, pace=True, win=5)
        last = None
        for t in range(4):
            s = o.get("xs", 7) + 2 * t
            chain = lambda mt, k: pos[t, mt][k]
            if early and t == 0:
                s = o.get("xs0", 3); chain = lambda mt, k, last=False: pos[0, mt][2 * k + 1]
            r = g.add([I(f"ds_read_b128 v[{XU}:{XU+3}], v{e.vUB} offset:{2048 + 4096 * t}", tag=f"xr{t}")] +
                      [I(f"ds_read_b128 v[{XU+4+4*mt}:{XU+7+4*mt}], v{e.vST + mt} offset:{SO + 4096 * t}", tag=f"xr{t}") for mt in range(2)],
                      0, chain(0, s - 1) - 6, after=[(last, 0)] if last else None, prio=1)
            for mt in range(2):
                p = chain(mt, s - 1 + mt); q = pos[t, mt][pos[t, mt].index(p) + 1]
                un = g.add(mk(([f"@lgkm xr{t}"] if mt == 0 else []) + [f"v_lshlrev_b32 v{XU+12+2*k}, 16, v{XU+2*mt+k}\nv_and_b32 v{XU+13+2*k}, 0xffff0000, v{XU+2*mt+k}" for k in range(2)]),
                           0, p + 2, after=[(r[-1], 5)] if mt == 0 else [(last, 0)])
                last = g.add(mk([f"v_fmac_f32 v{ACC(t, mt)+k}, v{XU+4+4*mt+k}, v{XU+12+k}" for k in range(4)]), p + 3, q - 2, after=[(un[-1], 0)], prio=2)[-1]
        def hstore(t):
            oo = 86 if early and t == 0 else XU + 4 * t
            return mk([f"s_mov_b32 s68, {HT + 16 * 40960 * t}"] + [f"v_cvt_pk_bf16_f32 v{oo+k}, v{ACC(t, k >> 1) + 2 * (k & 1)}, v{ACC(t, k >> 1) + 2 * (k & 1) + 1}" for k in range(4)]) + \
                mk(f"buffer_store_dwordx4 v[{oo}:{oo+3}], v{e.vHST}, {SRD}, s68 offen sc1", tag=f"hs{min(t, 2)}")
        for t in range(3):
            p = max(pos[t, 0][-1], pos[t, 1][-1])
            st = g.add(hstore(t), p + 3, p + 8, after=[(last, 0)] if t or not early else None, prio=2)[-1]
            if t or not early: last = st
            if t == 0:
                sga = g.add(mk(f"""s_add_u32 s48, s69, {F2}
                    @vm hs0
                    s_barrier
                    buffer_store_dwordx2 v[{e.vTAG}:{e.vTAG+1}], v199, {SRD}, s48 offen sc1""") + e.stamp(8), 0, len(main) - 1, after=[(st, o.get("sga", 44))], prio=2)
        w1 = e.w1_loads(); n1 = o.get("w1n", 48)
        if o.get("one", 0):
            g.add(w1[60 - len(e.w1q):n1], 0, start[o.get("w1e", 18)], pace=True, win=3)
        else:
            fwc = o.get("fwc", 8)
            chk = e.poll_check(e.vPOLL, 234, "s70")
            if o.get("fwi", 1) > 1: g.add(e.fwi, o.get("fwi", 1), o.get("fwi", 1) + 2, prio=2)
            if fwc >= 0:
                c = g.add([chk[0], chk[1:], I("s_barrier")], fwc, fwc + 4, prio=2)
            wl = g.add(w1[:n1], fwc + 5, start[o.get("w1e", 19)], pace=True, win=3, after=[(c[-1], 0)] if fwc >= 0 else None)
            if fwc < 0: e(chk)
        if o.get("wkb", 3) == 2: e(e.walk("B", 0))
        e.kpost(e.conv_first if o.get("cp", 2) else [])
        if not o.get("cp", 2): e("@vm u\ns_barrier")
        e(e.stamp(6))
        import gen_ffn as F
        sa, sb = F.setup(e)
        if ncs: g.add(mk([f"v_accvgpr_write_b32 a{252 + k}, s54" for k in range(4)]), 0, 20)
        x = g.add(sa[:-4], start[16], start[21])
        f2i = o.get("f2i", -14)
        if f2i < 0: g.add(e.poll_issue(0, F.PD), len(main) + f2i, len(main) + f2i, after=[(x[-1], 1)], prio=2)
        e.pre_conv = list(e.p); e.conv_stream = g.run(); e.conv_steps = (main, start)
        e(e.conv_stream)
        e(e.stamp(7))
        e(sa[-4:]); e(hstore(3))
        if e.stop == "conv": return
        if ncs:
            cs2 = F.colsums(e, o.get("csr", 2), "a")[ncs:48]
        else:
            cs2 = F.colsums(e, 4)[:48]
        g = Sched(cs2, dense=True)
        g.add(sb, 0, len(cs2) - 1)
        if n1 < 48: g.add(w1[n1:48], 0, 4 * (48 - n1), pace=True, prio=1)
        if f2i >= 0: g.add(e.poll_issue(0, F.PD), f2i, f2i, prio=2)
        st = g.run()
        k = [n for n, i in enumerate(st) if i.kind == "mfma"][min(o.get("f2c", 12), len(cs2) // 4)]
        e(st[:k])
        if o.get("wkb", 3) == 0: e(e.walk("B", 0))
        e(e.stamp(13))
        e(e.poll_check(0, F.PD)); e(e.stamp(1) if o.get("fst") else [])
        sig = mk(f"s_mov_b32 s48, {F2C - F2B}\nbuffer_store_dwordx2 v[{e.vTAG}:{e.vTAG+1}], v{e.vSIG}, {SRD}, s48 offen sc1")
        e("@vm hs1\ns_barrier"); e(sig)
        rest, c0 = st[k:], F.chunk(0)
        while c0:
            e(c0.pop(0))
            if e.p[-1].kind == "vm":
                while rest:
                    e(rest.pop(0))
                    if rest and rest[0].kind == "mfma":
                        e(rest.pop(0)); break
        e(rest)
        if ncs: e([f"v_accvgpr_read_b32 v{F.CS + k}, a{240 + k}" for k in range(12)])
        if o.get("wkb", 3) == 1: e(e.walk("B", 0))

    def w1_pack_loads(self):
        out = mk(f"""s_lshl2_add_u32 s71, s2, s{sW}
            s_min_u32 s71, s71, 959
            s_mul_i32 s72, s71, 5462
            s_lshr_b32 s72, s72, 16
            s_mul_i32 s48, s72, 12
            s_sub_u32 s71, s71, s48
            s_mul_i32 s48, s72, {8 * 3072}
            s_lshl_b32 s49, s71, 8
            s_add_u32 s48, s48, s49
            s_add_u32 s48, s48, 3072
            v_lshl_add_u32 v196, v6, 2, s48
            v_mov_b32 v197, 0
            v_lshl_add_u64 v[194:195], v[196:197], 0, s[26:27]
            s_mov_b32 exec_hi, 0
            v_lshl_add_u64 v[194:195], v[196:197], 0, s[24:25]
            s_mov_b32 exec_hi, -1
            s_mov_b32 s48, 9216
            s_mov_b32 s49, 0
            v_lshl_add_u64 v[196:197], v[194:195], 0, s[48:49]
            v_lshl_add_u64 v[198:199], v[196:197], 0, s[48:49]""")
        return out
    def w1_pack_issue(self):
        out = []
        for j in range(8):
            for hf in range(2):
                a = 194 + 2 * (j // 3)
                out += mk(f"global_load_dword v{236+8*hf+j}, v[{a}:{a+1}], off offset:{3072 * (j % 3 - 1) + 128 * hf}")
        return out
    def w1_pack_addr(self):
        out = mk(f"""s_lshl_b32 s48, s71, 4
            v_bfe_u32 v160, v1, 3, 2
            v_lshl_add_u32 v160, v160, 1, s48
            s_lshr_b32 s48, s72, 2
            s_mul_i32 s48, s48, 3072
            s_and_b32 s49, s72, 3
            s_lshl_b32 s49, s49, 8
            s_add_u32 s48, s48, s49
            s_add_u32 s48, s48, {W1P}
            v_and_b32 v161, 1, v1
            v_lshl_add_u32 v161, v161, 4, s48
            v_bfe_u32 v162, v1, 1, 2
            v_lshl_add_u32 v161, v162, 6, v161
            v_and_b32 v162, 32, v1
            v_add_u32 v161, v161, v162
            s_mov_b32 s49, 57
            s_mov_b32 s72, 0x05040100
            s_mov_b32 s73, 0x07060302""")
        for t in range(4):
            out += mk(f"""v_mul_u32_u24 v162, 21846, v160
                v_lshrrev_b32 v162, 16, v162
                v_mad_u32_u24 v162, v162, s49, v160
                v_lshl_add_u32 v{164+t}, v162, 10, v161""")
            if t < 3: out += mk(f"v_add_u32 v160, {7 if t == 1 else 1}, v160")
        return out
    def w1_pack_perm(self):
        return mk([f"v_perm_b32 v{2+4*t+jj}, v{236+8*(t>>1)+2*jj+1}, v{236+8*(t>>1)+2*jj}, s{72+(t&1)}" for t in range(4) for jj in range(4)])
    def w1_pack_stores(self):
        return mk([f"global_store_dwordx4 v{164+t}, v[{2+4*t}:{5+4*t}], s[34:35] sc1" for t in range(4)], tag="w1p")
    def w1_pack(self):
        return self.w1_pack_perm() + self.w1_pack_stores() + self.stamp(9)
    def w1_publish(self, va=None):
        return mk("@vm w1p\ns_barrier") + self.signal_all(FW, va)

    def hp_base(self):
        return mk(f"""s_sub_u32 s50, s2, 160
            v_and_b32 v196, 31, v1
            v_lshlrev_b32 v196, 2, v196
            v_mov_b32 v197, 0
            v_lshl_add_u64 v[198:199], v[196:197], 0, s[26:27]
            s_mov_b32 exec_hi, 0
            v_lshl_add_u64 v[198:199], v[196:197], 0, s[24:25]
            s_mov_b32 exec_hi, -1""") + [i for k in range(3) for i in self.hp_unit(k)]
    def hp_unit(self, k):
        su = 60 + 2 * k
        if k < 2:
            return mk(f"""s_lshl3_add_u32 s{su}, s50, s{sW}
                s_add_u32 s{su}, s{su}, {4 * k}
                s_mul_i32 s66, s50, 2731
                s_lshr_b32 s66, s66, 16
                s_mul_i32 s66, s66, 48
                s_add_u32 s{su}, s{su}, s66
                s_mul_i32 s{su+1}, s{su}, 5462
                s_lshr_b32 s{su+1}, s{su+1}, 16""")
        return mk(f"""s_lshr_b32 s66, s{sW}, 1
            s_and_b32 s69, s{sW}, 1
            s_lshl1_add_u32 s{su}, s50, s66
            s_mul_i32 s66, s{su}, 1366
            s_lshr_b32 s66, s66, 16
            s_add_u32 s66, s66, 1
            s_mul_i32 s66, s66, 192
            s_add_u32 s{su}, s{su}, s66
            s_mul_i32 s{su+1}, s{su}, 5462
            s_lshr_b32 s{su+1}, s{su+1}, 16""")
    def hp_loads(self, k, opt=False):
        su = 60 + 2 * k
        out = mk(f"""s_mov_b32 s49, 0
            s_mul_i32 s48, s{su+1}, {8 * 3072 - 12 * 256}
            s_lshl_b32 s67, s{su}, 8
            s_add_u32 s48, s48, s67
            s_add_u32 s48, s48, 3072
            {"s_lshl_b32 s67, s69, 7" if k == 2 else ""}
            {"s_add_u32 s48, s48, s67" if k == 2 else ""}
            v_lshl_add_u64 v[190:191], v[198:199], 0, s[48:49]
            s_add_u32 s48, s48, 9216
            v_lshl_add_u64 v[192:193], v[198:199], 0, s[48:49]
            s_add_u32 s48, s48, 9216
            v_lshl_add_u64 v[194:195], v[198:199], 0, s[48:49]""", opt=opt)
        for j in range(8):
            for hf in range(2 if k < 2 else 1):
                a = 190 + 2 * (j // 3)
                out += mk(f"global_load_dword v{200+16*k+8*hf+j}, v[{a}:{a+1}], off offset:{3072 * (j % 3 - 1) + 128 * hf}", opt=opt)
        return out
    def hp_addr(self, k):
        su = 60 + 2 * k
        out = []
        if k == 0:
            out += mk(f"""v_bfe_u32 v180, v1, 3, 2
                v_and_b32 v181, 1, v1
                v_lshlrev_b32 v181, 4, v181
                v_bfe_u32 v182, v1, 1, 2
                v_lshl_add_u32 v181, v182, 6, v181
                v_and_b32 v182, 32, v1
                v_add_u32 v181, v181, v182
                s_mov_b32 s68, 57
                s_mov_b32 s72, 0x05040100
                s_mov_b32 s73, 0x07060302""")
        out += mk(f"""s_mul_i32 s48, s{su+1}, 12
            s_sub_u32 s48, s{su}, s48
            s_lshl_b32 s48, s48, 4
            {"s_lshl3_add_u32 s48, s69, s48" if k == 2 else ""}
            v_lshl_add_u32 v183, v180, 1, s48
            s_lshr_b32 s48, s{su+1}, 2
            s_mul_i32 s48, s48, 3072
            s_and_b32 s67, s{su+1}, 3
            s_lshl_b32 s67, s67, 8
            s_add_u32 s48, s48, s67
            s_add_u32 s48, s48, {W1P}
            v_add_u32 v184, s48, v181""")
        for t in range(4 if k < 2 else 2):
            out += mk(f"""v_mul_u32_u24 v182, 21846, v183
                v_lshrrev_b32 v182, 16, v182
                v_mad_u32_u24 v182, v182, s68, v183
                v_lshl_add_u32 v{160+4*k+t}, v182, 10, v184""")
            if t < 3: out += mk(f"v_add_u32 v183, {7 if t == 1 else 1}, v183")
        return out
    def hp_pack(self, k, opt=False):
        r, o = 200 + 16 * k, 52 + 16 * k
        return mk([f"v_perm_b32 v{o+4*t+jj}, v{r+8*(t>>1)+2*jj+1}, v{r+8*(t>>1)+2*jj}, s{72+(t&1)}" for t in range(4 if k < 2 else 2) for jj in range(4)], opt=opt) + \
            mk([f"global_store_dwordx4 v{160+4*k+t}, v[{o+4*t}:{o+4*t+3}], s[34:35] sc1" for t in range(4 if k < 2 else 2)], tag="w1p" if k < 2 else "w2p", opt=opt)
    def low_waves(self, ins):
        L = self.lab("lw")
        return mk(f"s_cmp_ge_u32 s{sW}, 2\ns_cbranch_scc1 {L}") + ins + mk(f"{L}:")

    def w2_consts(self):
        e = self
        e(f"""s_sub_u32 s50, s2, 160
            v_lshlrev_b32 v{e.vL16}, 4, v1
            s_lshr_b32 s55, s50, 1
            s_and_b32 s56, s50, 1
            s_mul_i32 s48, s55, {32 * 1280}
            s_mul_i32 s49, s56, 640
            s_add_u32 s48, s48, s49
            s_mul_i32 s49, s{sW}, {8 * 1280}
            s_add_u32 s48, s48, s49
            s_lshl2_add_u32 s56, s56, s{sW}
            s_mul_i32 s56, s56, 48
            s_add_u32 s55, s55, s56
            s_mul_i32 s56, s{sW}, 5120""")
        for n in range(5):
            e(f"""v_add_u32 v20, {64 * n}, v1
                v_mul_u32_u24 v21, 1639, v20
                v_lshrrev_b32 v21, 16, v21
                v_mul_u32_u24 v21, 640, v21
                v_lshl_add_u32 v21, v20, 4, v21
                v_add_u32 v{24+n}, s48, v21""")
        e(f"""v_bfe_u32 v20, v1, 2, 2
            v_bfe_u32 v21, v1, 4, 1
            v_lshl_add_u32 v20, v20, 1, v21
            v_lshrrev_b32 v21, 5, v1
            v_lshl_add_u32 v20, v21, 4, v20
            v_mul_u32_u24 v20, 640, v20
            v_and_b32 v21, 3, v1
            v_lshl_add_u32 v20, v21, 3, v20
            s_mul_i32 s48, s{sW}, 160
            v_add_u32 v20, s48, v20""")

    def helper_main(self):
        e = self
        import gen_ffn as F
        dma = [i for n in range(5) for i in mk(f"s_add_u32 m0, s56, {1024 * n}") + mk(f"global_load_lds_dwordx4 v{24+n}, s[28:29]", tag="w2l")]
        one = e.o.get("one", 0)
        if one:
            if one == 2: e.x_loads()
            e(e.w1_pack_loads()); e(e.w1_pack_issue()); e.epoch_load()
            e.ln_consts(); e(e.w1_pack_addr()); e.w2_consts()
            if e.o.get("hd", 1): e("s_waitcnt vmcnt(0)")
            e(e.ln1()); e(e.w1_pack_perm()); e(e.w1_pack_stores()); e(e.stamp(9))
            e("@vm w1p"); e(e.ln_publish())
            e(dma)
        else:
            e.epoch_load(); e(e.hp_base()); e.ln_consts()
            ln = e.ln1(); he = e.o.get("he", 1)
            e(ln[:20])
            for k in range(he): e(e.hp_loads(k))
            e(ln[20:])
            for k in range(he, 2): e(e.hp_loads(k))
            e(e.ln_publish())
            for k in range(3): e(e.hp_addr(k))
            e.w2_consts()
            second = e.hp_loads(2) + dma; h2 = e.o.get("h2", 0)
            if h2 == 2: e(second)
            e(e.hp_pack(0)); e(e.hp_pack(1)); e(e.stamp(9))
            if h2 == 1: e(second)
            e("@vm w1p\ns_barrier"); e(e.signal_all(FW))
            e(e.stamp(4))
            if h2 == 0: e(second)
        e(e.ffn_ids())
        if one: e(f"s_lshl_b32 s48, s{sCLS}, 15\ns_add_u32 s48, s48, {F1}\nv_lshl_add_u32 v180, v0, {e.fs}, s48")
        else: e(e.helper_flags(180, FW))
        e(f"""s_mul_i32 s64, s55, 5120
            s_add_u32 s64, s64, {W2P}
            s_add_u32 s65, s64, 4096
            s_lshl_b32 s48, s50, 7
            s_add_u32 s48, s48, {F2 + HOFF}
            v_mov_b32 v197, s48
            v_mov_b32 v198, 0x40000000
            @vm w2l""")
        if not one: e(e.poll_issue(180, 192))
        e("s_barrier")
        for t in range(5):
            e(f"ds_read_b64_tr_b16 v[{32+4*t}:{33+4*t}], v20 offset:{32*t}\nds_read_b64_tr_b16 v[{34+4*t}:{35+4*t}], v20 offset:{32*t + 8*640}")
        if not one: e(e.hp_pack(2))
        e([f"buffer_store_dwordx4 v[{32+4*t}:{35+4*t}], v{e.vL16}, {SRD}, s{64 + t // 4} offen offset:{1024 * (t & 3)} sc1" for t in range(5)], tag="w2p")
        e(e.stamp(10))
        e(e.walk("B", 1))
        if one: e("s_waitcnt vmcnt(0)"); e(e.poll_issue(180, 192))
        e(e.poll_check(180, 192, slp=4))
        e("s_barrier")
        e(e.stamp(6))
        sa, sb = F.setup(e)
        w1, cs, fill = e.w1_loads()[:48], F.colsums(e)[:48], sa + sb
        lag = 14
        for n in range(48 + lag):
            if n == lag: e("@vm w2p\ns_barrier"); e(e.signal_all(F2)); e(e.stamp(5))
            if n < 48: e(w1[n])
            if n == 47: e(e.poll_issue(197, 192) if e.o.get("hint", 0) else e.poll_issue(0, F.PD))
            if n >= lag: e(cs[n - lag])
            e(fill[:9]); fill = fill[9:]
        e(e.stamp(7))
        if e.o.get("hint", 0):
            e(e.poll_check(197, 192, slp=4))
            e(e.stamp(13))
            e(e.poll_issue(0, F.PD))
        e(e.poll_check(0, F.PD)); e("s_barrier"); e(e.stamp(1) if e.o.get("fst") else [])
        e(F.chunk(0))

    def walk(self, grp, role):
        if not self.o.get("wk", 1): return []
        out = mk(f"s_mov_b64 exec, 0\ns_mov_b32 s1, {role}")
        for w in range(3): out += mk(f"s_cmp_eq_u32 s{sW}, {w}\ns_cbranch_scc1 L_pad{grp}_{w}")
        out += mk(f"s_branch L_pad{grp}_3\nL_walked{grp}_{role}:")
        if grp == "B" and role == 0: out += mk("s_cmp_eq_u32 s1, 1\ns_cbranch_scc1 L_walkedB_1")
        return out + mk("s_mov_b64 exec, -1")
    def place_pads(self, prog, base):
        sz = sizes(prog)
        first = {grp: next(n for n, i in enumerate(prog) if i.text == f"L_walked{grp}_0:") for grp in "AB"}
        end = next(n for n, i in enumerate(prog) if i.mn == "s_endpgm")
        out, off, want, pads = [], base, [], {"A": [], "B": []}
        step = self.o.get("wks", 0)
        for n, i in enumerate(prog):
            if off // 4096 != (off + sz[n]) // 4096 and first["A"] < n < end:
                want = [(off + sz[n]) // 4096 * 4096 + k * step for k in range(2 if step else 1)]
            out.append(i); off += sz[n]
            near = [x.kind for x in prog[n + 1:n + 5]]
            if want and off >= want[0] and sz[n] and (i.kind == "mfma" or "mfma" not in near) and n + 1 < end:
                grp = "A" if n < first["B"] else "B"
                lab, br = I(f"L_pad{grp}_{len(pads[grp])}:"), I("s_cbranch_execz L_x")
                pads[grp].append(br); out += [lab, br]; off += 4; want.pop(0)
        tail = []
        for grp, ps in pads.items():
            for k, br in enumerate(ps):
                br.text = f"s_cbranch_execz L_pad{grp}_{k + 4}" if k + 4 < len(ps) else f"s_cbranch_execz L_back{grp}"
            k = next(n for n, i in enumerate(out) if i.text == f"L_walked{grp}_0:")
            back = [I(f"L_pad{grp}_{j}:") for j in range(len(ps), 4)] + [I(f"L_back{grp}:")]
            out[k:k] = back
        return out

    def finish_stamps(self):
        e = self
        if not e.stamps: return
        if e.o.get("nost") and not e.o.get("cnt"): e("s_waitcnt vmcnt(0)\ns_memrealtime s[100:101]")
        e(f"""s_waitcnt lgkmcnt(0)
            s_lshl2_add_u32 s48, s2, s{sW}
            s_lshl_b32 s48, s48, 6
            s_add_u32 s48, s48, {DBG}
            v_mov_b32 v2, s48""")
        for k in range(14):
            e(f"v_mov_b32 v3, s{74 + 2 * k}\nbuffer_store_dword v3, v2, {SRD}, 0 offen offset:{4 * k}")

    def build(self):
        e = self
        one = e.o.get("one", 0)
        e.prologue()
        if one != 2: e.x_loads()
        e(f"s_cmp_ge_u32 s{sIDX}, 20\ns_cbranch_scc1 L_helper")
        head = list(e.p)
        e.conv_param_loads()
        if one == 2: e.x_loads()
        if one:
            e(e.w1_pack_loads()); e(e.w1_pack_issue()); e.epoch_load()
            e.conv_consts_a(); e(e.table_loads([6, 2, 8]))
            e.ln_consts(); e(e.w1_pack_addr())
            e("L_walkedA_0:"); e(e.walk("B", 0)); e(e.stamp(12))
        else:
            e.epoch_load(); e.ln_consts(); e.conv_consts_a()
            e("L_walkedA_0:"); e(e.walk("B", 0))
            ln = e.ln1()
            tl = e.table_loads([6, 2, 8, 0, 1, 3, 4, 5, 7, 9, 10, 11, 12]); t0, t1 = e.o.get("tb0", 3), e.o.get("tb1", 3)
            e(tl[:t0]); e(ln[:20]); e(tl[t0:t1]); e(ln[20:])
            e.tl_rest = tl[t1:]
        e.kgen(); e.conv()
        a, sa = finalize(e.p)
        e.p = list(head); e("L_helper:")
        e.helper_main()
        e("s_branch L_join")
        b, sb = finalize(e.p)
        k = next(n for n, i in enumerate(b) if i.text == "L_helper:")
        e.p = []
        e("L_join:")
        if e.stop != "conv":
            import gen_ffn
            e.in_ffn = True
            gen_ffn.ffn(e)
        e.finish_stamps()
        c, sc = finalize(e.p)
        self.stats = (sa, sb, sc)
        allp = a + c + mk('L_end:\ns_endpgm') + b[k:]
        if e.o.get("al", 1):
            ks = [n for n, i in enumerate(allp) if i.kind == "valu" and i.mn.startswith("v_pk_") and n < len(a)]
            allp, n = align_runs(allp, ks[0], ks[-1] + 40, e.o.get("alr", 6)); self.stats += (n,)
        if "tr0" in e.o:
            ms = [n for n, i in enumerate(allp) if i.kind == "mfma"][e.o["tr0"]::e.o["trs"]][:13]
            allp = [i for i in allp if "s[100:101]" not in i.text]
            for k, n in reversed(list(enumerate(ms))): allp.insert(n + 1, I(f"s_memtime s[{76 + 2 * k}:{77 + 2 * k}]"))
        if e.o.get("wk", 1): allp = e.place_pads(allp, 0x300)
        body = "\n".join(("" if i.kind == "meta" else "    ") + i.text for i in allp if i.kind != "pseudo")
        return f"""; @launch grid=(256,1,1) block=(256,1,1) lds={LDS_BYTES}
; One persistent workgroup per CU. Hand-offs between workgroups go through write-through stores into d_ws and
.amdgcn_target "amdgcn-amd-amdhsa--gfx950"
.text
.p2align 12
.globl {NAME}_kernel
.p2align 8
.type {NAME}_kernel,@function
{NAME}_kernel:
{body}
{chr(10).join(self.cold)}
.p2align 7
L_table:
{self.lane_table()}
L_code_end:
.section .rodata,"a"
.p2align 6
.amdhsa_kernel {NAME}_kernel
  .amdhsa_next_free_vgpr 512
  .amdhsa_next_free_sgpr 102
  .amdhsa_accum_offset 256
  .amdhsa_group_segment_fixed_size 0
  .amdhsa_kernarg_size 128
  .amdhsa_user_sgpr_count 2
  .amdhsa_user_sgpr_kernarg_segment_ptr 1
  .amdhsa_system_sgpr_workgroup_id_x 1
.end_amdhsa_kernel
"""

if __name__ == "__main__":
    opt = {a.split("=")[0]: int(a.split("=")[1]) for a in sys.argv[4:]}
    k = K(stop=sys.argv[2] if len(sys.argv) > 2 and sys.argv[2] != "-" else None, stamps=len(sys.argv) > 3 and sys.argv[3] == "stamps", opt=opt)
    open(sys.argv[1], "w").write(k.build())
    print(k.stats, getattr(k, 'models', None))
```

```python
import sys, gen as G
opt0 = {a.split("=")[0]: int(a.split("=")[1]) for a in sys.argv[2:]}
for spec in sys.argv[1].split(","):
    mn = spec.endswith("m"); fst = spec.startswith("f"); k = int(spec.strip("fm"))
    opt = dict(opt0, nost=1, st=k, fst=int(fst))
    kk = G.K(stamps=True, opt=opt); kk.finish_stamps = lambda: None
    s = kk.build()
    r = 74 + 2 * k
    s = s.replace("    s_load_dwordx16 s[20:35], s[0:1], 64\n", "    s_load_dwordx16 s[20:35], s[0:1], 64\n    s_load_dwordx2 s[100:101], s[0:1], 112\n", 1)
    neg = "s_not_b32 s6, s6" if mn else "s_nop 0"
    s = s.replace("L_end:\n", f"""    s_waitcnt vmcnt(0) lgkmcnt(0)
    s_cmp_lt_u32 s2, 160
    s_mov_b32 s6, s{r}
    s_cselect_b32 s7, -1, 0
    {neg}
    s_and_b32 s6, s6, s7
    v_mov_b32 v2, 0
    v_mov_b32 v3, s6
    s_waitcnt lgkmcnt(0)
    s_mov_b64 exec, 1
    global_atomic_umax v2, v3, s[100:101] sc1
    s_mov_b64 exec, -1
L_diag0:
    s_memrealtime s[8:9]
    s_waitcnt lgkmcnt(0)
    s_sub_u32 s8, s8, s74
    s_cmp_lt_u32 s8, 4400
    s_cbranch_scc1 L_diag0
    global_load_dword v3, v2, s[100:101] sc1
    s_waitcnt vmcnt(0)
    v_readfirstlane_b32 s6, v3
    s_nop 3
    {neg}
L_diag:
    s_memrealtime s[8:9]
    s_waitcnt lgkmcnt(0)
    s_sub_u32 s8, s8, s6
    s_cmp_lt_u32 s8, 5000
    s_cbranch_scc1 L_diag
L_end:
""")
    open(f"hd_{spec}.s", "w").write(s)
```
